```python
import torch

def _softmax(x, axis=-1):
    return torch.softmax(x, dim=axis)
def _gelu(x):
    return torch.nn.functional.gelu(x, approximate="tanh")
def _silu(x):
    return torch.nn.functional.silu(x)
def _sigmoid(x):
    return torch.sigmoid(x)
def _layernorm(x, axis=-1, eps=1e-5):
    m = x.mean(dim=axis, keepdim=True)
    v = x.var(dim=axis, keepdim=True, unbiased=False)
    return (x - m) / torch.sqrt(v + eps)
def _scatter_add(tgt, idx, src, axis=0):
    return tgt.clone().index_add_(axis, idx, src)
def _segment_sum(src, seg, n):
    out = torch.zeros((n,) + src.shape[1:], dtype=src.dtype)
    return out.index_add_(0, seg, src)
def _pad(x, pw):
    flat = tuple(v for pair in reversed(pw) for v in pair)
    return torch.nn.functional.pad(x, flat)

kernel_name = 'recurrent_scan__gqa_block_cached__dense_activation_squared_relu__decode'

def setup_inputs():

    _w = (lambda a: (lambda t: t.to(torch.bfloat16) if t.is_floating_point() else t)(torch.as_tensor(a)))
    def _A_setup():
        B, Sq, D = 4, 1, 512
        Hq, Hkv, Sk, Dh = 32, 8, 16384, 128
        assert Hq % Hkv == 0, (Hq, Hkv)
        return {
            "x": _w((lambda *s: torch.randn(*s, dtype=torch.bfloat16) * 0.05)(B, Sq, D)),
            "k_cache": _w((lambda *s: torch.randn(*s, dtype=torch.bfloat16) * 1.6)(B, Hkv, Sk, Dh)),
            "v_cache": _w((lambda *s: torch.randn(*s, dtype=torch.bfloat16) * 0.2)(B, Hkv, Sk, Dh)),
            "wq": _w((lambda *s: torch.randn(*s, dtype=torch.bfloat16) * 1.6)(D, Hq * Dh) * (D ** -0.5)),
            "wo": _w((lambda *s: torch.randn(*s, dtype=torch.bfloat16) * 0.2)(Hq * Dh, D) * ((Hq * Dh) ** -0.5)),
        }
    _A_in = _A_setup()

    def _B_setup():
        B, S, D, F = 4, 1, 512, 1792
        return {
            "x": _w((lambda *s: torch.randn(*s, dtype=torch.bfloat16) * 0.05)(B, S, D)),
            "w1": _w((lambda *s: torch.randn(*s, dtype=torch.bfloat16) * 0.1)(D, F)),
            "b1": _w((lambda *s: torch.randn(*s, dtype=torch.bfloat16) * 0.1)(F)),
            "w2": _w((lambda *s: torch.randn(*s, dtype=torch.bfloat16) * 0.1)(F, D)),
            "b2": _w((lambda *s: torch.randn(*s, dtype=torch.bfloat16) * 0.1)(D)),
        }
    _B_in = _B_setup()

    return {
        "A_x": _A_in["x"],
        "A_k_cache": _A_in["k_cache"],
        "A_v_cache": _A_in["v_cache"],
        "A_wq": _A_in["wq"],
        "A_wo": _A_in["wo"],
        "B_x": _B_in["x"],
        "B_w1": _B_in["w1"],
        "B_b1": _B_in["b1"],
        "B_w2": _B_in["w2"],
        "B_b2": _B_in["b2"],
    }

def reference(A_x, A_k_cache, A_v_cache, A_wq, A_wo, B_x, B_w1, B_b1, B_w2, B_b2):
    def _A_ref(x, k_cache, v_cache, wq, wo):
        B, Sq, D = x.shape
        Hq, Dh = 32, 128
        Hkv = k_cache.shape[1]
        rep = Hq // Hkv
        q = (lambda x, *d: x.permute(*d))((x @ wq).reshape(B, Sq, Hq, Dh), 0, 2, 1, 3)
        k = (lambda x, n, axis: torch.repeat_interleave(x, n, dim=axis))(k_cache, rep, axis=1)
        v = (lambda x, n, axis: torch.repeat_interleave(x, n, dim=axis))(v_cache, rep, axis=1)
        scores = torch.einsum("bhqd,bhkd->bhqk", q, k) * (Dh ** -0.5)
        p = _softmax(scores, axis=-1)
        o = torch.einsum("bhqk,bhkd->bhqd", p, v)
        return (lambda x, *d: x.permute(*d))(o, 0, 2, 1, 3).reshape(B, Sq, Hq * Dh) @ wo

    def _B_ref(x, w1, b1, w2, b2):
        h = torch.einsum("bsd,df->bsf", x, w1) + b1
        zero = torch.zeros_like(h)
        r = torch.where(h > zero, h, zero)
        h = r * r
        out = torch.einsum("bsf,fd->bsd", h, w2) + b2
        return out

    x = A_x
    xn = _layernorm(x, axis=-1)
    s = _A_ref(xn, A_k_cache, A_v_cache, A_wq, A_wo)
    g = _silu(_B_ref(xn, B_w1, B_b1, B_w2, B_b2))
    return x + s * g
```

```python
import sys, struct

NAME = "recurrent_scan__gqa_block_cached__dense_activation_squared_relu__decode"

HEADER = """; Kernarg layout for this problem (104 bytes, ptrs only, base s[0:1]):
;   offset  24: d_in[3] A_wq  shape=(512, 4096) dtype=bfloat16
"""

def f32(x):
    return "0x%08x" % struct.unpack("<I", struct.pack("<f", x))[0]

LOG2E = 1.4426950408889634
SCALE = 128 ** -0.5

L_Q, L_XN, L_H, L_STAT, L_PART, L_WQ, L_SIZE = 0, 1024, 2048, 2176, 4096, 12288, 28672
L_TAG = 2112
W_Q = 0
W_IN = 0x10000
IN_H1, IN_Y, IN_Z = 0, 3072, 5120
REC = 320
W_EP = 0x220000
W_DIAG = 0x280000
W_SIZE = 0x400000

SK, SV, SWS, SWO, SW2, SX, SWQ, SW1, SB1, SB2, SOUT, SDBG = 8, 12, 16, 20, 24, 28, 32, 36, 40, 44, 48, 52
sWAVE, sB, sH, sS, sP = 3, 4, 5, 6, 7
sSELLO, sSELHI, sSCALE, sLOG2E, sA, sBo, sIT = 56, 57, 58, 59, 60, 61, 62
sT0, sT1, sT2, sT3 = 63, 64, 65, 66
sMASK = 68
sMASK2 = 70
sSPIN = 72
sHI = 73
sW = 74
sTAG = 75
sIN = 67
sSTAMP = 76


class G:
    def __init__(self, diag=False):
        self.L = []
        self.diag = diag
        self.nstamp = {}

    def __call__(self, s):
        self.L.append("  " + s)

    def label(self, s):
        self.L.append(s + ":")

    def comment(self, s):
        self.L.append("  ; " + s)

    def stamp(self, i):
        if self.diag:
            self(f"s_memrealtime s[{sSTAMP+2*i}:{sSTAMP+2*i+1}]")

    def srd_consts(self, base, nbytes):
        self(f"s_mov_b32 s{base+2}, {hex(nbytes)}")
        self(f"s_mov_b32 s{base+3}, 0x20000")

    def srd_load(self, base, off):
        self(f"s_load_dwordx2 s[{base}:{base+1}], s[0:1], {off}")


def srd(b):
    return f"s[{b}:{b+3}]"


def vq(r, n=4):
    return f"v[{r}:{r+n-1}]"


def perms(g, raw, e, dst):
    sel = sSELHI if (e & 1) else sSELLO
    for j in range(4):
        g(f"v_perm_b32 v{dst+j}, v{raw[2*j+1] + (e >> 1)}, v{raw[2*j] + (e >> 1)}, s{sel}")


def gemv_tile(g, raw, vec, acc, tmp, first, wside_a=False):
    nq = 3
    perms(g, raw, 0, tmp)
    perms(g, raw, 1, tmp + 4)
    for e in range(8):
        t = tmp + 4 * (e % nq)
        if e + 2 < 8:
            perms(g, raw, e + 2, tmp + 4 * ((e + 2) % nq))
        c = "0" if first else vq(acc + 4 * e)
        if wside_a:
            g(f"v_mfma_f32_16x16x32_bf16 {vq(acc+4*e)}, {vq(t)}, {vq(vec)}, {c}")
        else:
            g(f"v_mfma_f32_16x16x32_bf16 {vq(acc+4*e)}, {vq(vec)}, {vq(t)}, {c}")


def rne(g, dst, src):
    g(f"v_cvt_pk_bf16_f32 v{dst}, v{src}, v{src}")
    g(f"v_lshlrev_b32 v{dst}, 16, v{dst}")


def wave_sum(g, v, t):
    for r in (8, 4, 2, 1):
        g("s_nop 1")
        g(f"v_add_f32_dpp v{v}, v{v}, v{v} row_ror:{r} row_mask:0xf bank_mask:0xf")
    for sw in ("v_permlane16_swap_b32", "v_permlane32_swap_b32"):
        g(f"v_mov_b32 v{t}, v{v}")
        g("s_nop 1")
        g(f"{sw} v{v}, v{t}")
        g(f"v_add_f32 v{v}, v{v}, v{t}")


def tagcheck(g, regs, c1, c2):
    def tree(op3, op2, dst):
        r = list(regs)
        g(f"{op3} v{dst}, v{r[0]}, v{r[1]}, v{r[2]}" + (" bitop3:0x80" if "bitop" in op3 else ""))
        r = r[3:]
        while len(r) >= 2:
            g(f"{op3} v{dst}, v{dst}, v{r[0]}, v{r[1]}" + (" bitop3:0x80" if "bitop" in op3 else ""))
            r = r[2:]
        if r:
            g(f"{op2} v{dst}, v{dst}, v{r[0]}")
    tree("v_bitop3_b32", "v_and_b32", c1)
    tree("v_or3_b32", "v_or_b32", c2)
    g(f"v_bitop3_b32 v{c1}, v{c1}, v{c2}, s{sTAG} bitop3:0x7e")
    g(f"v_and_b32 v{c1}, 0xff, v{c1}")
    g(f"v_cmp_ne_u32 vcc, 0, v{c1}")


def reduce64x8(g, a):
    for i in range(4):
        g(f"v_permlane32_swap_b32 v{a+i}, v{a+4+i}")
    for i in range(4):
        g(f"v_add_f32 v{a+i}, v{a+i}, v{a+4+i}")
    g("s_nop 0")
    for i in range(2):
        g(f"v_permlane16_swap_b32 v{a+i}, v{a+2+i}")
    for i in range(2):
        g(f"v_add_f32 v{a+i}, v{a+i}, v{a+2+i}")
    for r in (8, 4, 2, 1):
        g("s_nop 0")
        for i in range(2):
            g(f"v_add_f32_dpp v{a+i}, v{a+i}, v{a+i} row_ror:{r} row_mask:0xf bank_mask:0xf")


def gen(diag=False, kvflags="nt", wflags="nt", pace=6, spin_max=1 << 20, delay=0, lpace=None, fine=False, skip=(), epflags="sc1", pflags="sc1", sflags="sc1", xflags="", qsleep=0, bar0=False):
    g = G(diag)
    out = [HEADER + f"; @launch grid=(256,1,1) block=(320,1,1) lds={L_SIZE}",
           '.amdgcn_target "amdgcn-amd-amdhsa--gfx950"', ".text", f".globl {NAME}_kernel", ".p2align 8",
           f".type {NAME}_kernel,@function", f"{NAME}_kernel:"]
    g("s_cmp_ge_u32 s2, 256")
    g("s_cbranch_scc1 L_end")
    g.srd_load(SK, 8)
    g.srd_load(SV, 16)
    g.srd_load(SX, 0)
    g.srd_load(SWQ, 24)
    g.srd_load(SWS, 96)
    g.srd_consts(SWS, W_SIZE)
    g.stamp(0)
    g("v_lshrrev_b32 v1, 6, v0")
    g("v_and_b32 v0, 63, v0")
    g(f"s_lshr_b32 s{sB}, s2, 6")
    g(f"v_readfirstlane_b32 s{sWAVE}, v1")
    g(f"s_and_b32 s{sH}, s2, 7")
    g(f"s_bfe_u32 s{sS}, s2, 0x30003")
    g(f"s_and_b32 s{sP}, s2, 63")
    g(f"s_mov_b32 s{sSELLO}, 0x05040100")
    g(f"s_mov_b32 s{sSELHI}, 0x07060302")
    g(f"s_mov_b32 s{sHI}, 0xffff0000")
    g(f"s_mov_b32 s{sLOG2E}, {f32(LOG2E)}")
    g(f"s_cmp_eq_u32 s{sWAVE}, 0")
    g("s_cbranch_scc1 L_helper")

    vK, vV, vM, vL, vMC, vT6, vT7 = 1, 2, 3, 4, 5, 6, 7
    vS, vQ, vO = 8, 16, 32
    SLOT = [64, 128, 192]
    g.srd_consts(SK, 0x8000000)
    g.srd_consts(SV, 0x8000000)
    g(f"s_sub_u32 s{sW}, s{sWAVE}, 1")
    g(f"s_lshl_b32 s{sA}, s{sB}, 3")
    g(f"s_add_u32 s{sA}, s{sA}, s{sH}")
    g(f"s_lshl_b32 s{sA}, s{sA}, 3")
    g(f"s_add_u32 s{sA}, s{sA}, s{sS}")
    g(f"s_lshl_b32 s{sA}, s{sA}, 7")
    g(f"s_add_u32 s{sA}, s{sA}, s{sW}")
    g(f"s_lshl_b32 s{sA}, s{sA}, 12")
    g(f"s_add_u32 s{sBo}, s{sA}, 0x4000")
    g(f"v_and_b32 v{vT6}, 3, v0")
    g(f"v_lshlrev_b32 v{vK}, 10, v{vT6}")
    g(f"v_bfe_u32 v{vT6}, v0, 2, 2")
    g(f"v_lshl_add_u32 v{vK}, v{vT6}, 8, v{vK}")
    g(f"v_lshrrev_b32 v{vT6}, 4, v0")
    g(f"v_lshl_add_u32 v{vK}, v{vT6}, 4, v{vK}")
    g(f"v_lshlrev_b32 v{vV}, 4, v0")
    g("s_waitcnt lgkmcnt(0)")
    for _ in range(delay):
        g("s_sleep 16")
    if bar0:
        g("s_barrier")

    def kv_issue(X, paced=None):
        for (base, voff, rs, so, step) in ((X, vK, SK, sA, 64), (X + 16, vV, SV, sA, 1024),
                                           (X + 32, vK, SK, sBo, 64), (X + 48, vV, SV, sBo, 1024)):
            for j in range(4):
                g(f"buffer_load_dwordx4 {vq(base+4*j)}, v{voff}, {srd(rs)}, s{so} offen offset:{j*step} {kvflags}")
                if paced is not None:
                    g(f"s_waitcnt vmcnt({paced})")
        g(f"s_add_u32 s{sA}, s{sA}, 0x8000")
        g(f"s_add_u32 s{sBo}, s{sBo}, 0x8000")

    kv_issue(SLOT[0], pace)
    g.srd_load(SWO, 32)
    g.srd_load(SW2, 64)
    g.srd_consts(SWO, 4096 * 512 * 2)
    g.srd_consts(SW2, 1792 * 512 * 2)
    g(f"s_mov_b32 s{sSCALE}, {f32(SCALE)}")
    g(f"s_mov_b32 s{sIT}, 0")
    for i in range(32):
        g(f"v_mov_b32 v{vO+i}, 0")
    g(f"v_mov_b32 v{vM}, 0xff800000")
    g(f"v_mov_b32 v{vL}, 0")
    g(f"v_mov_b32 v{vMC}, 0")
    g(f"v_and_b32 v{vT7}, 3, v0")
    g(f"v_lshlrev_b32 v{vT7}, 8, v{vT7}")
    g(f"v_lshl_add_u32 v{vT7}, v{vT6}, 4, v{vT7}")
    kv_issue(SLOT[1], pace)
    kv_issue(SLOT[2], pace)
    g.stamp(1)
    g("s_waitcnt lgkmcnt(0)")
    g("s_barrier")
    for j in range(4):
        g(f"ds_read_b128 {vq(vQ+4*j)}, v{vT7} offset:{L_Q + 64*j}")
    g(f"ds_read_b32 v{vT6}, v{vL} offset:{L_TAG}")
    g.stamp(2)
    g("s_waitcnt lgkmcnt(0)")
    g(f"v_readfirstlane_b32 s{sTAG}, v{vT6}")

    def tile(X, tag):
        Ka, Va, Kb, Vb = X, X + 16, X + 32, X + 48
        raw = [Va, Va + 4, Va + 8, Va + 12, Vb, Vb + 4, Vb + 8, Vb + 12]
        U = Ka
        T = Kb
        P = Kb + 4
        MX, TM = Kb + 8, Kb + 9
        g("s_waitcnt vmcnt(44)")
        for j in range(4):
            c = "0" if j == 0 else vq(vS)
            g(f"v_mfma_f32_16x16x32_bf16 {vq(vS)}, {vq(Ka+4*j)}, {vq(vQ+4*j)}, {c}")
        g("s_waitcnt vmcnt(36)")
        for j in range(4):
            c = "0" if j == 0 else vq(vS + 4)
            g(f"v_mfma_f32_16x16x32_bf16 {vq(vS+4)}, {vq(Kb+4*j)}, {vq(vQ+4*j)}, {c}")
        g("s_nop 3")
        g(f"v_cvt_pk_bf16_f32 v{T}, v{vS}, v{vS+1}")
        g(f"v_cvt_pk_bf16_f32 v{T+1}, v{vS+2}, v{vS+3}")
        g(f"v_lshlrev_b32 v{vS}, 16, v{T}")
        g(f"v_and_b32 v{vS+1}, s{sHI}, v{T}")
        g(f"v_lshlrev_b32 v{vS+2}, 16, v{T+1}")
        g(f"v_and_b32 v{vS+3}, s{sHI}, v{T+1}")
        g(f"v_cvt_pk_bf16_f32 v{T+2}, v{vS+4}, v{vS+5}")
        g(f"v_cvt_pk_bf16_f32 v{T+3}, v{vS+6}, v{vS+7}")
        g(f"v_lshlrev_b32 v{vS+4}, 16, v{T+2}")
        g(f"v_and_b32 v{vS+5}, s{sHI}, v{T+2}")
        g(f"v_lshlrev_b32 v{vS+6}, 16, v{T+3}")
        g(f"v_and_b32 v{vS+7}, s{sHI}, v{T+3}")
        for i in range(8):
            g(f"v_mul_f32 v{vS+i}, s{sSCALE}, v{vS+i}")
        for i in range(4):
            g(f"v_cvt_pk_bf16_f32 v{T+i}, v{vS+2*i}, v{vS+2*i+1}")
        for i in range(4):
            g(f"v_lshlrev_b32 v{vS+2*i}, 16, v{T+i}")
            g(f"v_and_b32 v{vS+2*i+1}, s{sHI}, v{T+i}")
        g(f"v_max3_f32 v{MX}, v{vS}, v{vS+1}, v{vS+2}")
        g(f"v_max3_f32 v{TM}, v{vS+3}, v{vS+4}, v{vS+5}")
        g(f"v_max3_f32 v{MX}, v{MX}, v{vS+6}, v{vS+7}")
        g(f"v_max3_f32 v{MX}, v{MX}, v{TM}, v{vM}")
        for sw in ("v_permlane32_swap_b32", "v_permlane16_swap_b32"):
            g(f"v_mov_b32 v{TM}, v{MX}")
            g("s_nop 1")
            g(f"{sw} v{MX}, v{TM}")
            g(f"v_max_f32 v{MX}, v{MX}, v{TM}")
        g(f"v_cmp_gt_f32 vcc, v{MX}, v{vM}")
        g(f"s_cbranch_vccz L_nr{tag}")
        g(f"v_sub_f32 v{TM}, v{vM}, v{MX}")
        g(f"v_mul_f32 v{TM}, s{sLOG2E}, v{TM}")
        g(f"v_exp_f32 v{TM}, v{TM}")
        g(f"v_mov_b32 v{vM}, v{MX}")
        g(f"v_mul_f32 v{vMC}, s{sLOG2E}, v{MX}")
        g(f"v_mul_f32 v{vL}, v{vL}, v{TM}")
        for i in range(32):
            g(f"v_mul_f32 v{vO+i}, v{vO+i}, v{TM}")
        g.label(f"L_nr{tag}")
        for i in range(8):
            g(f"v_fma_f32 v{vS+i}, v{vS+i}, s{sLOG2E}, -v{vMC}")
        for i in range(8):
            g(f"v_exp_f32 v{vS+i}, v{vS+i}")
        g("s_waitcnt vmcnt(32)")
        perms(g, raw, 0, U)
        for i in range(4):
            g(f"v_cvt_pk_bf16_f32 v{P+i}, v{vS+2*i}, v{vS+2*i+1}")
        perms(g, raw, 1, U + 4)
        for e in range(8):
            g(f"v_mfma_f32_16x16x32_bf16 {vq(vO+4*e)}, {vq(U+4*(e%4))}, {vq(P)}, {vq(vO+4*e)}")
            if e + 2 < 8:
                perms(g, raw, e + 2, U + 4 * ((e + 2) % 4))
            else:
                b = 4 * (e - 6)
                g(f"v_add_f32 v{vS+b}, v{vS+b}, v{vS+b+1}")
                g(f"v_add_f32 v{vS+b+2}, v{vS+b+2}, v{vS+b+3}")
                g(f"v_add_f32 v{vS+b}, v{vS+b}, v{vS+b+2}")
                g(f"v_add_f32 v{vL}, v{vL}, v{vS+b}")

    g.L.append(".p2align 3")
    g.label("L_loop")
    tile(SLOT[0], "a")
    g(f"s_cmp_eq_u32 s{sIT}, 5")
    g("s_cbranch_scc1 L_tail")
    kv_issue(SLOT[0], lpace)
    tile(SLOT[1], "b")
    g(f"s_cmp_eq_u32 s{sIT}, 4")
    g("s_cbranch_scc1 L_wo")
    kv_issue(SLOT[1], lpace)
    g.label("L_wo_back")
    tile(SLOT[2], "c")
    g(f"s_add_u32 s{sIT}, s{sIT}, 1")
    g(f"s_cmp_eq_u32 s{sIT}, 5")
    g("s_cbranch_scc1 L_w2")
    kv_issue(SLOT[2], lpace)
    g("s_branch L_loop")

    WO_RAW = SLOT[1]
    W2_RAW = SLOT[2]
    g.label("L_wo")
    g(f"v_bfe_u32 v{vT6}, v0, 4, 1")
    g(f"v_lshlrev_b32 v{vT6}, 16, v{vT6}")
    g(f"v_lshrrev_b32 v{vT7}, 5, v0")
    g(f"v_lshl_add_u32 v{vT6}, v{vT7}, 10, v{vT6}")
    g(f"v_and_b32 v{vT7}, 15, v0")
    g(f"v_lshl_add_u32 v{vT6}, v{vT7}, 4, v{vT6}")
    g(f"s_lshl_b32 s{sT0}, s{sH}, 2")
    g(f"s_lshr_b32 s{sT1}, s{sS}, 1")
    g(f"s_add_u32 s{sT0}, s{sT0}, s{sT1}")
    g(f"s_lshl_b32 s{sT0}, s{sT0}, 17")
    g(f"s_and_b32 s{sT1}, s{sS}, 1")
    g(f"s_lshl_b32 s{sT1}, s{sT1}, 12")
    g(f"s_add_u32 s{sT0}, s{sT0}, s{sT1}")
    g(f"s_lshl_b32 s{sT1}, s{sW}, 8")
    g(f"s_add_u32 s{sT0}, s{sT0}, s{sT1}")
    for t in range(1, 8):
        g(f"s_add_u32 s{28+t}, s{sT0}, {hex(0x2000*t)}")
    for t in range(8):
        so = sT0 if t == 0 else 28 + t
        for step in range(2):
            g(f"buffer_load_dwordx4 {vq(WO_RAW+32*step+4*t)}, v{vT6}, {srd(SWO)}, s{so} offen offset:{2048*step} {wflags}")
    g("s_branch L_wo_back")

    g.label("L_w2")
    g(f"v_lshrrev_b32 v{vT6}, 4, v0")
    g(f"v_lshlrev_b32 v{vT6}, 13, v{vT6}")
    g(f"v_and_b32 v{vT7}, 15, v0")
    g(f"v_lshl_add_u32 v{vT6}, v{vT7}, 4, v{vT6}")
    g(f"s_mul_i32 s{sT0}, s{sH}, 7")
    g(f"s_add_u32 s{sT0}, s{sT0}, s{sS}")
    g(f"s_lshl_b32 s{sT0}, s{sT0}, 15")
    g(f"s_lshl_b32 s{sT1}, s{sW}, 8")
    g(f"s_add_u32 s{sT0}, s{sT0}, s{sT1}")
    g(f"s_cmp_eq_u32 s{sS}, 7")
    g(f"s_cselect_b32 s{sT0}, 0x10000000, s{sT0}")
    g(f"s_add_u32 s{sT1}, s{sT0}, 0x1000")
    g(f"s_mov_b32 s{sT2}, 0x10000000")
    for t in range(8):
        so = sT0 if t < 4 else sT1
        g(f"buffer_load_dwordx4 {vq(W2_RAW+4*t)}, v{vT6}, {srd(SW2)}, s{so} offen offset:{1024*(t%4)} {wflags}")
    for t in range(8):
        g(f"buffer_load_dword v{W2_RAW+32+t}, v{vT6}, {srd(SW2)}, s{sT2} offen")
    g("s_branch L_loop")

    g.label("L_tail")
    g.stamp(3)
    X = SLOT[0]
    TM = X
    vFF = vMC
    g(f"v_mov_b32 v{vFF}, 0xff")
    for sw in ("v_permlane32_swap_b32", "v_permlane16_swap_b32"):
        g(f"v_mov_b32 v{TM}, v{vL}")
        g("s_nop 1")
        g(f"{sw} v{vL}, v{TM}")
        g(f"v_add_f32 v{vL}, v{vL}, v{TM}")
    g(f"v_and_b32 v{vT6}, 3, v0")
    g(f"v_lshrrev_b32 v{vT7}, 4, v0")
    g(f"v_lshlrev_b32 v{vT7}, 4, v{vT7}")
    g(f"v_lshl_add_u32 v{vT7}, v{vT6}, 9, v{vT7}")
    g(f"s_lshl_b32 s{sT0}, s{sW}, 11")
    g(f"v_add_u32 v{vT7}, s{sT0}, v{vT7}")
    g(f"s_lshl_b32 s{sT0}, s{sW}, 2")
    g(f"v_lshl_add_u32 v{vT6}, v{vT6}, 5, s{sT0}")
    g(f"s_mov_b32 s{sMASK}, 0x000f000f")
    g(f"s_mov_b32 s{sMASK+1}, 0x000f000f")
    g(f"s_mov_b64 exec, s[{sMASK}:{sMASK+1}]")
    for e in range(8):
        g(f"ds_write_b128 v{vT7}, {vq(vO+4*e)} offset:{L_PART + 64*e}")
    g(f"ds_write_b32 v{vT6}, v{vM} offset:{L_STAT}")
    g(f"ds_write_b32 v{vT6}, v{vL} offset:{L_STAT+16}")
    g("s_mov_b64 exec, -1")
    g(f"v_and_b32 v{vT6}, 31, v0")
    g(f"s_lshl_b32 s{sT0}, s{sW}, 9")
    g(f"v_lshl_add_u32 v{vT6}, v{vT6}, 4, s{sT0}")
    g(f"s_lshl_b32 s{sT0}, s{sW}, 5")
    g(f"v_mov_b32 v{vT7}, s{sT0}")
    vA1 = vK
    vA2 = vV
    g(f"v_bfe_u32 v{vA1}, v0, 4, 1")
    g(f"v_lshlrev_b32 v{vA1}, 16, v{vA1}")
    g(f"v_and_b32 v{vA2}, 15, v0")
    g(f"v_lshl_add_u32 v{vA1}, v{vA2}, 4, v{vA1}")
    g(f"v_and_b32 v{vA2}, 1, v0")
    g(f"v_lshlrev_b32 v{vA2}, 16, v{vA2}")
    g(f"v_add_u32 v{vA2}, 0x100, v{vA2}")
    g(f"v_cmp_lt_u32 vcc, 31, v0")
    g(f"s_lshl_b32 s{sT0}, s{sB}, 6")
    g(f"s_lshl_b32 s{sT1}, s{sW}, 4")
    g(f"v_cndmask_b32 v{vA1}, v{vA1}, v{vA2}, vcc")
    g(f"s_add_u32 s{sT0}, s{sT0}, s{sT1}")
    g(f"s_add_u32 s{sT0}, s{sT0}, s{sH}")
    g(f"s_lshl_b32 s{sT0}, s{sT0}, 13")
    g(f"s_mul_i32 s{sT1}, s{sS}, {REC}")
    g(f"s_add_u32 s{sT0}, s{sT0}, s{sT1}")
    g(f"s_add_u32 s{sT0}, s{sT0}, {hex(W_IN + IN_H1)}")
    g("s_waitcnt lgkmcnt(0)")
    g("s_barrier")
    PR = X
    SM, SL = X + 16, X + 20
    HV = X + 24
    g(f"ds_read_b128 {vq(SM)}, v{vT7} offset:{L_STAT}")
    g(f"ds_read_b128 {vq(SL)}, v{vT7} offset:{L_STAT+16}")
    for w in range(4):
        g(f"ds_read_b128 {vq(PR+4*w)}, v{vT6} offset:{L_PART + 2048*w}")
    g(f"v_lshrrev_b32 v{vT7}, 4, v0")
    g(f"v_lshlrev_b32 v{vT7}, 4, v{vT7}")
    g(f"ds_read_b128 {vq(HV)}, v{vT7} offset:{L_H}")
    g.stamp(4)
    g("s_waitcnt lgkmcnt(0)")
    MM, LL = X + 28, X + 29
    g(f"v_max3_f32 v{MM}, v{SM}, v{SM+1}, v{SM+2}")
    g(f"v_max_f32 v{MM}, v{MM}, v{SM+3}")
    for w in range(4):
        g(f"v_sub_f32 v{SM+w}, v{SM+w}, v{MM}")
    for w in range(4):
        g(f"v_mul_f32 v{SM+w}, s{sLOG2E}, v{SM+w}")
    for w in range(4):
        g(f"v_exp_f32 v{SM+w}, v{SM+w}")
    g("s_nop 0")
    g(f"v_mul_f32 v{LL}, v{SM}, v{SL}")
    for i in range(4):
        g(f"v_mul_f32 v{PR+i}, v{SM}, v{PR+i}")
    for w in range(1, 4):
        g(f"v_fmac_f32 v{LL}, v{SM+w}, v{SL+w}")
        for i in range(4):
            g(f"v_fmac_f32 v{PR+i}, v{SM+w}, v{PR+4*w+i}")
    g(f"v_cndmask_b32 v{PR}, v{PR}, v{MM}, vcc")
    g(f"v_cndmask_b32 v{PR+1}, v{PR+1}, v{LL}, vcc")
    for i in range(4):
        g(f"v_bfi_b32 v{PR+i}, v{vFF}, s{sTAG}, v{PR+i}")
    g(f"s_mov_b32 s{sMASK}, -1")
    g(f"s_mov_b32 s{sMASK+1}, 3")
    g(f"s_mov_b64 exec, s[{sMASK}:{sMASK+1}]")
    g(f"buffer_store_dwordx4 {vq(PR)}, v{vA1}, {srd(SWS)}, s{sT0} offen sc1")
    g("s_mov_b64 exec, -1")
    vP1, vP2 = vT6, vT7
    g(f"v_and_b32 v{vP2}, 7, v0")
    g(f"v_mul_u32_u24 v{vP2}, {REC}, v{vP2}")
    g(f"v_bfe_u32 v{vP1}, v0, 3, 1")
    g(f"v_lshl_add_u32 v{vP1}, v{vP1}, 7, v{vP2}")
    g(f"v_lshrrev_b32 v{vA2}, 4, v0")
    g(f"v_lshl_add_u32 v{vP1}, v{vA2}, 5, v{vP1}")
    g(f"s_lshl_b32 s{sT3}, s2, 13")
    g(f"s_add_u32 s{sT3}, s{sT3}, {hex(W_IN + IN_H1)}")
    D = X + 32
    ST = X + 40
    def poll1():
        g(f"buffer_load_dwordx4 {vq(D)}, v{vP1}, {srd(SWS)}, s{sT3} offen sc1")
        g(f"buffer_load_dwordx4 {vq(D+4)}, v{vP1}, {srd(SWS)}, s{sT3} offen offset:16 sc1")
        g(f"buffer_load_dwordx2 {vq(ST,2)}, v{vP2}, {srd(SWS)}, s{sT3} offen offset:256 sc1")
    poll1()
    g(f"v_and_b32 v{vA1}, 15, v0")
    g(f"v_lshlrev_b32 v{vA1}, 13, v{vA1}")
    g(f"v_lshl_add_u32 v{vA1}, v{vA2}, 4, v{vA1}")
    g(f"s_lshl_b32 s{sT0}, s{sB}, 2")
    g(f"s_add_u32 s{sT0}, s{sT0}, s{sW}")
    g(f"s_lshl_b32 s{sT0}, s{sT0}, 17")
    g(f"s_lshl_b32 s{sT1}, s{sP}, 5")
    g(f"s_add_u32 s{sT0}, s{sT0}, s{sT1}")
    g(f"s_add_u32 s{sT0}, s{sT0}, {hex(W_IN)}")
    g(f"s_add_u32 s{sT1}, s{sT0}, {IN_Z}")
    g(f"s_add_u32 s{sT0}, s{sT0}, {IN_Y}")
    g(f"s_mov_b32 s{sMASK2}, 0xffff0000")
    g(f"s_mov_b32 s{sMASK2+1}, 0")
    g(f"s_mov_b32 s{sMASK}, -1")
    g(f"s_mov_b32 s{sMASK+1}, 0")
    g("s_waitcnt vmcnt(4)")
    ZT = X + 44
    ZO = X + 56
    gemv_tile(g, [W2_RAW + 4 * t for t in range(8)], HV, vO, ZT, True)
    WT = [W2_RAW + 32, W2_RAW]
    for e in range(2):
        perms(g, [WO_RAW + 4 * t for t in range(8)], e, WT[0] + 4 * e)
    for i in range(4):
        g(f"v_cndmask_b32 v{ZO+i}, v{vO+4*i}, v{vO+16+4*i}, s[{sMASK2}:{sMASK2+1}]")
    for i in range(4):
        g(f"v_bfi_b32 v{ZO+i}, v{vFF}, s{sTAG}, v{ZO+i}")
    g(f"s_mov_b64 exec, s[{sMASK}:{sMASK+1}]")
    g(f"buffer_store_dwordx4 {vq(ZO)}, v{vA1}, {srd(SWS)}, s{sT1} offen sc1")
    g("s_mov_b64 exec, -1")
    for e in range(2, 8):
        perms(g, [WO_RAW + 4 * t for t in range(8)], e, WT[0] + 4 * e)
    for e in range(8):
        perms(g, [WO_RAW + 32 + 4 * t for t in range(8)], e, WT[1] + 4 * e)
    g(f"s_mov_b32 s{sSPIN}, 0")
    g("s_waitcnt vmcnt(1)")
    g("s_branch L_chk1")
    g.label("L_poll1")
    poll1()
    g("s_waitcnt vmcnt(0)")
    g.label("L_chk1")
    C1, C2 = X + 42, X + 43
    tagcheck(g, [D + i for i in range(10)], C1, C2)
    g("s_cbranch_vccz L_got1")
    g(f"s_add_u32 s{sSPIN}, s{sSPIN}, 1")
    g(f"s_cmp_lt_u32 s{sSPIN}, {hex(spin_max)}")
    g("s_cbranch_scc1 L_poll1")
    g.label("L_got1")
    g.stamp(5)
    g(f"v_and_b32 v{ST}, s{sHI}, v{ST}")
    g("s_nop 1")
    g(f"v_max_f32_dpp v{C1}, v{ST}, v{ST} row_ror:1 row_mask:0xf bank_mask:0xf")
    for r in (2, 4):
        g("s_nop 1")
        g(f"v_max_f32_dpp v{C1}, v{C1}, v{C1} row_ror:{r} row_mask:0xf bank_mask:0xf")
    g(f"v_sub_f32 v{C1}, v{ST}, v{C1}")
    g(f"v_mul_f32 v{C1}, s{sLOG2E}, v{C1}")
    g(f"v_exp_f32 v{C1}, v{C1}")
    g("s_nop 0")
    g(f"v_mul_f32 v{C2}, v{C1}, v{ST+1}")
    for i in range(2):
        g(f"v_mul_f32 v{D+i}, v{C1}, v{D+i}")
    g(f"v_add_f32_dpp v{C2}, v{C2}, v{C2} row_ror:1 row_mask:0xf bank_mask:0xf")
    for i in range(2, 4):
        g(f"v_mul_f32 v{D+i}, v{C1}, v{D+i}")
    g(f"v_add_f32_dpp v{C2}, v{C2}, v{C2} row_ror:2 row_mask:0xf bank_mask:0xf")
    for i in range(4, 6):
        g(f"v_mul_f32 v{D+i}, v{C1}, v{D+i}")
    g(f"v_add_f32_dpp v{C2}, v{C2}, v{C2} row_ror:4 row_mask:0xf bank_mask:0xf")
    for i in range(6, 8):
        g(f"v_mul_f32 v{D+i}, v{C1}, v{D+i}")
    g(f"v_rcp_f32 v{C2}, v{C2}")
    for mode in ("quad_perm:[1,0,3,2]", "quad_perm:[2,3,0,1]", "row_half_mirror"):
        for i in range(8):
            g(f"v_add_f32_dpp v{D+i}, v{D+i}, v{D+i} {mode} row_mask:0xf bank_mask:0xf")
    for i in range(8):
        g(f"v_mul_f32 v{D+i}, v{C2}, v{D+i}")
    B0, B1 = X + 44, X + 48
    for i in range(4):
        g(f"v_cvt_pk_bf16_f32 v{B0+i}, v{D+2*i}, v{D+2*i+1}")
    g("s_nop 0")
    for i in range(4):
        g(f"v_mov_b32_dpp v{B1+i}, v{B0+i} row_ror:8 row_mask:0xf bank_mask:0xf")
    for e in range(8):
        g(f"v_mfma_f32_16x16x32_bf16 {vq(vO+4*e)}, {vq(B0)}, {vq(WT[0]+4*e)}, 0")
    for e in range(8):
        g(f"v_mfma_f32_16x16x32_bf16 {vq(vO+4*e)}, {vq(B1)}, {vq(WT[1]+4*e)}, {vq(vO+4*e)}")
    g("s_nop 4")
    YO = X + 52
    for i in range(4):
        g(f"v_cndmask_b32 v{YO+i}, v{vO+4*i}, v{vO+16+4*i}, s[{sMASK2}:{sMASK2+1}]")
    for i in range(4):
        g(f"v_bfi_b32 v{YO+i}, v{vFF}, s{sTAG}, v{YO+i}")
    g(f"s_mov_b64 exec, s[{sMASK}:{sMASK+1}]")
    g(f"buffer_store_dwordx4 {vq(YO)}, v{vA1}, {srd(SWS)}, s{sT0} offen sc1")
    g("s_mov_b64 exec, -1")
    g.stamp(6)
    g("s_branch L_fin")

    g.label("L_helper")
    g("s_setprio 3")
    g.srd_consts(SX, 4096)
    g.srd_consts(SWQ, 512 * 4096 * 2)
    hX = 8
    hF = 12
    hT = 20
    hACC = 32
    RING = [96 + 32 * i for i in range(4)]
    hA = 224
    vW, vX, vTAG = 1, 2, 6
    XR = 64
    XF = 80
    WF = 128
    g(f"v_and_b32 v3, 3, v0")
    g(f"v_lshlrev_b32 v{vX}, 10, v3")
    g(f"v_bfe_u32 v4, v0, 2, 2")
    g(f"v_lshl_add_u32 v{vX}, v4, 6, v{vX}")
    g(f"v_lshrrev_b32 v5, 4, v0")
    g(f"v_lshl_add_u32 v{vX}, v5, 4, v{vX}")
    g(f"v_lshrrev_b32 v{vW}, 1, v0")
    g(f"v_lshlrev_b32 v{vW}, 13, v{vW}")
    g(f"v_and_b32 v7, 1, v0")
    g(f"v_lshl_add_u32 v{vW}, v7, 4, v{vW}")
    sCI = sIT
    g(f"s_lshl_b32 s{sCI}, s{sH}, 5")
    g(f"s_lshr_b32 s{sT1}, s2, 3")
    g(f"s_add_u32 s{sCI}, s{sCI}, s{sT1}")
    g(f"s_lshl_b32 s{sA}, s{sCI}, 5")
    if 'wq' in skip:
        g(f"s_mov_b32 s{sA}, 0x10000000")
    for i in range(1, 4):
        g(f"v_add_u32 v{11+i}, {hex(i*(32*8192 - 1024))}, v{vW}")
    for i in range(1, 4):
        g(f"s_add_u32 s{sT0+i-1}, s{sA}, {hex(i*128*8192)}")
    g(f"v_lshlrev_b32 v7, 2, v3")
    g(f"s_mov_b32 s{sT3}, {hex(W_EP)}")
    g(f"s_mov_b32 m0, {L_WQ}")
    g("s_waitcnt lgkmcnt(0)")
    for j in range(4):
        g(f"buffer_load_dwordx4 {vq(XR+4*j)}, v{vX}, {srd(SX)}, 0 offen offset:{256*j} {xflags}")
    g(f"buffer_load_dword v{vTAG}, v7, {srd(SWS)}, s{sT3} offen {epflags}")
    for q4 in range(4):
        so = sA if q4 == 0 else sT0 + q4 - 1
        for i in range(4):
            vo = vW if i == 0 else 11 + i
            g(f"buffer_load_dwordx4 v{vo}, {srd(SWQ)}, s{so} offen offset:{1024*i} {wflags} lds")
        if q4 < 3:
            g(f"s_add_u32 m0, m0, 4096")
            g("s_nop 0")
    if fine: g.stamp(7)
    if bar0:
        g("s_barrier")
    for (b_, off, nb) in ((SW1, 48, 512 * 1792 * 2), (SB1, 56, 1792 * 2), (SB2, 72, 1024), (SOUT, 80, 4096)):
        g.srd_load(b_, off)
        g.srd_consts(b_, nb)
    g(f"s_lshl_b32 s{sIN}, s2, 13")
    g(f"s_add_u32 s{sIN}, s{sIN}, {hex(W_IN)}")
    vQS = 8
    g(f"v_lshlrev_b32 v{vQS}, 14, v3")
    g(f"v_lshl_add_u32 v{vQS}, v5, 4, v{vQS}")
    g(f"s_lshl_b32 s{sT2}, s{sH}, 11")
    g(f"s_lshl_b32 s{sT1}, s{sCI}, 6")
    g(f"s_lshl_b32 s{sT3}, s{sB}, 14")
    g(f"s_add_u32 s{sT2}, s{sT2}, s{sT3}")
    vTR = 9
    g(f"v_and_b32 v{vTR}, 15, v0")
    g(f"v_lshlrev_b32 v{vTR}, 3, v{vTR}")
    g(f"v_lshl_add_u32 v{vTR}, v5, 8, v{vTR}")
    g(f"s_mov_b32 s{sMASK}, 0x000f000f")
    g(f"s_mov_b32 s{sMASK+1}, 0x000f000f")
    def red4(v, t):
        for r in (4, 8):
            g("s_nop 1")
            g(f"v_add_f32_dpp v{v}, v{v}, v{v} row_ror:{r} row_mask:0xf bank_mask:0xf")
        for sw in ("v_permlane16_swap_b32", "v_permlane32_swap_b32"):
            g(f"v_mov_b32 v{t}, v{v}")
            g("s_nop 1")
            g(f"{sw} v{v}, v{t}")
            g(f"v_add_f32 v{v}, v{v}, v{t}")
    def unpack16():
        for i in range(16):
            g(f"v_lshlrev_b32 v{XF+2*i}, 16, v{XR+i}")
            g(f"v_and_b32 v{XF+2*i+1}, s{sHI}, v{XR+i}")
    def pack16():
        for i in range(16):
            g(f"v_cvt_pk_bf16_f32 v{XR+i}, v{XF+2*i}, v{XF+2*i+1}")
    g("s_waitcnt vmcnt(17)")
    if fine: g.stamp(8)
    unpack16()
    g(f"v_pk_add_f32 {vq(hT,2)}, {vq(XF,2)}, {vq(XF+2,2)}")
    g(f"v_pk_add_f32 {vq(hT+2,2)}, {vq(XF+4,2)}, {vq(XF+6,2)}")
    for i in range(4, 16):
        d = hT + 2 * (i & 1)
        g(f"v_pk_add_f32 {vq(d,2)}, {vq(d,2)}, {vq(XF+2*i,2)}")
    g(f"v_pk_add_f32 {vq(hT,2)}, {vq(hT,2)}, {vq(hT+2,2)}")
    g(f"v_add_f32 v{hT}, v{hT}, v{hT+1}")
    red4(hT, hT + 1)
    g(f"v_mul_f32 v{hT}, {f32(-1.0/512)}, v{hT}")
    g(f"v_mov_b32 v{hT+1}, v{hT}")
    for i in range(16):
        t = hT + 6 + 2 * (i & 1)
        d = hT + 2 + 2 * (i & 1)
        g(f"v_pk_add_f32 {vq(t,2)}, {vq(XF+2*i,2)}, {vq(hT,2)}")
        if i < 2:
            g(f"v_pk_mul_f32 {vq(d,2)}, {vq(t,2)}, {vq(t,2)}")
        else:
            g(f"v_pk_fma_f32 {vq(d,2)}, {vq(t,2)}, {vq(t,2)}, {vq(d,2)}")
    g(f"v_pk_add_f32 {vq(hT+2,2)}, {vq(hT+2,2)}, {vq(hT+4,2)}")
    g(f"v_add_f32 v{hT+2}, v{hT+2}, v{hT+3}")
    rne(g, hT, hT)
    g(f"v_mov_b32 v{hT+1}, v{hT}")
    red4(hT + 2, hT + 3)
    g(f"v_mul_f32 v{hT+2}, {f32(1.0/512)}, v{hT+2}")
    rne(g, hT + 2, hT + 2)
    g(f"v_add_f32 v{hT+2}, {f32(1e-5)}, v{hT+2}")
    rne(g, hT + 2, hT + 2)
    g(f"v_sqrt_f32 v{hT+2}, v{hT+2}")
    for i in range(16):
        g(f"v_pk_add_f32 {vq(XF+2*i,2)}, {vq(XF+2*i,2)}, {vq(hT,2)}")
    rne(g, hT + 2, hT + 2)
    g(f"v_rcp_f32 v{hT+4}, v{hT+2}")
    pack16()
    g(f"v_mov_b32 v{hT+5}, v{hT+4}")
    unpack16()
    for i in range(16):
        g(f"v_pk_mul_f32 {vq(XF+2*i,2)}, {vq(XF+2*i,2)}, {vq(hT+4,2)}")
    pack16()
    g.stamp(1)
    g("s_waitcnt vmcnt(16)")
    g(f"v_add_u32 v{vTAG}, 1, v{vTAG}")
    g(f"v_mov_b32 v{hT+1}, v{vTAG}")
    g(f"v_mov_b32 v{hT+3}, v{vTAG}")
    g(f"v_readlane_b32 s{sTAG}, v{vTAG}, s{sB}")
    g(f"v_lshlrev_b32 v3, 5, v0")
    g(f"v_lshlrev_b32 v4, 4, v0")
    for j in range(4):
        g(f"s_waitcnt vmcnt({12-4*j})")
        for kb in range(4 * j, 4 * j + 4):
            g(f"ds_read_b64_tr_b16 {vq(WF+4*kb,2)}, v{vTR} offset:{L_WQ + 1024*kb}")
            g(f"ds_read_b64_tr_b16 {vq(WF+4*kb+2,2)}, v{vTR} offset:{L_WQ + 1024*kb + 128}")
        if j == 3 and fine: g.stamp(9)
        g("s_waitcnt lgkmcnt(0)")
        for kq in range(4):
            c = "0" if j == 0 else vq(hACC + 4 * kq)
            g(f"v_mfma_f32_16x16x32_bf16 {vq(hACC+4*kq)}, {vq(WF+4*(4*j+kq))}, {vq(XR+4*j)}, {c}")
    g("s_nop 5")
    for kq in range(1, 4):
        for r in range(4):
            g(f"v_add_f32_dpp v{hACC+r}, v{hACC+4*kq+r}, v{hACC+r} row_shl:{4*kq} row_mask:0xf bank_mask:0xf bound_ctrl:0")
    g(f"v_cvt_pk_bf16_f32 v{hT}, v{hACC}, v{hACC+1}")
    g(f"v_cvt_pk_bf16_f32 v{hT+2}, v{hACC+2}, v{hACC+3}")
    g(f"s_mov_b32 s{sSPIN}, 0")
    g(f"s_mov_b64 exec, s[{sMASK}:{sMASK+1}]")
    g(f"buffer_store_dwordx4 {vq(hT)}, v{vQS}, {srd(SWS)}, s{sT1} offen {sflags}")
    g("s_mov_b64 exec, -1")
    if not fine: g.stamp(2)
    g(f"v_and_b32 v5, 3, v0")
    g(f"v_cmp_eq_u32 vcc, s{sB}, v5")
    g(f"v_and_b32 v7, 0x3ff, v{vX}")
    g(f"s_and_saveexec_b64 s[{sMASK}:{sMASK+1}], vcc")
    for j in range(4):
        g(f"ds_write_b128 v7, {vq(XR+4*j)} offset:{L_XN + 256*j}")
    g("s_mov_b64 exec, -1")
    g(f"v_mov_b32 v7, 0")
    g(f"v_mov_b32 v10, s{sTAG}")
    g(f"ds_write_b32 v7, v10 offset:{L_TAG}")
    g(f"v_lshrrev_b32 v{vW}, 2, v0")
    g(f"s_mov_b32 s{sT0}, {8*3584}")
    g(f"v_mul_lo_u32 v{vW}, v{vW}, s{sT0}")
    g(f"v_lshl_add_u32 v{vW}, v5, 4, v{vW}")
    for i in range(1, 4):
        g(f"v_add_u32 v{11+i}, {2*3584*i}, v{vW}")
    g(f"s_mul_i32 s{sA}, s{sH}, 7")
    g(f"s_add_u32 s{sA}, s{sA}, s{sS}")
    g(f"s_lshl_b32 s{sA}, s{sA}, 6")
    g(f"s_cmp_eq_u32 s{sS}, 7")
    g(f"s_cselect_b32 s{sA}, 0x10000000, s{sA}")
    if 'ffn' in skip:
        g(f"s_mov_b32 s{sA}, 0x10000000")
    for i in range(1, 4):
        g(f"s_add_u32 s{8+i}, s{sA}, {128*3584*i}")
    g(f"v_lshlrev_b32 v15, 4, v5")
    g(f"buffer_load_dwordx4 {vq(hX)}, v15, {srd(SB1)}, s{sA} offen")
    for grp in range(4):
        so = sA if grp == 0 else 8 + grp
        for t in range(8):
            vo = vW if t < 2 else 11 + t // 2
            g(f"buffer_load_dwordx4 {vq(RING[grp]+4*t)}, v{vo}, {srd(SW1)}, s{so} offen offset:{3584*(t&1)} {wflags}")
    if fine: g.stamp(10)
    g(f"v_mov_b32 v4, v15")
    vFO = 5
    g(f"v_lshrrev_b32 v{vFO}, 4, v0")
    g(f"v_lshlrev_b32 v{vFO}, 2, v{vFO}")
    g(f"s_lshl_b32 s{sT0}, s{sP}, 4")
    g(f"s_lshl_b32 s{sT1}, s{sB}, 10")
    g(f"s_add_u32 s{sT1}, s{sT1}, s{sT0}")
    g(f"buffer_load_dword v6, v{vFO}, {srd(SX)}, s{sT1} offen")
    g(f"buffer_load_dword v7, v{vFO}, {srd(SB2)}, s{sT0} offen")
    g("s_waitcnt lgkmcnt(0)")
    g(f"v_lshrrev_b32 v{hT}, 4, v0")
    g(f"v_lshlrev_b32 v{hT}, 6, v{hT}")
    g(f"v_add_u32 v{hT}, v{hT}, v4")
    for i in range(4):
        g(f"ds_read_b128 {vq(hA+4*i)}, v{hT} offset:{L_XN + 256*i}")
    g("s_waitcnt lgkmcnt(0)")
    for grp in range(4):
        g(f"s_waitcnt vmcnt({8*(3-grp)+2})")
        gemv_tile(g, [RING[grp] + 4 * t for t in range(8)], hA + 4 * grp, hACC, hT, grp == 0)
    g("s_nop 7")
    for e in range(8):
        g(f"v_add_f32_dpp v{hF+e}, v{hACC+4*e+1}, v{hACC+4*e} row_shl:4 row_mask:0xf bank_mask:0xf bound_ctrl:0")
    for e in range(8):
        g(f"v_add_f32_dpp v{hF+e}, v{hACC+4*e+2}, v{hF+e} row_shl:8 row_mask:0xf bank_mask:0xf bound_ctrl:0")
    for e in range(8):
        g(f"v_add_f32_dpp v{hF+e}, v{hACC+4*e+3}, v{hF+e} row_shl:12 row_mask:0xf bank_mask:0xf bound_ctrl:0")
    def round8():
        for i in range(4):
            g(f"v_cvt_pk_bf16_f32 v{hT+i}, v{hF+2*i}, v{hF+2*i+1}")
        for i in range(4):
            g(f"v_lshlrev_b32 v{hF+2*i}, 16, v{hT+i}")
            g(f"v_and_b32 v{hF+2*i+1}, s{sHI}, v{hT+i}")
    round8()
    for i in range(4):
        g(f"v_lshlrev_b32 v{hT+4}, 16, v{hX+i}")
        g(f"v_and_b32 v{hT+5}, s{sHI}, v{hX+i}")
        g(f"v_add_f32 v{hF+2*i}, v{hF+2*i}, v{hT+4}")
        g(f"v_add_f32 v{hF+2*i+1}, v{hF+2*i+1}, v{hT+5}")
    round8()
    for i in range(8):
        g(f"v_max_f32 v{hF+i}, 0, v{hF+i}")
    for i in range(8):
        g(f"v_mul_f32 v{hF+i}, v{hF+i}, v{hF+i}")
    for i in range(4):
        g(f"v_cvt_pk_bf16_f32 v{hT+i}, v{hF+2*i}, v{hF+2*i+1}")
    g("s_mov_b64 exec, 0xf")
    g(f"ds_write_b128 v4, {vq(hT)} offset:{L_H}")
    g("s_mov_b64 exec, -1")
    if fine: g.stamp(2)
    g(f"v_lshlrev_b32 v2, 4, v0")
    QG = 40
    g.label("L_pollq")
    if qsleep:
        g(f"s_sleep {qsleep}")
    g(f"buffer_load_dwordx4 {vq(QG)}, v3, {srd(SWS)}, s{sT2} offen {pflags}")
    g(f"buffer_load_dwordx4 {vq(QG+4)}, v3, {srd(SWS)}, s{sT2} offen offset:16 {pflags}")
    g("s_waitcnt vmcnt(0)")
    g(f"v_xor_b32 v{QG+1}, s{sTAG}, v{QG+1}")
    g(f"v_xor_b32 v{QG+3}, s{sTAG}, v{QG+3}")
    g(f"v_xor_b32 v{QG+5}, s{sTAG}, v{QG+5}")
    g(f"v_xor_b32 v{QG+7}, s{sTAG}, v{QG+7}")
    g(f"v_or3_b32 v{QG+1}, v{QG+1}, v{QG+3}, v{QG+5}")
    g(f"v_or_b32 v{QG+1}, v{QG+1}, v{QG+7}")
    g(f"v_cmp_ne_u32 vcc, 0, v{QG+1}")
    g("s_cbranch_vccz L_gotq")
    g(f"s_add_u32 s{sSPIN}, s{sSPIN}, 1")
    g(f"s_cmp_lt_u32 s{sSPIN}, {hex(spin_max)}")
    g("s_cbranch_scc1 L_pollq")
    g.label("L_gotq")
    g.stamp(4)
    g(f"v_mov_b32 v{QG+1}, v{QG+2}")
    g(f"v_mov_b32 v{QG+2}, v{QG+4}")
    g(f"v_mov_b32 v{QG+3}, v{QG+6}")
    g(f"ds_write_b128 v2, {vq(QG)} offset:{L_Q}")
    if diag:
        g(f"s_mov_b32 s{sSTAMP+6}, s{sSPIN}")
    g.stamp(5)
    g("s_waitcnt lgkmcnt(0)")
    g("s_barrier")
    g("s_setprio 0")
    g(f"s_add_u32 s{sT2}, s{sIN}, {IN_Z}")
    g(f"s_add_u32 s{sT3}, s{sIN}, {IN_Y}")
    g.stamp(6)
    g("s_waitcnt lgkmcnt(0)")
    g("s_barrier")
    if not fine: g.stamp(7)

    def poll8(tag, so, R):
        g(f"s_mov_b32 s{sSPIN}, 0")
        g.label(f"L_poll{tag}")
        g(f"buffer_load_dwordx4 {vq(R)}, v3, {srd(SWS)}, s{so} offen sc1")
        g(f"buffer_load_dwordx4 {vq(R+4)}, v3, {srd(SWS)}, s{so} offen offset:16 sc1")
        g("s_waitcnt vmcnt(0)")
        tagcheck(g, [R + i for i in range(8)], hT, hT + 1)
        g(f"s_cbranch_vccz L_got{tag}")
        g(f"s_add_u32 s{sSPIN}, s{sSPIN}, 1")
        g(f"s_cmp_lt_u32 s{sSPIN}, {hex(spin_max)}")
        g(f"s_cbranch_scc1 L_poll{tag}")
        g.label(f"L_got{tag}")

    def round2(a, t):
        g(f"v_cvt_pk_bf16_f32 v{t}, v{a}, v{a+1}")
        g(f"v_lshlrev_b32 v{a}, 16, v{t}")
        g(f"v_and_b32 v{a+1}, s{sHI}, v{t}")

    Z, Y = 32, 40
    poll8("z", sT2, Z)
    if not fine: g.stamp(8)
    reduce64x8(g, Z)
    round2(Z, hT)
    g(f"v_lshlrev_b32 v{hT+2}, 16, v7")
    g(f"v_and_b32 v{hT+3}, s{sHI}, v7")
    g(f"v_add_f32 v{Z}, v{Z}, v{hT+2}")
    g(f"v_add_f32 v{Z+1}, v{Z+1}, v{hT+3}")
    round2(Z, hT)
    for i in range(2):
        g(f"v_mul_f32 v{hT+2+i}, {f32(-LOG2E)}, v{Z+i}")
    for i in range(2):
        g(f"v_exp_f32 v{hT+2+i}, v{hT+2+i}")
    g("s_nop 0")
    for i in range(2):
        g(f"v_add_f32 v{hT+2+i}, 1.0, v{hT+2+i}")
    for i in range(2):
        g(f"v_rcp_f32 v{hT+2+i}, v{hT+2+i}")
    g("s_nop 0")
    for i in range(2):
        g(f"v_mul_f32 v{Z+i}, v{Z+i}, v{hT+2+i}")
    round2(Z, hT)
    g(f"v_lshlrev_b32 v{Z+2}, 16, v6")
    g(f"v_and_b32 v{Z+3}, s{sHI}, v6")
    g(f"s_mov_b32 s{sMASK}, 0x00010001")
    g(f"s_mov_b32 s{sMASK+1}, 0x00010001")
    poll8("y", sT3, Y)
    if not fine: g.stamp(9)
    reduce64x8(g, Y)
    round2(Y, hT)
    for i in range(2):
        g(f"v_mul_f32 v{Y+i}, v{Y+i}, v{Z+i}")
    round2(Y, hT)
    for i in range(2):
        g(f"v_add_f32 v{Y+i}, v{Y+i}, v{Z+2+i}")
    g(f"v_cvt_pk_bf16_f32 v{hT}, v{Y}, v{Y+1}")
    g(f"s_mov_b64 exec, s[{sMASK}:{sMASK+1}]")
    g(f"buffer_store_dword v{hT}, v{vFO}, {srd(SOUT)}, s{sT1} offen")
    g(f"s_cmp_lg_u32 s{sP}, 0")
    g("s_cbranch_scc1 L_noep")
    g(f"s_lshl_b32 s{sT0}, s{sB}, 2")
    g(f"s_add_u32 s{sT0}, s{sT0}, {hex(W_EP)}")
    g("s_mov_b64 exec, 1")
    g(f"v_mov_b32 v10, s{sTAG}")
    g(f"buffer_store_dword v10, v3, {srd(SWS)}, s{sT0} offen sc1")
    g.label("L_noep")
    g("s_mov_b64 exec, -1")
    if not fine: g.stamp(10)

    g.label("L_fin")
    if diag:
        g("s_waitcnt vmcnt(0)")
        g.stamp(11)
        g("s_waitcnt lgkmcnt(0)")
        g(f"s_mul_i32 s{sT0}, s2, 5")
        g(f"s_add_u32 s{sT0}, s{sT0}, s{sWAVE}")
        g(f"s_lshl_b32 s{sT0}, s{sT0}, 6")
        g(f"s_add_u32 s{sT0}, s{sT0}, {hex(W_DIAG)}")
        for i in range(12):
            g(f"v_mov_b32 v{8+i}, s{sSTAMP+2*i}")
        g(f"v_mov_b32 v20, s{sSPIN}")
        g("s_getreg_b32 s3, hwreg(HW_REG_XCC_ID)")
        g("v_mov_b32 v21, s3")
        g("v_mov_b32 v22, 0")
        g("v_mov_b32 v23, 0")
        g("v_mov_b32 v1, 0")
        g("s_mov_b64 exec, 1")
        for i in range(4):
            g(f"buffer_store_dwordx4 {vq(8+4*i)}, v1, {srd(SWS)}, s{sT0} offen offset:{16*i}")
    g.label("L_end")
    g("s_endpgm")
    out += g.L
    out += ['.section .rodata,"a"', ".p2align 6", f".amdhsa_kernel {NAME}_kernel",
            "  .amdhsa_next_free_vgpr 256", "  .amdhsa_next_free_sgpr 102", "  .amdhsa_accum_offset 256",
            "  .amdhsa_group_segment_fixed_size 0", "  .amdhsa_kernarg_size 104", "  .amdhsa_user_sgpr_count 2",
            "  .amdhsa_user_sgpr_kernarg_segment_ptr 1", "  .amdhsa_system_sgpr_workgroup_id_x 1",
            "  .amdhsa_float_denorm_mode_32 3",
            ".end_amdhsa_kernel"]
    return "\n".join(out) + "\n"


if __name__ == "__main__":
    kw = eval("dict(%s)" % (sys.argv[2] if len(sys.argv) > 2 else ""))
    open(sys.argv[1], "w").write(gen(**kw))
```

```python
import sys, struct

NAME = "recurrent_scan__gqa_block_cached__dense_activation_squared_relu__decode"

HEADER = """; Kernarg layout for this problem (104 bytes, ptrs only, base s[0:1]):
;   offset  24: d_in[3] A_wq  shape=(512, 4096) dtype=bfloat16
"""

def f32(x):
    return "0x%08x" % struct.unpack("<I", struct.pack("<f", x))[0]

LOG2E = 1.4426950408889634
SCALE = 128 ** -0.5

L_Q, L_XN, L_H, L_STAT, L_PART, L_WQ, L_SIZE = 0, 1024, 2048, 2176, 4096, 12288, 28672
L_TAG = 2112
W_Q = 0
W_IN = 0x10000
IN_H1, IN_Y, IN_Z = 0, 3072, 5120
REC = 320
W_EP = 0x220000
W_DIAG = 0x280000
W_SIZE = 0x400000

SK, SV, SWS, SWO, SW2, SX, SWQ, SW1, SB1, SB2, SOUT, SDBG = 8, 12, 16, 20, 24, 28, 32, 36, 40, 44, 48, 52
sWAVE, sB, sH, sS, sP = 3, 4, 5, 6, 7
sSELLO, sSELHI, sSCALE, sLOG2E, sA, sBo, sIT = 56, 57, 58, 59, 60, 61, 62
sT0, sT1, sT2, sT3 = 63, 64, 65, 66
sMASK = 68
sMASK2 = 70
sSPIN = 72
sHI = 73
sW = 74
sTAG = 75
sIN = 67
sSTAMP = 76


class G:
    def __init__(self, diag=False):
        self.L = []
        self.diag = diag
        self.nstamp = {}

    def __call__(self, s):
        self.L.append("  " + s)

    def label(self, s):
        self.L.append(s + ":")

    def comment(self, s):
        self.L.append("  ; " + s)

    def stamp(self, i):
        if self.diag:
            self(f"s_memrealtime s[{sSTAMP+2*i}:{sSTAMP+2*i+1}]")

    def srd_consts(self, base, nbytes):
        self(f"s_mov_b32 s{base+2}, {hex(nbytes)}")
        self(f"s_mov_b32 s{base+3}, 0x20000")

    def srd_load(self, base, off):
        self(f"s_load_dwordx2 s[{base}:{base+1}], s[0:1], {off}")


def srd(b):
    return f"s[{b}:{b+3}]"


def vq(r, n=4):
    return f"v[{r}:{r+n-1}]"


def perms(g, raw, e, dst):
    sel = sSELHI if (e & 1) else sSELLO
    for j in range(4):
        g(f"v_perm_b32 v{dst+j}, v{raw[2*j+1] + (e >> 1)}, v{raw[2*j] + (e >> 1)}, s{sel}")


def gemv_tile(g, raw, vec, acc, tmp, first, wside_a=False):
    nq = 3
    perms(g, raw, 0, tmp)
    perms(g, raw, 1, tmp + 4)
    for e in range(8):
        t = tmp + 4 * (e % nq)
        if e + 2 < 8:
            perms(g, raw, e + 2, tmp + 4 * ((e + 2) % nq))
        c = "0" if first else vq(acc + 4 * e)
        if wside_a:
            g(f"v_mfma_f32_16x16x32_bf16 {vq(acc+4*e)}, {vq(t)}, {vq(vec)}, {c}")
        else:
            g(f"v_mfma_f32_16x16x32_bf16 {vq(acc+4*e)}, {vq(vec)}, {vq(t)}, {c}")


def rne(g, dst, src):
    g(f"v_cvt_pk_bf16_f32 v{dst}, v{src}, v{src}")
    g(f"v_lshlrev_b32 v{dst}, 16, v{dst}")


def wave_sum(g, v, t):
    for r in (8, 4, 2, 1):
        g("s_nop 1")
        g(f"v_add_f32_dpp v{v}, v{v}, v{v} row_ror:{r} row_mask:0xf bank_mask:0xf")
    for sw in ("v_permlane16_swap_b32", "v_permlane32_swap_b32"):
        g(f"v_mov_b32 v{t}, v{v}")
        g("s_nop 1")
        g(f"{sw} v{v}, v{t}")
        g(f"v_add_f32 v{v}, v{v}, v{t}")


def tagcheck(g, regs, c1, c2):
    def tree(op3, op2, dst):
        r = list(regs)
        g(f"{op3} v{dst}, v{r[0]}, v{r[1]}, v{r[2]}" + (" bitop3:0x80" if "bitop" in op3 else ""))
        r = r[3:]
        while len(r) >= 2:
            g(f"{op3} v{dst}, v{dst}, v{r[0]}, v{r[1]}" + (" bitop3:0x80" if "bitop" in op3 else ""))
            r = r[2:]
        if r:
            g(f"{op2} v{dst}, v{dst}, v{r[0]}")
    tree("v_bitop3_b32", "v_and_b32", c1)
    tree("v_or3_b32", "v_or_b32", c2)
    g(f"v_bitop3_b32 v{c1}, v{c1}, v{c2}, s{sTAG} bitop3:0x7e")
    g(f"v_and_b32 v{c1}, 0xff, v{c1}")
    g(f"v_cmp_ne_u32 vcc, 0, v{c1}")


def reduce64x8(g, a):
    for i in range(4):
        g(f"v_permlane32_swap_b32 v{a+i}, v{a+4+i}")
    for i in range(4):
        g(f"v_add_f32 v{a+i}, v{a+i}, v{a+4+i}")
    g("s_nop 0")
    for i in range(2):
        g(f"v_permlane16_swap_b32 v{a+i}, v{a+2+i}")
    for i in range(2):
        g(f"v_add_f32 v{a+i}, v{a+i}, v{a+2+i}")
    for r in (8, 4, 2, 1):
        g("s_nop 0")
        for i in range(2):
            g(f"v_add_f32_dpp v{a+i}, v{a+i}, v{a+i} row_ror:{r} row_mask:0xf bank_mask:0xf")


def gen(diag=False, kvflags="nt", wflags="nt", pace=6, spin_max=1 << 20, delay=0, lpace=None, fine=False, skip=(), epflags="sc1", pflags="sc1", sflags="sc1", xflags="", qsleep=0, bar0=False, probe=None):
    g = G(diag or probe is not None)
    out = [HEADER + f"; @launch grid=(256,1,1) block=(320,1,1) lds={L_SIZE}",
           '.amdgcn_target "amdgcn-amd-amdhsa--gfx950"', ".text", f".globl {NAME}_kernel", ".p2align 8",
           f".type {NAME}_kernel,@function", f"{NAME}_kernel:"]
    g("s_cmp_ge_u32 s2, 256")
    g("s_cbranch_scc1 L_end")
    g.srd_load(SK, 8)
    g.srd_load(SV, 16)
    g.srd_load(SX, 0)
    g.srd_load(SWQ, 24)
    g.srd_load(SWS, 96)
    g.srd_consts(SWS, W_SIZE)
    g.stamp(0)
    g("v_lshrrev_b32 v1, 6, v0")
    g("v_and_b32 v0, 63, v0")
    g(f"s_lshr_b32 s{sB}, s2, 6")
    g(f"v_readfirstlane_b32 s{sWAVE}, v1")
    g(f"s_and_b32 s{sH}, s2, 7")
    g(f"s_bfe_u32 s{sS}, s2, 0x30003")
    g(f"s_and_b32 s{sP}, s2, 63")
    g(f"s_mov_b32 s{sSELLO}, 0x05040100")
    g(f"s_mov_b32 s{sSELHI}, 0x07060302")
    g(f"s_mov_b32 s{sHI}, 0xffff0000")
    g(f"s_mov_b32 s{sLOG2E}, {f32(LOG2E)}")
    g(f"s_cmp_eq_u32 s{sWAVE}, 0")
    g("s_cbranch_scc1 L_helper")

    vK, vV, vM, vL, vMC, vT6, vT7 = 1, 2, 3, 4, 5, 6, 7
    vS, vQ, vO = 8, 16, 32
    SLOT = [64, 128, 192]
    g.srd_consts(SK, 0x8000000)
    g.srd_consts(SV, 0x8000000)
    g(f"s_sub_u32 s{sW}, s{sWAVE}, 1")
    g(f"s_lshl_b32 s{sA}, s{sB}, 3")
    g(f"s_add_u32 s{sA}, s{sA}, s{sH}")
    g(f"s_lshl_b32 s{sA}, s{sA}, 3")
    g(f"s_add_u32 s{sA}, s{sA}, s{sS}")
    g(f"s_lshl_b32 s{sA}, s{sA}, 7")
    g(f"s_add_u32 s{sA}, s{sA}, s{sW}")
    g(f"s_lshl_b32 s{sA}, s{sA}, 12")
    g(f"s_add_u32 s{sBo}, s{sA}, 0x4000")
    g(f"v_and_b32 v{vT6}, 3, v0")
    g(f"v_lshlrev_b32 v{vK}, 10, v{vT6}")
    g(f"v_bfe_u32 v{vT6}, v0, 2, 2")
    g(f"v_lshl_add_u32 v{vK}, v{vT6}, 8, v{vK}")
    g(f"v_lshrrev_b32 v{vT6}, 4, v0")
    g(f"v_lshl_add_u32 v{vK}, v{vT6}, 4, v{vK}")
    g(f"v_lshlrev_b32 v{vV}, 4, v0")
    g("s_waitcnt lgkmcnt(0)")
    for _ in range(delay):
        g("s_sleep 16")
    if bar0:
        g("s_barrier")

    def kv_issue(X, paced=None):
        for (base, voff, rs, so, step) in ((X, vK, SK, sA, 64), (X + 16, vV, SV, sA, 1024),
                                           (X + 32, vK, SK, sBo, 64), (X + 48, vV, SV, sBo, 1024)):
            for j in range(4):
                g(f"buffer_load_dwordx4 {vq(base+4*j)}, v{voff}, {srd(rs)}, s{so} offen offset:{j*step} {kvflags}")
                if paced is not None:
                    g(f"s_waitcnt vmcnt({paced})")
        g(f"s_add_u32 s{sA}, s{sA}, 0x8000")
        g(f"s_add_u32 s{sBo}, s{sBo}, 0x8000")

    kv_issue(SLOT[0], pace)
    g.srd_load(SWO, 32)
    g.srd_load(SW2, 64)
    g.srd_consts(SWO, 4096 * 512 * 2)
    g.srd_consts(SW2, 1792 * 512 * 2)
    g(f"s_mov_b32 s{sSCALE}, {f32(SCALE)}")
    g(f"s_mov_b32 s{sIT}, 0")
    for i in range(32):
        g(f"v_mov_b32 v{vO+i}, 0")
    g(f"v_mov_b32 v{vM}, 0xff800000")
    g(f"v_mov_b32 v{vL}, 0")
    g(f"v_mov_b32 v{vMC}, 0")
    g(f"v_and_b32 v{vT7}, 3, v0")
    g(f"v_lshlrev_b32 v{vT7}, 8, v{vT7}")
    g(f"v_lshl_add_u32 v{vT7}, v{vT6}, 4, v{vT7}")
    kv_issue(SLOT[1], pace)
    kv_issue(SLOT[2], pace)
    g.stamp(1)
    g("s_waitcnt lgkmcnt(0)")
    g("s_barrier")
    for j in range(4):
        g(f"ds_read_b128 {vq(vQ+4*j)}, v{vT7} offset:{L_Q + 64*j}")
    g(f"ds_read_b32 v{vT6}, v{vL} offset:{L_TAG}")
    g.stamp(2)
    g("s_waitcnt lgkmcnt(0)")
    g(f"v_readfirstlane_b32 s{sTAG}, v{vT6}")

    def tile(X, tag):
        Ka, Va, Kb, Vb = X, X + 16, X + 32, X + 48
        raw = [Va, Va + 4, Va + 8, Va + 12, Vb, Vb + 4, Vb + 8, Vb + 12]
        U = Ka
        T = Kb
        P = Kb + 4
        MX, TM = Kb + 8, Kb + 9
        g("s_waitcnt vmcnt(44)")
        for j in range(4):
            c = "0" if j == 0 else vq(vS)
            g(f"v_mfma_f32_16x16x32_bf16 {vq(vS)}, {vq(Ka+4*j)}, {vq(vQ+4*j)}, {c}")
        g("s_waitcnt vmcnt(36)")
        for j in range(4):
            c = "0" if j == 0 else vq(vS + 4)
            g(f"v_mfma_f32_16x16x32_bf16 {vq(vS+4)}, {vq(Kb+4*j)}, {vq(vQ+4*j)}, {c}")
        g("s_nop 3")
        g(f"v_cvt_pk_bf16_f32 v{T}, v{vS}, v{vS+1}")
        g(f"v_cvt_pk_bf16_f32 v{T+1}, v{vS+2}, v{vS+3}")
        g(f"v_lshlrev_b32 v{vS}, 16, v{T}")
        g(f"v_and_b32 v{vS+1}, s{sHI}, v{T}")
        g(f"v_lshlrev_b32 v{vS+2}, 16, v{T+1}")
        g(f"v_and_b32 v{vS+3}, s{sHI}, v{T+1}")
        g(f"v_cvt_pk_bf16_f32 v{T+2}, v{vS+4}, v{vS+5}")
        g(f"v_cvt_pk_bf16_f32 v{T+3}, v{vS+6}, v{vS+7}")
        g(f"v_lshlrev_b32 v{vS+4}, 16, v{T+2}")
        g(f"v_and_b32 v{vS+5}, s{sHI}, v{T+2}")
        g(f"v_lshlrev_b32 v{vS+6}, 16, v{T+3}")
        g(f"v_and_b32 v{vS+7}, s{sHI}, v{T+3}")
        for i in range(8):
            g(f"v_mul_f32 v{vS+i}, s{sSCALE}, v{vS+i}")
        for i in range(4):
            g(f"v_cvt_pk_bf16_f32 v{T+i}, v{vS+2*i}, v{vS+2*i+1}")
        for i in range(4):
            g(f"v_lshlrev_b32 v{vS+2*i}, 16, v{T+i}")
            g(f"v_and_b32 v{vS+2*i+1}, s{sHI}, v{T+i}")
        g(f"v_max3_f32 v{MX}, v{vS}, v{vS+1}, v{vS+2}")
        g(f"v_max3_f32 v{TM}, v{vS+3}, v{vS+4}, v{vS+5}")
        g(f"v_max3_f32 v{MX}, v{MX}, v{vS+6}, v{vS+7}")
        g(f"v_max3_f32 v{MX}, v{MX}, v{TM}, v{vM}")
        for sw in ("v_permlane32_swap_b32", "v_permlane16_swap_b32"):
            g(f"v_mov_b32 v{TM}, v{MX}")
            g("s_nop 1")
            g(f"{sw} v{MX}, v{TM}")
            g(f"v_max_f32 v{MX}, v{MX}, v{TM}")
        g(f"v_cmp_gt_f32 vcc, v{MX}, v{vM}")
        g(f"s_cbranch_vccz L_nr{tag}")
        g(f"v_sub_f32 v{TM}, v{vM}, v{MX}")
        g(f"v_mul_f32 v{TM}, s{sLOG2E}, v{TM}")
        g(f"v_exp_f32 v{TM}, v{TM}")
        g(f"v_mov_b32 v{vM}, v{MX}")
        g(f"v_mul_f32 v{vMC}, s{sLOG2E}, v{MX}")
        g(f"v_mul_f32 v{vL}, v{vL}, v{TM}")
        for i in range(32):
            g(f"v_mul_f32 v{vO+i}, v{vO+i}, v{TM}")
        g.label(f"L_nr{tag}")
        for i in range(8):
            g(f"v_fma_f32 v{vS+i}, v{vS+i}, s{sLOG2E}, -v{vMC}")
        for i in range(8):
            g(f"v_exp_f32 v{vS+i}, v{vS+i}")
        g("s_waitcnt vmcnt(32)")
        perms(g, raw, 0, U)
        for i in range(4):
            g(f"v_cvt_pk_bf16_f32 v{P+i}, v{vS+2*i}, v{vS+2*i+1}")
        perms(g, raw, 1, U + 4)
        for e in range(8):
            g(f"v_mfma_f32_16x16x32_bf16 {vq(vO+4*e)}, {vq(U+4*(e%4))}, {vq(P)}, {vq(vO+4*e)}")
            if e + 2 < 8:
                perms(g, raw, e + 2, U + 4 * ((e + 2) % 4))
            else:
                b = 4 * (e - 6)
                g(f"v_add_f32 v{vS+b}, v{vS+b}, v{vS+b+1}")
                g(f"v_add_f32 v{vS+b+2}, v{vS+b+2}, v{vS+b+3}")
                g(f"v_add_f32 v{vS+b}, v{vS+b}, v{vS+b+2}")
                g(f"v_add_f32 v{vL}, v{vL}, v{vS+b}")

    g.L.append(".p2align 3")
    g.label("L_loop")
    tile(SLOT[0], "a")
    g(f"s_cmp_eq_u32 s{sIT}, 5")
    g("s_cbranch_scc1 L_tail")
    kv_issue(SLOT[0], lpace)
    tile(SLOT[1], "b")
    g(f"s_cmp_eq_u32 s{sIT}, 4")
    g("s_cbranch_scc1 L_wo")
    kv_issue(SLOT[1], lpace)
    g.label("L_wo_back")
    tile(SLOT[2], "c")
    g(f"s_add_u32 s{sIT}, s{sIT}, 1")
    g(f"s_cmp_eq_u32 s{sIT}, 5")
    g("s_cbranch_scc1 L_w2")
    kv_issue(SLOT[2], lpace)
    g("s_branch L_loop")

    WO_RAW = SLOT[1]
    W2_RAW = SLOT[2]
    g.label("L_wo")
    g(f"v_bfe_u32 v{vT6}, v0, 4, 1")
    g(f"v_lshlrev_b32 v{vT6}, 16, v{vT6}")
    g(f"v_lshrrev_b32 v{vT7}, 5, v0")
    g(f"v_lshl_add_u32 v{vT6}, v{vT7}, 10, v{vT6}")
    g(f"v_and_b32 v{vT7}, 15, v0")
    g(f"v_lshl_add_u32 v{vT6}, v{vT7}, 4, v{vT6}")
    g(f"s_lshl_b32 s{sT0}, s{sH}, 2")
    g(f"s_lshr_b32 s{sT1}, s{sS}, 1")
    g(f"s_add_u32 s{sT0}, s{sT0}, s{sT1}")
    g(f"s_lshl_b32 s{sT0}, s{sT0}, 17")
    g(f"s_and_b32 s{sT1}, s{sS}, 1")
    g(f"s_lshl_b32 s{sT1}, s{sT1}, 12")
    g(f"s_add_u32 s{sT0}, s{sT0}, s{sT1}")
    g(f"s_lshl_b32 s{sT1}, s{sW}, 8")
    g(f"s_add_u32 s{sT0}, s{sT0}, s{sT1}")
    for t in range(1, 8):
        g(f"s_add_u32 s{28+t}, s{sT0}, {hex(0x2000*t)}")
    for t in range(8):
        so = sT0 if t == 0 else 28 + t
        for step in range(2):
            g(f"buffer_load_dwordx4 {vq(WO_RAW+32*step+4*t)}, v{vT6}, {srd(SWO)}, s{so} offen offset:{2048*step} {wflags}")
    g("s_branch L_wo_back")

    g.label("L_w2")
    g(f"v_lshrrev_b32 v{vT6}, 4, v0")
    g(f"v_lshlrev_b32 v{vT6}, 13, v{vT6}")
    g(f"v_and_b32 v{vT7}, 15, v0")
    g(f"v_lshl_add_u32 v{vT6}, v{vT7}, 4, v{vT6}")
    g(f"s_mul_i32 s{sT0}, s{sH}, 7")
    g(f"s_add_u32 s{sT0}, s{sT0}, s{sS}")
    g(f"s_lshl_b32 s{sT0}, s{sT0}, 15")
    g(f"s_lshl_b32 s{sT1}, s{sW}, 8")
    g(f"s_add_u32 s{sT0}, s{sT0}, s{sT1}")
    g(f"s_cmp_eq_u32 s{sS}, 7")
    g(f"s_cselect_b32 s{sT0}, 0x10000000, s{sT0}")
    g(f"s_add_u32 s{sT1}, s{sT0}, 0x1000")
    g(f"s_mov_b32 s{sT2}, 0x10000000")
    for t in range(8):
        so = sT0 if t < 4 else sT1
        g(f"buffer_load_dwordx4 {vq(W2_RAW+4*t)}, v{vT6}, {srd(SW2)}, s{so} offen offset:{1024*(t%4)} {wflags}")
    for t in range(8):
        g(f"buffer_load_dword v{W2_RAW+32+t}, v{vT6}, {srd(SW2)}, s{sT2} offen")
    g("s_branch L_loop")

    g.label("L_tail")
    g.stamp(3)
    X = SLOT[0]
    TM = X
    vFF = vMC
    g(f"v_mov_b32 v{vFF}, 0xff")
    for sw in ("v_permlane32_swap_b32", "v_permlane16_swap_b32"):
        g(f"v_mov_b32 v{TM}, v{vL}")
        g("s_nop 1")
        g(f"{sw} v{vL}, v{TM}")
        g(f"v_add_f32 v{vL}, v{vL}, v{TM}")
    g(f"v_and_b32 v{vT6}, 3, v0")
    g(f"v_lshrrev_b32 v{vT7}, 4, v0")
    g(f"v_lshlrev_b32 v{vT7}, 4, v{vT7}")
    g(f"v_lshl_add_u32 v{vT7}, v{vT6}, 9, v{vT7}")
    g(f"s_lshl_b32 s{sT0}, s{sW}, 11")
    g(f"v_add_u32 v{vT7}, s{sT0}, v{vT7}")
    g(f"s_lshl_b32 s{sT0}, s{sW}, 2")
    g(f"v_lshl_add_u32 v{vT6}, v{vT6}, 5, s{sT0}")
    g(f"s_mov_b32 s{sMASK}, 0x000f000f")
    g(f"s_mov_b32 s{sMASK+1}, 0x000f000f")
    g(f"s_mov_b64 exec, s[{sMASK}:{sMASK+1}]")
    for e in range(8):
        g(f"ds_write_b128 v{vT7}, {vq(vO+4*e)} offset:{L_PART + 64*e}")
    g(f"ds_write_b32 v{vT6}, v{vM} offset:{L_STAT}")
    g(f"ds_write_b32 v{vT6}, v{vL} offset:{L_STAT+16}")
    g("s_mov_b64 exec, -1")
    g(f"v_and_b32 v{vT6}, 31, v0")
    g(f"s_lshl_b32 s{sT0}, s{sW}, 9")
    g(f"v_lshl_add_u32 v{vT6}, v{vT6}, 4, s{sT0}")
    g(f"s_lshl_b32 s{sT0}, s{sW}, 5")
    g(f"v_mov_b32 v{vT7}, s{sT0}")
    vA1 = vK
    vA2 = vV
    g(f"v_bfe_u32 v{vA1}, v0, 4, 1")
    g(f"v_lshlrev_b32 v{vA1}, 16, v{vA1}")
    g(f"v_and_b32 v{vA2}, 15, v0")
    g(f"v_lshl_add_u32 v{vA1}, v{vA2}, 4, v{vA1}")
    g(f"v_and_b32 v{vA2}, 1, v0")
    g(f"v_lshlrev_b32 v{vA2}, 16, v{vA2}")
    g(f"v_add_u32 v{vA2}, 0x100, v{vA2}")
    g(f"v_cmp_lt_u32 vcc, 31, v0")
    g(f"s_lshl_b32 s{sT0}, s{sB}, 6")
    g(f"s_lshl_b32 s{sT1}, s{sW}, 4")
    g(f"v_cndmask_b32 v{vA1}, v{vA1}, v{vA2}, vcc")
    g(f"s_add_u32 s{sT0}, s{sT0}, s{sT1}")
    g(f"s_add_u32 s{sT0}, s{sT0}, s{sH}")
    g(f"s_lshl_b32 s{sT0}, s{sT0}, 13")
    g(f"s_mul_i32 s{sT1}, s{sS}, {REC}")
    g(f"s_add_u32 s{sT0}, s{sT0}, s{sT1}")
    g(f"s_add_u32 s{sT0}, s{sT0}, {hex(W_IN + IN_H1)}")
    g("s_waitcnt lgkmcnt(0)")
    g("s_barrier")
    PR = X
    SM, SL = X + 16, X + 20
    HV = X + 24
    g(f"ds_read_b128 {vq(SM)}, v{vT7} offset:{L_STAT}")
    g(f"ds_read_b128 {vq(SL)}, v{vT7} offset:{L_STAT+16}")
    for w in range(4):
        g(f"ds_read_b128 {vq(PR+4*w)}, v{vT6} offset:{L_PART + 2048*w}")
    g(f"v_lshrrev_b32 v{vT7}, 4, v0")
    g(f"v_lshlrev_b32 v{vT7}, 4, v{vT7}")
    g(f"ds_read_b128 {vq(HV)}, v{vT7} offset:{L_H}")
    g.stamp(4)
    g("s_waitcnt lgkmcnt(0)")
    MM, LL = X + 28, X + 29
    g(f"v_max3_f32 v{MM}, v{SM}, v{SM+1}, v{SM+2}")
    g(f"v_max_f32 v{MM}, v{MM}, v{SM+3}")
    for w in range(4):
        g(f"v_sub_f32 v{SM+w}, v{SM+w}, v{MM}")
    for w in range(4):
        g(f"v_mul_f32 v{SM+w}, s{sLOG2E}, v{SM+w}")
    for w in range(4):
        g(f"v_exp_f32 v{SM+w}, v{SM+w}")
    g("s_nop 0")
    g(f"v_mul_f32 v{LL}, v{SM}, v{SL}")
    for i in range(4):
        g(f"v_mul_f32 v{PR+i}, v{SM}, v{PR+i}")
    for w in range(1, 4):
        g(f"v_fmac_f32 v{LL}, v{SM+w}, v{SL+w}")
        for i in range(4):
            g(f"v_fmac_f32 v{PR+i}, v{SM+w}, v{PR+4*w+i}")
    g(f"v_cndmask_b32 v{PR}, v{PR}, v{MM}, vcc")
    g(f"v_cndmask_b32 v{PR+1}, v{PR+1}, v{LL}, vcc")
    for i in range(4):
        g(f"v_bfi_b32 v{PR+i}, v{vFF}, s{sTAG}, v{PR+i}")
    g(f"s_mov_b32 s{sMASK}, -1")
    g(f"s_mov_b32 s{sMASK+1}, 3")
    g(f"s_mov_b64 exec, s[{sMASK}:{sMASK+1}]")
    g(f"buffer_store_dwordx4 {vq(PR)}, v{vA1}, {srd(SWS)}, s{sT0} offen sc1")
    g("s_mov_b64 exec, -1")
    vP1, vP2 = vT6, vT7
    g(f"v_and_b32 v{vP2}, 7, v0")
    g(f"v_mul_u32_u24 v{vP2}, {REC}, v{vP2}")
    g(f"v_bfe_u32 v{vP1}, v0, 3, 1")
    g(f"v_lshl_add_u32 v{vP1}, v{vP1}, 7, v{vP2}")
    g(f"v_lshrrev_b32 v{vA2}, 4, v0")
    g(f"v_lshl_add_u32 v{vP1}, v{vA2}, 5, v{vP1}")
    g(f"s_lshl_b32 s{sT3}, s2, 13")
    g(f"s_add_u32 s{sT3}, s{sT3}, {hex(W_IN + IN_H1)}")
    D = X + 32
    ST = X + 40
    def poll1():
        g(f"buffer_load_dwordx4 {vq(D)}, v{vP1}, {srd(SWS)}, s{sT3} offen sc1")
        g(f"buffer_load_dwordx4 {vq(D+4)}, v{vP1}, {srd(SWS)}, s{sT3} offen offset:16 sc1")
        g(f"buffer_load_dwordx2 {vq(ST,2)}, v{vP2}, {srd(SWS)}, s{sT3} offen offset:256 sc1")
    poll1()
    g(f"v_and_b32 v{vA1}, 15, v0")
    g(f"v_lshlrev_b32 v{vA1}, 13, v{vA1}")
    g(f"v_lshl_add_u32 v{vA1}, v{vA2}, 4, v{vA1}")
    g(f"s_lshl_b32 s{sT0}, s{sB}, 2")
    g(f"s_add_u32 s{sT0}, s{sT0}, s{sW}")
    g(f"s_lshl_b32 s{sT0}, s{sT0}, 17")
    g(f"s_lshl_b32 s{sT1}, s{sP}, 5")
    g(f"s_add_u32 s{sT0}, s{sT0}, s{sT1}")
    g(f"s_add_u32 s{sT0}, s{sT0}, {hex(W_IN)}")
    g(f"s_add_u32 s{sT1}, s{sT0}, {IN_Z}")
    g(f"s_add_u32 s{sT0}, s{sT0}, {IN_Y}")
    g(f"s_mov_b32 s{sMASK2}, 0xffff0000")
    g(f"s_mov_b32 s{sMASK2+1}, 0")
    g(f"s_mov_b32 s{sMASK}, -1")
    g(f"s_mov_b32 s{sMASK+1}, 0")
    g("s_waitcnt vmcnt(4)")
    ZT = X + 44
    ZO = X + 56
    gemv_tile(g, [W2_RAW + 4 * t for t in range(8)], HV, vO, ZT, True)
    WT = [W2_RAW + 32, W2_RAW]
    for e in range(2):
        perms(g, [WO_RAW + 4 * t for t in range(8)], e, WT[0] + 4 * e)
    for i in range(4):
        g(f"v_cndmask_b32 v{ZO+i}, v{vO+4*i}, v{vO+16+4*i}, s[{sMASK2}:{sMASK2+1}]")
    for i in range(4):
        g(f"v_bfi_b32 v{ZO+i}, v{vFF}, s{sTAG}, v{ZO+i}")
    g(f"s_mov_b64 exec, s[{sMASK}:{sMASK+1}]")
    g(f"buffer_store_dwordx4 {vq(ZO)}, v{vA1}, {srd(SWS)}, s{sT1} offen sc1")
    g("s_mov_b64 exec, -1")
    for e in range(2, 8):
        perms(g, [WO_RAW + 4 * t for t in range(8)], e, WT[0] + 4 * e)
    for e in range(8):
        perms(g, [WO_RAW + 32 + 4 * t for t in range(8)], e, WT[1] + 4 * e)
    g(f"s_mov_b32 s{sSPIN}, 0")
    g("s_waitcnt vmcnt(1)")
    g("s_branch L_chk1")
    g.label("L_poll1")
    poll1()
    g("s_waitcnt vmcnt(0)")
    g.label("L_chk1")
    C1, C2 = X + 42, X + 43
    tagcheck(g, [D + i for i in range(10)], C1, C2)
    g("s_cbranch_vccz L_got1")
    g(f"s_add_u32 s{sSPIN}, s{sSPIN}, 1")
    g(f"s_cmp_lt_u32 s{sSPIN}, {hex(spin_max)}")
    g("s_cbranch_scc1 L_poll1")
    g.label("L_got1")
    g.stamp(5)
    g(f"v_and_b32 v{ST}, s{sHI}, v{ST}")
    g("s_nop 1")
    g(f"v_max_f32_dpp v{C1}, v{ST}, v{ST} row_ror:1 row_mask:0xf bank_mask:0xf")
    for r in (2, 4):
        g("s_nop 1")
        g(f"v_max_f32_dpp v{C1}, v{C1}, v{C1} row_ror:{r} row_mask:0xf bank_mask:0xf")
    g(f"v_sub_f32 v{C1}, v{ST}, v{C1}")
    g(f"v_mul_f32 v{C1}, s{sLOG2E}, v{C1}")
    g(f"v_exp_f32 v{C1}, v{C1}")
    g("s_nop 0")
    g(f"v_mul_f32 v{C2}, v{C1}, v{ST+1}")
    for i in range(2):
        g(f"v_mul_f32 v{D+i}, v{C1}, v{D+i}")
    g(f"v_add_f32_dpp v{C2}, v{C2}, v{C2} row_ror:1 row_mask:0xf bank_mask:0xf")
    for i in range(2, 4):
        g(f"v_mul_f32 v{D+i}, v{C1}, v{D+i}")
    g(f"v_add_f32_dpp v{C2}, v{C2}, v{C2} row_ror:2 row_mask:0xf bank_mask:0xf")
    for i in range(4, 6):
        g(f"v_mul_f32 v{D+i}, v{C1}, v{D+i}")
    g(f"v_add_f32_dpp v{C2}, v{C2}, v{C2} row_ror:4 row_mask:0xf bank_mask:0xf")
    for i in range(6, 8):
        g(f"v_mul_f32 v{D+i}, v{C1}, v{D+i}")
    g(f"v_rcp_f32 v{C2}, v{C2}")
    for mode in ("quad_perm:[1,0,3,2]", "quad_perm:[2,3,0,1]", "row_half_mirror"):
        for i in range(8):
            g(f"v_add_f32_dpp v{D+i}, v{D+i}, v{D+i} {mode} row_mask:0xf bank_mask:0xf")
    for i in range(8):
        g(f"v_mul_f32 v{D+i}, v{C2}, v{D+i}")
    B0, B1 = X + 44, X + 48
    for i in range(4):
        g(f"v_cvt_pk_bf16_f32 v{B0+i}, v{D+2*i}, v{D+2*i+1}")
    g("s_nop 0")
    for i in range(4):
        g(f"v_mov_b32_dpp v{B1+i}, v{B0+i} row_ror:8 row_mask:0xf bank_mask:0xf")
    for e in range(8):
        g(f"v_mfma_f32_16x16x32_bf16 {vq(vO+4*e)}, {vq(B0)}, {vq(WT[0]+4*e)}, 0")
    for e in range(8):
        g(f"v_mfma_f32_16x16x32_bf16 {vq(vO+4*e)}, {vq(B1)}, {vq(WT[1]+4*e)}, {vq(vO+4*e)}")
    g("s_nop 4")
    YO = X + 52
    for i in range(4):
        g(f"v_cndmask_b32 v{YO+i}, v{vO+4*i}, v{vO+16+4*i}, s[{sMASK2}:{sMASK2+1}]")
    for i in range(4):
        g(f"v_bfi_b32 v{YO+i}, v{vFF}, s{sTAG}, v{YO+i}")
    g(f"s_mov_b64 exec, s[{sMASK}:{sMASK+1}]")
    g(f"buffer_store_dwordx4 {vq(YO)}, v{vA1}, {srd(SWS)}, s{sT0} offen sc1")
    g("s_mov_b64 exec, -1")
    g.stamp(6)
    g("s_branch L_fin")

    g.label("L_helper")
    g("s_setprio 3")
    g.srd_consts(SX, 4096)
    g.srd_consts(SWQ, 512 * 4096 * 2)
    hX = 8
    hF = 12
    hT = 20
    hACC = 32
    RING = [96 + 32 * i for i in range(4)]
    hA = 224
    vW, vX, vTAG = 1, 2, 6
    XR = 64
    XF = 80
    WF = 128
    g(f"v_and_b32 v3, 3, v0")
    g(f"v_lshlrev_b32 v{vX}, 10, v3")
    g(f"v_bfe_u32 v4, v0, 2, 2")
    g(f"v_lshl_add_u32 v{vX}, v4, 6, v{vX}")
    g(f"v_lshrrev_b32 v5, 4, v0")
    g(f"v_lshl_add_u32 v{vX}, v5, 4, v{vX}")
    g(f"v_lshrrev_b32 v{vW}, 1, v0")
    g(f"v_lshlrev_b32 v{vW}, 13, v{vW}")
    g(f"v_and_b32 v7, 1, v0")
    g(f"v_lshl_add_u32 v{vW}, v7, 4, v{vW}")
    sCI = sIT
    g(f"s_lshl_b32 s{sCI}, s{sH}, 5")
    g(f"s_lshr_b32 s{sT1}, s2, 3")
    g(f"s_add_u32 s{sCI}, s{sCI}, s{sT1}")
    g(f"s_lshl_b32 s{sA}, s{sCI}, 5")
    if 'wq' in skip:
        g(f"s_mov_b32 s{sA}, 0x10000000")
    for i in range(1, 4):
        g(f"v_add_u32 v{11+i}, {hex(i*(32*8192 - 1024))}, v{vW}")
    for i in range(1, 4):
        g(f"s_add_u32 s{sT0+i-1}, s{sA}, {hex(i*128*8192)}")
    g(f"v_lshlrev_b32 v7, 2, v3")
    g(f"s_mov_b32 s{sT3}, {hex(W_EP)}")
    g(f"s_mov_b32 m0, {L_WQ}")
    g("s_waitcnt lgkmcnt(0)")
    for j in range(4):
        g(f"buffer_load_dwordx4 {vq(XR+4*j)}, v{vX}, {srd(SX)}, 0 offen offset:{256*j} {xflags}")
    g(f"buffer_load_dword v{vTAG}, v7, {srd(SWS)}, s{sT3} offen {epflags}")
    for q4 in range(4):
        so = sA if q4 == 0 else sT0 + q4 - 1
        for i in range(4):
            vo = vW if i == 0 else 11 + i
            g(f"buffer_load_dwordx4 v{vo}, {srd(SWQ)}, s{so} offen offset:{1024*i} {wflags} lds")
        if q4 < 3:
            g(f"s_add_u32 m0, m0, 4096")
            g("s_nop 0")
    if fine: g.stamp(7)
    if bar0:
        g("s_barrier")
    for (b_, off, nb) in ((SW1, 48, 512 * 1792 * 2), (SB1, 56, 1792 * 2), (SB2, 72, 1024), (SOUT, 80, 4096)):
        g.srd_load(b_, off)
        g.srd_consts(b_, nb)
    g(f"s_lshl_b32 s{sIN}, s2, 13")
    g(f"s_add_u32 s{sIN}, s{sIN}, {hex(W_IN)}")
    vQS = 8
    g(f"v_lshlrev_b32 v{vQS}, 14, v3")
    g(f"v_lshl_add_u32 v{vQS}, v5, 4, v{vQS}")
    g(f"s_lshl_b32 s{sT2}, s{sH}, 11")
    g(f"s_lshl_b32 s{sT1}, s{sCI}, 6")
    g(f"s_lshl_b32 s{sT3}, s{sB}, 14")
    g(f"s_add_u32 s{sT2}, s{sT2}, s{sT3}")
    vTR = 9
    g(f"v_and_b32 v{vTR}, 15, v0")
    g(f"v_lshlrev_b32 v{vTR}, 3, v{vTR}")
    g(f"v_lshl_add_u32 v{vTR}, v5, 8, v{vTR}")
    g(f"s_mov_b32 s{sMASK}, 0x000f000f")
    g(f"s_mov_b32 s{sMASK+1}, 0x000f000f")
    def red4(v, t):
        for r in (4, 8):
            g("s_nop 1")
            g(f"v_add_f32_dpp v{v}, v{v}, v{v} row_ror:{r} row_mask:0xf bank_mask:0xf")
        for sw in ("v_permlane16_swap_b32", "v_permlane32_swap_b32"):
            g(f"v_mov_b32 v{t}, v{v}")
            g("s_nop 1")
            g(f"{sw} v{v}, v{t}")
            g(f"v_add_f32 v{v}, v{v}, v{t}")
    def unpack16():
        for i in range(16):
            g(f"v_lshlrev_b32 v{XF+2*i}, 16, v{XR+i}")
            g(f"v_and_b32 v{XF+2*i+1}, s{sHI}, v{XR+i}")
    def pack16():
        for i in range(16):
            g(f"v_cvt_pk_bf16_f32 v{XR+i}, v{XF+2*i}, v{XF+2*i+1}")
    g("s_waitcnt vmcnt(17)")
    if fine: g.stamp(8)
    unpack16()
    g(f"v_pk_add_f32 {vq(hT,2)}, {vq(XF,2)}, {vq(XF+2,2)}")
    g(f"v_pk_add_f32 {vq(hT+2,2)}, {vq(XF+4,2)}, {vq(XF+6,2)}")
    for i in range(4, 16):
        d = hT + 2 * (i & 1)
        g(f"v_pk_add_f32 {vq(d,2)}, {vq(d,2)}, {vq(XF+2*i,2)}")
    g(f"v_pk_add_f32 {vq(hT,2)}, {vq(hT,2)}, {vq(hT+2,2)}")
    g(f"v_add_f32 v{hT}, v{hT}, v{hT+1}")
    red4(hT, hT + 1)
    g(f"v_mul_f32 v{hT}, {f32(-1.0/512)}, v{hT}")
    g(f"v_mov_b32 v{hT+1}, v{hT}")
    for i in range(16):
        t = hT + 6 + 2 * (i & 1)
        d = hT + 2 + 2 * (i & 1)
        g(f"v_pk_add_f32 {vq(t,2)}, {vq(XF+2*i,2)}, {vq(hT,2)}")
        if i < 2:
            g(f"v_pk_mul_f32 {vq(d,2)}, {vq(t,2)}, {vq(t,2)}")
        else:
            g(f"v_pk_fma_f32 {vq(d,2)}, {vq(t,2)}, {vq(t,2)}, {vq(d,2)}")
    g(f"v_pk_add_f32 {vq(hT+2,2)}, {vq(hT+2,2)}, {vq(hT+4,2)}")
    g(f"v_add_f32 v{hT+2}, v{hT+2}, v{hT+3}")
    rne(g, hT, hT)
    g(f"v_mov_b32 v{hT+1}, v{hT}")
    red4(hT + 2, hT + 3)
    g(f"v_mul_f32 v{hT+2}, {f32(1.0/512)}, v{hT+2}")
    rne(g, hT + 2, hT + 2)
    g(f"v_add_f32 v{hT+2}, {f32(1e-5)}, v{hT+2}")
    rne(g, hT + 2, hT + 2)
    g(f"v_sqrt_f32 v{hT+2}, v{hT+2}")
    for i in range(16):
        g(f"v_pk_add_f32 {vq(XF+2*i,2)}, {vq(XF+2*i,2)}, {vq(hT,2)}")
    rne(g, hT + 2, hT + 2)
    g(f"v_rcp_f32 v{hT+4}, v{hT+2}")
    pack16()
    g(f"v_mov_b32 v{hT+5}, v{hT+4}")
    unpack16()
    for i in range(16):
        g(f"v_pk_mul_f32 {vq(XF+2*i,2)}, {vq(XF+2*i,2)}, {vq(hT+4,2)}")
    pack16()
    g.stamp(1)
    g("s_waitcnt vmcnt(16)")
    g(f"v_add_u32 v{vTAG}, 1, v{vTAG}")
    g(f"v_mov_b32 v{hT+1}, v{vTAG}")
    g(f"v_mov_b32 v{hT+3}, v{vTAG}")
    g(f"v_readlane_b32 s{sTAG}, v{vTAG}, s{sB}")
    g(f"v_lshlrev_b32 v3, 5, v0")
    g(f"v_lshlrev_b32 v4, 4, v0")
    for j in range(4):
        g(f"s_waitcnt vmcnt({12-4*j})")
        for kb in range(4 * j, 4 * j + 4):
            g(f"ds_read_b64_tr_b16 {vq(WF+4*kb,2)}, v{vTR} offset:{L_WQ + 1024*kb}")
            g(f"ds_read_b64_tr_b16 {vq(WF+4*kb+2,2)}, v{vTR} offset:{L_WQ + 1024*kb + 128}")
        if j == 3 and fine: g.stamp(9)
        g("s_waitcnt lgkmcnt(0)")
        for kq in range(4):
            c = "0" if j == 0 else vq(hACC + 4 * kq)
            g(f"v_mfma_f32_16x16x32_bf16 {vq(hACC+4*kq)}, {vq(WF+4*(4*j+kq))}, {vq(XR+4*j)}, {c}")
    g("s_nop 5")
    for kq in range(1, 4):
        for r in range(4):
            g(f"v_add_f32_dpp v{hACC+r}, v{hACC+4*kq+r}, v{hACC+r} row_shl:{4*kq} row_mask:0xf bank_mask:0xf bound_ctrl:0")
    g(f"v_cvt_pk_bf16_f32 v{hT}, v{hACC}, v{hACC+1}")
    g(f"v_cvt_pk_bf16_f32 v{hT+2}, v{hACC+2}, v{hACC+3}")
    g(f"s_mov_b32 s{sSPIN}, 0")
    g(f"s_mov_b64 exec, s[{sMASK}:{sMASK+1}]")
    g(f"buffer_store_dwordx4 {vq(hT)}, v{vQS}, {srd(SWS)}, s{sT1} offen {sflags}")
    g("s_mov_b64 exec, -1")
    if not fine: g.stamp(2)
    g(f"v_and_b32 v5, 3, v0")
    g(f"v_cmp_eq_u32 vcc, s{sB}, v5")
    g(f"v_and_b32 v7, 0x3ff, v{vX}")
    g(f"s_and_saveexec_b64 s[{sMASK}:{sMASK+1}], vcc")
    for j in range(4):
        g(f"ds_write_b128 v7, {vq(XR+4*j)} offset:{L_XN + 256*j}")
    g("s_mov_b64 exec, -1")
    g(f"v_mov_b32 v7, 0")
    g(f"v_mov_b32 v10, s{sTAG}")
    g(f"ds_write_b32 v7, v10 offset:{L_TAG}")
    g(f"v_lshrrev_b32 v{vW}, 2, v0")
    g(f"s_mov_b32 s{sT0}, {8*3584}")
    g(f"v_mul_lo_u32 v{vW}, v{vW}, s{sT0}")
    g(f"v_lshl_add_u32 v{vW}, v5, 4, v{vW}")
    for i in range(1, 4):
        g(f"v_add_u32 v{11+i}, {2*3584*i}, v{vW}")
    g(f"s_mul_i32 s{sA}, s{sH}, 7")
    g(f"s_add_u32 s{sA}, s{sA}, s{sS}")
    g(f"s_lshl_b32 s{sA}, s{sA}, 6")
    g(f"s_cmp_eq_u32 s{sS}, 7")
    g(f"s_cselect_b32 s{sA}, 0x10000000, s{sA}")
    if 'ffn' in skip:
        g(f"s_mov_b32 s{sA}, 0x10000000")
    for i in range(1, 4):
        g(f"s_add_u32 s{8+i}, s{sA}, {128*3584*i}")
    g(f"v_lshlrev_b32 v15, 4, v5")
    g(f"buffer_load_dwordx4 {vq(hX)}, v15, {srd(SB1)}, s{sA} offen")
    for grp in range(4):
        so = sA if grp == 0 else 8 + grp
        for t in range(8):
            vo = vW if t < 2 else 11 + t // 2
            g(f"buffer_load_dwordx4 {vq(RING[grp]+4*t)}, v{vo}, {srd(SW1)}, s{so} offen offset:{3584*(t&1)} {wflags}")
    if fine: g.stamp(10)
    g(f"v_mov_b32 v4, v15")
    vFO = 5
    g(f"v_lshrrev_b32 v{vFO}, 4, v0")
    g(f"v_lshlrev_b32 v{vFO}, 2, v{vFO}")
    g(f"s_lshl_b32 s{sT0}, s{sP}, 4")
    g(f"s_lshl_b32 s{sT1}, s{sB}, 10")
    g(f"s_add_u32 s{sT1}, s{sT1}, s{sT0}")
    g(f"buffer_load_dword v6, v{vFO}, {srd(SX)}, s{sT1} offen")
    g(f"buffer_load_dword v7, v{vFO}, {srd(SB2)}, s{sT0} offen")
    g("s_waitcnt lgkmcnt(0)")
    g(f"v_lshrrev_b32 v{hT}, 4, v0")
    g(f"v_lshlrev_b32 v{hT}, 6, v{hT}")
    g(f"v_add_u32 v{hT}, v{hT}, v4")
    for i in range(4):
        g(f"ds_read_b128 {vq(hA+4*i)}, v{hT} offset:{L_XN + 256*i}")
    g("s_waitcnt lgkmcnt(0)")
    for grp in range(4):
        g(f"s_waitcnt vmcnt({8*(3-grp)+2})")
        gemv_tile(g, [RING[grp] + 4 * t for t in range(8)], hA + 4 * grp, hACC, hT, grp == 0)
    g("s_nop 7")
    for e in range(8):
        g(f"v_add_f32_dpp v{hF+e}, v{hACC+4*e+1}, v{hACC+4*e} row_shl:4 row_mask:0xf bank_mask:0xf bound_ctrl:0")
    for e in range(8):
        g(f"v_add_f32_dpp v{hF+e}, v{hACC+4*e+2}, v{hF+e} row_shl:8 row_mask:0xf bank_mask:0xf bound_ctrl:0")
    for e in range(8):
        g(f"v_add_f32_dpp v{hF+e}, v{hACC+4*e+3}, v{hF+e} row_shl:12 row_mask:0xf bank_mask:0xf bound_ctrl:0")
    def round8():
        for i in range(4):
            g(f"v_cvt_pk_bf16_f32 v{hT+i}, v{hF+2*i}, v{hF+2*i+1}")
        for i in range(4):
            g(f"v_lshlrev_b32 v{hF+2*i}, 16, v{hT+i}")
            g(f"v_and_b32 v{hF+2*i+1}, s{sHI}, v{hT+i}")
    round8()
    for i in range(4):
        g(f"v_lshlrev_b32 v{hT+4}, 16, v{hX+i}")
        g(f"v_and_b32 v{hT+5}, s{sHI}, v{hX+i}")
        g(f"v_add_f32 v{hF+2*i}, v{hF+2*i}, v{hT+4}")
        g(f"v_add_f32 v{hF+2*i+1}, v{hF+2*i+1}, v{hT+5}")
    round8()
    for i in range(8):
        g(f"v_max_f32 v{hF+i}, 0, v{hF+i}")
    for i in range(8):
        g(f"v_mul_f32 v{hF+i}, v{hF+i}, v{hF+i}")
    for i in range(4):
        g(f"v_cvt_pk_bf16_f32 v{hT+i}, v{hF+2*i}, v{hF+2*i+1}")
    g("s_mov_b64 exec, 0xf")
    g(f"ds_write_b128 v4, {vq(hT)} offset:{L_H}")
    g("s_mov_b64 exec, -1")
    if fine: g.stamp(2)
    g(f"v_lshlrev_b32 v2, 4, v0")
    QG = 40
    g.label("L_pollq")
    if qsleep:
        g(f"s_sleep {qsleep}")
    g(f"buffer_load_dwordx4 {vq(QG)}, v3, {srd(SWS)}, s{sT2} offen {pflags}")
    g(f"buffer_load_dwordx4 {vq(QG+4)}, v3, {srd(SWS)}, s{sT2} offen offset:16 {pflags}")
    g("s_waitcnt vmcnt(0)")
    g(f"v_xor_b32 v{QG+1}, s{sTAG}, v{QG+1}")
    g(f"v_xor_b32 v{QG+3}, s{sTAG}, v{QG+3}")
    g(f"v_xor_b32 v{QG+5}, s{sTAG}, v{QG+5}")
    g(f"v_xor_b32 v{QG+7}, s{sTAG}, v{QG+7}")
    g(f"v_or3_b32 v{QG+1}, v{QG+1}, v{QG+3}, v{QG+5}")
    g(f"v_or_b32 v{QG+1}, v{QG+1}, v{QG+7}")
    g(f"v_cmp_ne_u32 vcc, 0, v{QG+1}")
    g("s_cbranch_vccz L_gotq")
    g(f"s_add_u32 s{sSPIN}, s{sSPIN}, 1")
    g(f"s_cmp_lt_u32 s{sSPIN}, {hex(spin_max)}")
    g("s_cbranch_scc1 L_pollq")
    g.label("L_gotq")
    g.stamp(4)
    g(f"v_mov_b32 v{QG+1}, v{QG+2}")
    g(f"v_mov_b32 v{QG+2}, v{QG+4}")
    g(f"v_mov_b32 v{QG+3}, v{QG+6}")
    g(f"ds_write_b128 v2, {vq(QG)} offset:{L_Q}")
    if diag and probe is None:
        g(f"s_mov_b32 s{sSTAMP+6}, s{sSPIN}")
    g.stamp(5)
    g("s_waitcnt lgkmcnt(0)")
    g("s_barrier")
    g("s_setprio 0")
    g(f"s_add_u32 s{sT2}, s{sIN}, {IN_Z}")
    g(f"s_add_u32 s{sT3}, s{sIN}, {IN_Y}")
    g.stamp(6)
    g("s_waitcnt lgkmcnt(0)")
    g("s_barrier")
    if not fine: g.stamp(7)

    def poll8(tag, so, R):
        g(f"s_mov_b32 s{sSPIN}, 0")
        g.label(f"L_poll{tag}")
        g(f"buffer_load_dwordx4 {vq(R)}, v3, {srd(SWS)}, s{so} offen sc1")
        g(f"buffer_load_dwordx4 {vq(R+4)}, v3, {srd(SWS)}, s{so} offen offset:16 sc1")
        g("s_waitcnt vmcnt(0)")
        tagcheck(g, [R + i for i in range(8)], hT, hT + 1)
        g(f"s_cbranch_vccz L_got{tag}")
        g(f"s_add_u32 s{sSPIN}, s{sSPIN}, 1")
        g(f"s_cmp_lt_u32 s{sSPIN}, {hex(spin_max)}")
        g(f"s_cbranch_scc1 L_poll{tag}")
        g.label(f"L_got{tag}")

    def round2(a, t):
        g(f"v_cvt_pk_bf16_f32 v{t}, v{a}, v{a+1}")
        g(f"v_lshlrev_b32 v{a}, 16, v{t}")
        g(f"v_and_b32 v{a+1}, s{sHI}, v{t}")

    Z, Y = 32, 40
    poll8("z", sT2, Z)
    if not fine: g.stamp(8)
    reduce64x8(g, Z)
    round2(Z, hT)
    g(f"v_lshlrev_b32 v{hT+2}, 16, v7")
    g(f"v_and_b32 v{hT+3}, s{sHI}, v7")
    g(f"v_add_f32 v{Z}, v{Z}, v{hT+2}")
    g(f"v_add_f32 v{Z+1}, v{Z+1}, v{hT+3}")
    round2(Z, hT)
    for i in range(2):
        g(f"v_mul_f32 v{hT+2+i}, {f32(-LOG2E)}, v{Z+i}")
    for i in range(2):
        g(f"v_exp_f32 v{hT+2+i}, v{hT+2+i}")
    g("s_nop 0")
    for i in range(2):
        g(f"v_add_f32 v{hT+2+i}, 1.0, v{hT+2+i}")
    for i in range(2):
        g(f"v_rcp_f32 v{hT+2+i}, v{hT+2+i}")
    g("s_nop 0")
    for i in range(2):
        g(f"v_mul_f32 v{Z+i}, v{Z+i}, v{hT+2+i}")
    round2(Z, hT)
    g(f"v_lshlrev_b32 v{Z+2}, 16, v6")
    g(f"v_and_b32 v{Z+3}, s{sHI}, v6")
    g(f"s_mov_b32 s{sMASK}, 0x00010001")
    g(f"s_mov_b32 s{sMASK+1}, 0x00010001")
    poll8("y", sT3, Y)
    if not fine: g.stamp(9)
    reduce64x8(g, Y)
    round2(Y, hT)
    for i in range(2):
        g(f"v_mul_f32 v{Y+i}, v{Y+i}, v{Z+i}")
    round2(Y, hT)
    for i in range(2):
        g(f"v_add_f32 v{Y+i}, v{Y+i}, v{Z+2+i}")
    g(f"v_cvt_pk_bf16_f32 v{hT}, v{Y}, v{Y+1}")
    g(f"s_mov_b64 exec, s[{sMASK}:{sMASK+1}]")
    g(f"buffer_store_dword v{hT}, v{vFO}, {srd(SOUT)}, s{sT1} offen")
    g(f"s_cmp_lg_u32 s{sP}, 0")
    g("s_cbranch_scc1 L_noep")
    g(f"s_lshl_b32 s{sT0}, s{sB}, 2")
    g(f"s_add_u32 s{sT0}, s{sT0}, {hex(W_EP)}")
    g("s_mov_b64 exec, 1")
    g(f"v_mov_b32 v10, s{sTAG}")
    g(f"buffer_store_dword v10, v3, {srd(SWS)}, s{sT0} offen sc1")
    g.label("L_noep")
    g("s_mov_b64 exec, -1")
    if not fine: g.stamp(10)

    g.label("L_fin")
    if probe is not None:
        role, idx = probe
        g("s_waitcnt vmcnt(0)")
        g.stamp(11)
        g("s_waitcnt lgkmcnt(0)")
        g(f"s_mov_b32 s{sT0}, s{sSTAMP}")
        g(f"s_cmp_eq_u32 s{sWAVE}, 0")
        if role == 'h':
            g(f"s_cselect_b32 s{sT0}, s{sSTAMP+2*idx}, s{sT0}")
        elif role == 's':
            g(f"s_cselect_b32 s{sT0}, s{sT0}, s{sSTAMP+2*idx}")
        g(f"s_add_u32 s{sT0}, s{sT0}, 10000")
        g.label("L_probe")
        g(f"s_memrealtime s[{sSTAMP+2}:{sSTAMP+3}]")
        g("s_waitcnt lgkmcnt(0)")
        g(f"s_sub_u32 s{sT1}, s{sSTAMP+2}, s{sT0}")
        g(f"s_cmp_lt_i32 s{sT1}, 0")
        g("s_cbranch_scc1 L_probe")
    if diag:
        g("s_waitcnt vmcnt(0)")
        g.stamp(11)
        g("s_waitcnt lgkmcnt(0)")
        g(f"s_mul_i32 s{sT0}, s2, 5")
        g(f"s_add_u32 s{sT0}, s{sT0}, s{sWAVE}")
        g(f"s_lshl_b32 s{sT0}, s{sT0}, 6")
        g(f"s_add_u32 s{sT0}, s{sT0}, {hex(W_DIAG)}")
        for i in range(12):
            g(f"v_mov_b32 v{8+i}, s{sSTAMP+2*i}")
        g(f"v_mov_b32 v20, s{sSPIN}")
        g("s_getreg_b32 s3, hwreg(HW_REG_XCC_ID)")
        g("v_mov_b32 v21, s3")
        g("v_mov_b32 v22, 0")
        g("v_mov_b32 v23, 0")
        g("v_mov_b32 v1, 0")
        g("s_mov_b64 exec, 1")
        for i in range(4):
            g(f"buffer_store_dwordx4 {vq(8+4*i)}, v1, {srd(SWS)}, s{sT0} offen offset:{16*i}")
    g.label("L_end")
    g("s_endpgm")
    out += g.L
    out += ['.section .rodata,"a"', ".p2align 6", f".amdhsa_kernel {NAME}_kernel",
            "  .amdhsa_next_free_vgpr 256", "  .amdhsa_next_free_sgpr 102", "  .amdhsa_accum_offset 256",
            "  .amdhsa_group_segment_fixed_size 0", "  .amdhsa_kernarg_size 104", "  .amdhsa_user_sgpr_count 2",
            "  .amdhsa_user_sgpr_kernarg_segment_ptr 1", "  .amdhsa_system_sgpr_workgroup_id_x 1",
            "  .amdhsa_float_denorm_mode_32 3",
            ".end_amdhsa_kernel"]
    return "\n".join(out) + "\n"


if __name__ == "__main__":
    kw = eval("dict(%s)" % (sys.argv[2] if len(sys.argv) > 2 else ""))
    open(sys.argv[1], "w").write(gen(**kw))
```

```python
import sys, struct

NAME = "recurrent_scan__gqa_block_cached__dense_activation_squared_relu__decode"

HEADER = """; Kernarg layout for this problem (104 bytes, ptrs only, base s[0:1]):
;   offset  24: d_in[3] A_wq  shape=(512, 4096) dtype=bfloat16
"""

def f32(x):
    return "0x%08x" % struct.unpack("<I", struct.pack("<f", x))[0]

LOG2E = 1.4426950408889634
SCALE = 128 ** -0.5

L_Q, L_XN, L_H, L_STAT, L_PART, L_WQ, L_SIZE = 0, 1024, 2048, 2176, 4096, 12288, 28672
L_TAG = 2112
W_Q = 0
W_IN = 0x10000
IN_H1, IN_Y, IN_Z = 0, 3072, 5120
REC = 320
W_EP = 0x220000
W_DIAG = 0x280000
W_SIZE = 0x400000

SK, SV, SWS, SWO, SW2, SX, SWQ, SW1, SB1, SB2, SOUT, SDBG = 8, 12, 16, 20, 24, 28, 32, 36, 40, 44, 48, 52
sWAVE, sB, sH, sS, sP = 3, 4, 5, 6, 7
sSELLO, sSELHI, sSCALE, sLOG2E, sA, sBo, sIT = 56, 57, 58, 59, 60, 61, 62
sT0, sT1, sT2, sT3 = 63, 64, 65, 66
sMASK = 68
sMASK2 = 70
sSPIN = 72
sHI = 73
sW = 74
sTAG = 75
sIN = 67
sSTAMP = 76


class G:
    def __init__(self, diag=False):
        self.L = []
        self.diag = diag
        self.nstamp = {}

    def __call__(self, s):
        self.L.append("  " + s)

    def label(self, s):
        self.L.append(s + ":")

    def comment(self, s):
        self.L.append("  ; " + s)

    def stamp(self, i):
        if self.diag:
            self(f"s_memrealtime s[{sSTAMP+2*i}:{sSTAMP+2*i+1}]")

    def srd_consts(self, base, nbytes):
        self(f"s_mov_b32 s{base+2}, {hex(nbytes)}")
        self(f"s_mov_b32 s{base+3}, 0x20000")

    def srd_load(self, base, off):
        self(f"s_load_dwordx2 s[{base}:{base+1}], s[0:1], {off}")


def srd(b):
    return f"s[{b}:{b+3}]"


def vq(r, n=4):
    return f"v[{r}:{r+n-1}]"


def perms(g, raw, e, dst):
    sel = sSELHI if (e & 1) else sSELLO
    for j in range(4):
        g(f"v_perm_b32 v{dst+j}, v{raw[2*j+1] + (e >> 1)}, v{raw[2*j] + (e >> 1)}, s{sel}")


def gemv_tile(g, raw, vec, acc, tmp, first, wside_a=False):
    nq = 3
    perms(g, raw, 0, tmp)
    perms(g, raw, 1, tmp + 4)
    for e in range(8):
        t = tmp + 4 * (e % nq)
        if e + 2 < 8:
            perms(g, raw, e + 2, tmp + 4 * ((e + 2) % nq))
        c = "0" if first else vq(acc + 4 * e)
        if wside_a:
            g(f"v_mfma_f32_16x16x32_bf16 {vq(acc+4*e)}, {vq(t)}, {vq(vec)}, {c}")
        else:
            g(f"v_mfma_f32_16x16x32_bf16 {vq(acc+4*e)}, {vq(vec)}, {vq(t)}, {c}")


def rne(g, dst, src):
    g(f"v_cvt_pk_bf16_f32 v{dst}, v{src}, v{src}")
    g(f"v_lshlrev_b32 v{dst}, 16, v{dst}")


def wave_sum(g, v, t):
    for r in (8, 4, 2, 1):
        g("s_nop 1")
        g(f"v_add_f32_dpp v{v}, v{v}, v{v} row_ror:{r} row_mask:0xf bank_mask:0xf")
    for sw in ("v_permlane16_swap_b32", "v_permlane32_swap_b32"):
        g(f"v_mov_b32 v{t}, v{v}")
        g("s_nop 1")
        g(f"{sw} v{v}, v{t}")
        g(f"v_add_f32 v{v}, v{v}, v{t}")


def tagcheck(g, regs, c1, c2):
    def tree(op3, op2, dst):
        r = list(regs)
        g(f"{op3} v{dst}, v{r[0]}, v{r[1]}, v{r[2]}" + (" bitop3:0x80" if "bitop" in op3 else ""))
        r = r[3:]
        while len(r) >= 2:
            g(f"{op3} v{dst}, v{dst}, v{r[0]}, v{r[1]}" + (" bitop3:0x80" if "bitop" in op3 else ""))
            r = r[2:]
        if r:
            g(f"{op2} v{dst}, v{dst}, v{r[0]}")
    tree("v_bitop3_b32", "v_and_b32", c1)
    tree("v_or3_b32", "v_or_b32", c2)
    g(f"v_bitop3_b32 v{c1}, v{c1}, v{c2}, s{sTAG} bitop3:0x7e")
    g(f"v_and_b32 v{c1}, 0xff, v{c1}")
    g(f"v_cmp_ne_u32 vcc, 0, v{c1}")


def reduce64x8(g, a):
    for i in range(4):
        g(f"v_permlane32_swap_b32 v{a+i}, v{a+4+i}")
    for i in range(4):
        g(f"v_add_f32 v{a+i}, v{a+i}, v{a+4+i}")
    g("s_nop 0")
    for i in range(2):
        g(f"v_permlane16_swap_b32 v{a+i}, v{a+2+i}")
    for i in range(2):
        g(f"v_add_f32 v{a+i}, v{a+i}, v{a+2+i}")
    for r in (8, 4, 2, 1):
        g("s_nop 0")
        for i in range(2):
            g(f"v_add_f32_dpp v{a+i}, v{a+i}, v{a+i} row_ror:{r} row_mask:0xf bank_mask:0xf")


def gen(diag=False, kvflags="nt", wflags="nt", pace=6, spin_max=1 << 20, delay=0, lpace=None, fine=False, skip=(), epflags="sc1", pflags="sc1", sflags="sc1", xflags="", qsleep=0, bar0=False, probe=None):
    g = G(diag or probe is not None)
    out = [HEADER + f"; @launch grid=(256,1,1) block=(320,1,1) lds={L_SIZE}",
           '.amdgcn_target "amdgcn-amd-amdhsa--gfx950"', ".text", f".globl {NAME}_kernel", ".p2align 8",
           f".type {NAME}_kernel,@function", f"{NAME}_kernel:"]
    g("s_cmp_ge_u32 s2, 256")
    g("s_cbranch_scc1 L_end")
    g.srd_load(SK, 8)
    g.srd_load(SV, 16)
    g.srd_load(SX, 0)
    g.srd_load(SWQ, 24)
    g.srd_load(SWS, 96)
    g.srd_consts(SWS, W_SIZE)
    g.stamp(0)
    g("v_lshrrev_b32 v1, 6, v0")
    g("v_and_b32 v0, 63, v0")
    g(f"s_lshr_b32 s{sB}, s2, 6")
    g(f"v_readfirstlane_b32 s{sWAVE}, v1")
    g(f"s_and_b32 s{sH}, s2, 7")
    g(f"s_bfe_u32 s{sS}, s2, 0x30003")
    g(f"s_and_b32 s{sP}, s2, 63")
    g(f"s_mov_b32 s{sSELLO}, 0x05040100")
    g(f"s_mov_b32 s{sSELHI}, 0x07060302")
    g(f"s_mov_b32 s{sHI}, 0xffff0000")
    g(f"s_mov_b32 s{sLOG2E}, {f32(LOG2E)}")
    g(f"s_cmp_eq_u32 s{sWAVE}, 0")
    g("s_cbranch_scc1 L_helper")

    vK, vV, vM, vL, vMC, vT6, vT7 = 1, 2, 3, 4, 5, 6, 7
    vS, vQ, vO = 8, 16, 32
    SLOT = [64, 128, 192]
    g.srd_consts(SK, 0x8000000)
    g.srd_consts(SV, 0x8000000)
    g(f"s_sub_u32 s{sW}, s{sWAVE}, 1")
    g(f"s_lshl_b32 s{sA}, s{sB}, 3")
    g(f"s_add_u32 s{sA}, s{sA}, s{sH}")
    g(f"s_lshl_b32 s{sA}, s{sA}, 3")
    g(f"s_add_u32 s{sA}, s{sA}, s{sS}")
    g(f"s_lshl_b32 s{sA}, s{sA}, 7")
    g(f"s_add_u32 s{sA}, s{sA}, s{sW}")
    g(f"s_lshl_b32 s{sA}, s{sA}, 12")
    g(f"s_add_u32 s{sBo}, s{sA}, 0x4000")
    g(f"v_and_b32 v{vT6}, 3, v0")
    g(f"v_lshlrev_b32 v{vK}, 10, v{vT6}")
    g(f"v_bfe_u32 v{vT6}, v0, 2, 2")
    g(f"v_lshl_add_u32 v{vK}, v{vT6}, 8, v{vK}")
    g(f"v_lshrrev_b32 v{vT6}, 4, v0")
    g(f"v_lshl_add_u32 v{vK}, v{vT6}, 4, v{vK}")
    g(f"v_lshlrev_b32 v{vV}, 4, v0")
    g("s_waitcnt lgkmcnt(0)")
    for _ in range(delay):
        g("s_sleep 16")
    if bar0:
        g("s_barrier")

    def kv_issue(X, paced=None):
        for (base, voff, rs, so, step) in ((X, vK, SK, sA, 64), (X + 16, vV, SV, sA, 1024),
                                           (X + 32, vK, SK, sBo, 64), (X + 48, vV, SV, sBo, 1024)):
            for j in range(4):
                g(f"buffer_load_dwordx4 {vq(base+4*j)}, v{voff}, {srd(rs)}, s{so} offen offset:{j*step} {kvflags}")
                if paced is not None:
                    g(f"s_waitcnt vmcnt({paced})")
        g(f"s_add_u32 s{sA}, s{sA}, 0x8000")
        g(f"s_add_u32 s{sBo}, s{sBo}, 0x8000")

    kv_issue(SLOT[0], pace)
    g.srd_load(SWO, 32)
    g.srd_load(SW2, 64)
    g.srd_consts(SWO, 4096 * 512 * 2)
    g.srd_consts(SW2, 1792 * 512 * 2)
    g(f"s_mov_b32 s{sSCALE}, {f32(SCALE)}")
    g(f"s_mov_b32 s{sIT}, 0")
    for i in range(32):
        g(f"v_mov_b32 v{vO+i}, 0")
    g(f"v_mov_b32 v{vM}, 0xff800000")
    g(f"v_mov_b32 v{vL}, 0")
    g(f"v_mov_b32 v{vMC}, 0")
    g(f"v_and_b32 v{vT7}, 3, v0")
    g(f"v_lshlrev_b32 v{vT7}, 8, v{vT7}")
    g(f"v_lshl_add_u32 v{vT7}, v{vT6}, 4, v{vT7}")
    kv_issue(SLOT[1], pace)
    kv_issue(SLOT[2], pace)
    g.stamp(1)
    g("s_waitcnt lgkmcnt(0)")
    g("s_barrier")
    for j in range(4):
        g(f"ds_read_b128 {vq(vQ+4*j)}, v{vT7} offset:{L_Q + 64*j}")
    g(f"ds_read_b32 v{vT6}, v{vL} offset:{L_TAG}")
    g.stamp(2)
    g("s_waitcnt lgkmcnt(0)")
    g(f"v_readfirstlane_b32 s{sTAG}, v{vT6}")

    def tile(X, tag):
        Ka, Va, Kb, Vb = X, X + 16, X + 32, X + 48
        raw = [Va, Va + 4, Va + 8, Va + 12, Vb, Vb + 4, Vb + 8, Vb + 12]
        U = Ka
        T = Kb
        P = Kb + 4
        MX, TM = Kb + 8, Kb + 9
        g("s_waitcnt vmcnt(44)")
        for j in range(4):
            c = "0" if j == 0 else vq(vS)
            g(f"v_mfma_f32_16x16x32_bf16 {vq(vS)}, {vq(Ka+4*j)}, {vq(vQ+4*j)}, {c}")
        g("s_waitcnt vmcnt(36)")
        for j in range(4):
            c = "0" if j == 0 else vq(vS + 4)
            g(f"v_mfma_f32_16x16x32_bf16 {vq(vS+4)}, {vq(Kb+4*j)}, {vq(vQ+4*j)}, {c}")
        g("s_nop 3")
        g(f"v_cvt_pk_bf16_f32 v{T}, v{vS}, v{vS+1}")
        g(f"v_cvt_pk_bf16_f32 v{T+1}, v{vS+2}, v{vS+3}")
        g(f"v_lshlrev_b32 v{vS}, 16, v{T}")
        g(f"v_and_b32 v{vS+1}, s{sHI}, v{T}")
        g(f"v_lshlrev_b32 v{vS+2}, 16, v{T+1}")
        g(f"v_and_b32 v{vS+3}, s{sHI}, v{T+1}")
        g(f"v_cvt_pk_bf16_f32 v{T+2}, v{vS+4}, v{vS+5}")
        g(f"v_cvt_pk_bf16_f32 v{T+3}, v{vS+6}, v{vS+7}")
        g(f"v_lshlrev_b32 v{vS+4}, 16, v{T+2}")
        g(f"v_and_b32 v{vS+5}, s{sHI}, v{T+2}")
        g(f"v_lshlrev_b32 v{vS+6}, 16, v{T+3}")
        g(f"v_and_b32 v{vS+7}, s{sHI}, v{T+3}")
        for i in range(8):
            g(f"v_mul_f32 v{vS+i}, s{sSCALE}, v{vS+i}")
        for i in range(4):
            g(f"v_cvt_pk_bf16_f32 v{T+i}, v{vS+2*i}, v{vS+2*i+1}")
        for i in range(4):
            g(f"v_lshlrev_b32 v{vS+2*i}, 16, v{T+i}")
            g(f"v_and_b32 v{vS+2*i+1}, s{sHI}, v{T+i}")
        g(f"v_max3_f32 v{MX}, v{vS}, v{vS+1}, v{vS+2}")
        g(f"v_max3_f32 v{TM}, v{vS+3}, v{vS+4}, v{vS+5}")
        g(f"v_max3_f32 v{MX}, v{MX}, v{vS+6}, v{vS+7}")
        g(f"v_max3_f32 v{MX}, v{MX}, v{TM}, v{vM}")
        for sw in ("v_permlane32_swap_b32", "v_permlane16_swap_b32"):
            g(f"v_mov_b32 v{TM}, v{MX}")
            g("s_nop 1")
            g(f"{sw} v{MX}, v{TM}")
            g(f"v_max_f32 v{MX}, v{MX}, v{TM}")
        g(f"v_cmp_gt_f32 vcc, v{MX}, v{vM}")
        g(f"s_cbranch_vccz L_nr{tag}")
        g(f"v_sub_f32 v{TM}, v{vM}, v{MX}")
        g(f"v_mul_f32 v{TM}, s{sLOG2E}, v{TM}")
        g(f"v_exp_f32 v{TM}, v{TM}")
        g(f"v_mov_b32 v{vM}, v{MX}")
        g(f"v_mul_f32 v{vMC}, s{sLOG2E}, v{MX}")
        g(f"v_mul_f32 v{vL}, v{vL}, v{TM}")
        for i in range(32):
            g(f"v_mul_f32 v{vO+i}, v{vO+i}, v{TM}")
        g.label(f"L_nr{tag}")
        for i in range(8):
            g(f"v_fma_f32 v{vS+i}, v{vS+i}, s{sLOG2E}, -v{vMC}")
        for i in range(8):
            g(f"v_exp_f32 v{vS+i}, v{vS+i}")
        g("s_waitcnt vmcnt(32)")
        perms(g, raw, 0, U)
        for i in range(4):
            g(f"v_cvt_pk_bf16_f32 v{P+i}, v{vS+2*i}, v{vS+2*i+1}")
        perms(g, raw, 1, U + 4)
        for e in range(8):
            g(f"v_mfma_f32_16x16x32_bf16 {vq(vO+4*e)}, {vq(U+4*(e%4))}, {vq(P)}, {vq(vO+4*e)}")
            if e + 2 < 8:
                perms(g, raw, e + 2, U + 4 * ((e + 2) % 4))
            else:
                b = 4 * (e - 6)
                g(f"v_add_f32 v{vS+b}, v{vS+b}, v{vS+b+1}")
                g(f"v_add_f32 v{vS+b+2}, v{vS+b+2}, v{vS+b+3}")
                g(f"v_add_f32 v{vS+b}, v{vS+b}, v{vS+b+2}")
                g(f"v_add_f32 v{vL}, v{vL}, v{vS+b}")

    g.L.append(".p2align 3")
    g.label("L_loop")
    tile(SLOT[0], "a")
    g(f"s_cmp_eq_u32 s{sIT}, 5")
    g("s_cbranch_scc1 L_tail")
    kv_issue(SLOT[0], lpace)
    tile(SLOT[1], "b")
    g(f"s_cmp_eq_u32 s{sIT}, 4")
    g("s_cbranch_scc1 L_wo")
    kv_issue(SLOT[1], lpace)
    g.label("L_wo_back")
    tile(SLOT[2], "c")
    g(f"s_add_u32 s{sIT}, s{sIT}, 1")
    g(f"s_cmp_eq_u32 s{sIT}, 5")
    g("s_cbranch_scc1 L_w2")
    kv_issue(SLOT[2], lpace)
    g("s_branch L_loop")

    WO_RAW = SLOT[1]
    W2_RAW = SLOT[2]
    g.label("L_wo")
    g(f"v_bfe_u32 v{vT6}, v0, 4, 1")
    g(f"v_lshlrev_b32 v{vT6}, 16, v{vT6}")
    g(f"v_lshrrev_b32 v{vT7}, 5, v0")
    g(f"v_lshl_add_u32 v{vT6}, v{vT7}, 10, v{vT6}")
    g(f"v_and_b32 v{vT7}, 15, v0")
    g(f"v_lshl_add_u32 v{vT6}, v{vT7}, 4, v{vT6}")
    g(f"s_lshl_b32 s{sT0}, s{sH}, 2")
    g(f"s_lshr_b32 s{sT1}, s{sS}, 1")
    g(f"s_add_u32 s{sT0}, s{sT0}, s{sT1}")
    g(f"s_lshl_b32 s{sT0}, s{sT0}, 17")
    g(f"s_and_b32 s{sT1}, s{sS}, 1")
    g(f"s_lshl_b32 s{sT1}, s{sT1}, 12")
    g(f"s_add_u32 s{sT0}, s{sT0}, s{sT1}")
    g(f"s_lshl_b32 s{sT1}, s{sW}, 8")
    g(f"s_add_u32 s{sT0}, s{sT0}, s{sT1}")
    for t in range(1, 8):
        g(f"s_add_u32 s{28+t}, s{sT0}, {hex(0x2000*t)}")
    for t in range(8):
        so = sT0 if t == 0 else 28 + t
        for step in range(2):
            g(f"buffer_load_dwordx4 {vq(WO_RAW+32*step+4*t)}, v{vT6}, {srd(SWO)}, s{so} offen offset:{2048*step} {wflags}")
    g("s_branch L_wo_back")

    g.label("L_w2")
    g(f"v_lshrrev_b32 v{vT6}, 4, v0")
    g(f"v_lshlrev_b32 v{vT6}, 13, v{vT6}")
    g(f"v_and_b32 v{vT7}, 15, v0")
    g(f"v_lshl_add_u32 v{vT6}, v{vT7}, 4, v{vT6}")
    g(f"s_mul_i32 s{sT0}, s{sH}, 7")
    g(f"s_add_u32 s{sT0}, s{sT0}, s{sS}")
    g(f"s_lshl_b32 s{sT0}, s{sT0}, 15")
    g(f"s_lshl_b32 s{sT1}, s{sW}, 8")
    g(f"s_add_u32 s{sT0}, s{sT0}, s{sT1}")
    g(f"s_cmp_eq_u32 s{sS}, 7")
    g(f"s_cselect_b32 s{sT0}, 0x10000000, s{sT0}")
    g(f"s_add_u32 s{sT1}, s{sT0}, 0x1000")
    g(f"s_mov_b32 s{sT2}, 0x10000000")
    for t in range(8):
        so = sT0 if t < 4 else sT1
        g(f"buffer_load_dwordx4 {vq(W2_RAW+4*t)}, v{vT6}, {srd(SW2)}, s{so} offen offset:{1024*(t%4)} {wflags}")
    for t in range(8):
        g(f"buffer_load_dword v{W2_RAW+32+t}, v{vT6}, {srd(SW2)}, s{sT2} offen")
    g("s_branch L_loop")

    g.label("L_tail")
    g.stamp(3)
    X = SLOT[0]
    TM = X
    vFF = vMC
    g(f"v_mov_b32 v{vFF}, 0xff")
    for sw in ("v_permlane32_swap_b32", "v_permlane16_swap_b32"):
        g(f"v_mov_b32 v{TM}, v{vL}")
        g("s_nop 1")
        g(f"{sw} v{vL}, v{TM}")
        g(f"v_add_f32 v{vL}, v{vL}, v{TM}")
    g(f"v_and_b32 v{vT6}, 3, v0")
    g(f"v_lshrrev_b32 v{vT7}, 4, v0")
    g(f"v_lshlrev_b32 v{vT7}, 4, v{vT7}")
    g(f"v_lshl_add_u32 v{vT7}, v{vT6}, 9, v{vT7}")
    g(f"s_lshl_b32 s{sT0}, s{sW}, 11")
    g(f"v_add_u32 v{vT7}, s{sT0}, v{vT7}")
    g(f"s_lshl_b32 s{sT0}, s{sW}, 2")
    g(f"v_lshl_add_u32 v{vT6}, v{vT6}, 5, s{sT0}")
    g(f"s_mov_b32 s{sMASK}, 0x000f000f")
    g(f"s_mov_b32 s{sMASK+1}, 0x000f000f")
    g(f"s_mov_b64 exec, s[{sMASK}:{sMASK+1}]")
    for e in range(8):
        g(f"ds_write_b128 v{vT7}, {vq(vO+4*e)} offset:{L_PART + 64*e}")
    g(f"ds_write_b32 v{vT6}, v{vM} offset:{L_STAT}")
    g(f"ds_write_b32 v{vT6}, v{vL} offset:{L_STAT+16}")
    g("s_mov_b64 exec, -1")
    g(f"v_and_b32 v{vT6}, 31, v0")
    g(f"s_lshl_b32 s{sT0}, s{sW}, 9")
    g(f"v_lshl_add_u32 v{vT6}, v{vT6}, 4, s{sT0}")
    g(f"s_lshl_b32 s{sT0}, s{sW}, 5")
    g(f"v_mov_b32 v{vT7}, s{sT0}")
    vA1 = vK
    vA2 = vV
    g(f"v_bfe_u32 v{vA1}, v0, 4, 1")
    g(f"v_lshlrev_b32 v{vA1}, 16, v{vA1}")
    g(f"v_and_b32 v{vA2}, 15, v0")
    g(f"v_lshl_add_u32 v{vA1}, v{vA2}, 4, v{vA1}")
    g(f"v_and_b32 v{vA2}, 1, v0")
    g(f"v_lshlrev_b32 v{vA2}, 16, v{vA2}")
    g(f"v_add_u32 v{vA2}, 0x100, v{vA2}")
    g(f"v_cmp_lt_u32 vcc, 31, v0")
    g(f"s_lshl_b32 s{sT0}, s{sB}, 6")
    g(f"s_lshl_b32 s{sT1}, s{sW}, 4")
    g(f"v_cndmask_b32 v{vA1}, v{vA1}, v{vA2}, vcc")
    g(f"s_add_u32 s{sT0}, s{sT0}, s{sT1}")
    g(f"s_add_u32 s{sT0}, s{sT0}, s{sH}")
    g(f"s_lshl_b32 s{sT0}, s{sT0}, 13")
    g(f"s_mul_i32 s{sT1}, s{sS}, {REC}")
    g(f"s_add_u32 s{sT0}, s{sT0}, s{sT1}")
    g(f"s_add_u32 s{sT0}, s{sT0}, {hex(W_IN + IN_H1)}")
    g("s_waitcnt lgkmcnt(0)")
    g("s_barrier")
    PR = X
    SM, SL = X + 16, X + 20
    HV = X + 24
    g(f"ds_read_b128 {vq(SM)}, v{vT7} offset:{L_STAT}")
    g(f"ds_read_b128 {vq(SL)}, v{vT7} offset:{L_STAT+16}")
    for w in range(4):
        g(f"ds_read_b128 {vq(PR+4*w)}, v{vT6} offset:{L_PART + 2048*w}")
    g(f"v_lshrrev_b32 v{vT7}, 4, v0")
    g(f"v_lshlrev_b32 v{vT7}, 4, v{vT7}")
    g(f"ds_read_b128 {vq(HV)}, v{vT7} offset:{L_H}")
    g.stamp(4)
    g("s_waitcnt lgkmcnt(0)")
    MM, LL = X + 28, X + 29
    g(f"v_max3_f32 v{MM}, v{SM}, v{SM+1}, v{SM+2}")
    g(f"v_max_f32 v{MM}, v{MM}, v{SM+3}")
    for w in range(4):
        g(f"v_sub_f32 v{SM+w}, v{SM+w}, v{MM}")
    for w in range(4):
        g(f"v_mul_f32 v{SM+w}, s{sLOG2E}, v{SM+w}")
    for w in range(4):
        g(f"v_exp_f32 v{SM+w}, v{SM+w}")
    g("s_nop 0")
    g(f"v_mul_f32 v{LL}, v{SM}, v{SL}")
    for i in range(4):
        g(f"v_mul_f32 v{PR+i}, v{SM}, v{PR+i}")
    for w in range(1, 4):
        g(f"v_fmac_f32 v{LL}, v{SM+w}, v{SL+w}")
        for i in range(4):
            g(f"v_fmac_f32 v{PR+i}, v{SM+w}, v{PR+4*w+i}")
    g(f"v_cndmask_b32 v{PR}, v{PR}, v{MM}, vcc")
    g(f"v_cndmask_b32 v{PR+1}, v{PR+1}, v{LL}, vcc")
    for i in range(4):
        g(f"v_bfi_b32 v{PR+i}, v{vFF}, s{sTAG}, v{PR+i}")
    g(f"s_mov_b32 s{sMASK}, -1")
    g(f"s_mov_b32 s{sMASK+1}, 3")
    g(f"s_mov_b64 exec, s[{sMASK}:{sMASK+1}]")
    g(f"buffer_store_dwordx4 {vq(PR)}, v{vA1}, {srd(SWS)}, s{sT0} offen sc1")
    g("s_mov_b64 exec, -1")
    vP1, vP2 = vT6, vT7
    g(f"v_and_b32 v{vP2}, 7, v0")
    g(f"v_mul_u32_u24 v{vP2}, {REC}, v{vP2}")
    g(f"v_bfe_u32 v{vP1}, v0, 3, 1")
    g(f"v_lshl_add_u32 v{vP1}, v{vP1}, 7, v{vP2}")
    g(f"v_lshrrev_b32 v{vA2}, 4, v0")
    g(f"v_lshl_add_u32 v{vP1}, v{vA2}, 5, v{vP1}")
    g(f"s_lshl_b32 s{sT3}, s2, 13")
    g(f"s_add_u32 s{sT3}, s{sT3}, {hex(W_IN + IN_H1)}")
    D = X + 32
    ST = X + 40
    def poll1():
        g(f"buffer_load_dwordx4 {vq(D)}, v{vP1}, {srd(SWS)}, s{sT3} offen sc1")
        g(f"buffer_load_dwordx4 {vq(D+4)}, v{vP1}, {srd(SWS)}, s{sT3} offen offset:16 sc1")
        g(f"buffer_load_dwordx2 {vq(ST,2)}, v{vP2}, {srd(SWS)}, s{sT3} offen offset:256 sc1")
    poll1()
    g(f"v_and_b32 v{vA1}, 15, v0")
    g(f"v_lshlrev_b32 v{vA1}, 13, v{vA1}")
    g(f"v_lshl_add_u32 v{vA1}, v{vA2}, 4, v{vA1}")
    g(f"s_lshl_b32 s{sT0}, s{sB}, 2")
    g(f"s_add_u32 s{sT0}, s{sT0}, s{sW}")
    g(f"s_lshl_b32 s{sT0}, s{sT0}, 17")
    g(f"s_lshl_b32 s{sT1}, s{sP}, 5")
    g(f"s_add_u32 s{sT0}, s{sT0}, s{sT1}")
    g(f"s_add_u32 s{sT0}, s{sT0}, {hex(W_IN)}")
    g(f"s_add_u32 s{sT1}, s{sT0}, {IN_Z}")
    g(f"s_add_u32 s{sT0}, s{sT0}, {IN_Y}")
    g(f"s_mov_b32 s{sMASK2}, 0xffff0000")
    g(f"s_mov_b32 s{sMASK2+1}, 0")
    g(f"s_mov_b32 s{sMASK}, -1")
    g(f"s_mov_b32 s{sMASK+1}, 0")
    g("s_waitcnt vmcnt(4)")
    ZT = X + 44
    ZO = X + 56
    gemv_tile(g, [W2_RAW + 4 * t for t in range(8)], HV, vO, ZT, True)
    WT = [W2_RAW + 32, W2_RAW]
    for e in range(2):
        perms(g, [WO_RAW + 4 * t for t in range(8)], e, WT[0] + 4 * e)
    for i in range(4):
        g(f"v_cndmask_b32 v{ZO+i}, v{vO+4*i}, v{vO+16+4*i}, s[{sMASK2}:{sMASK2+1}]")
    for i in range(4):
        g(f"v_bfi_b32 v{ZO+i}, v{vFF}, s{sTAG}, v{ZO+i}")
    g(f"s_mov_b64 exec, s[{sMASK}:{sMASK+1}]")
    g(f"buffer_store_dwordx4 {vq(ZO)}, v{vA1}, {srd(SWS)}, s{sT1} offen sc1")
    g("s_mov_b64 exec, -1")
    for e in range(2, 8):
        perms(g, [WO_RAW + 4 * t for t in range(8)], e, WT[0] + 4 * e)
    for e in range(8):
        perms(g, [WO_RAW + 32 + 4 * t for t in range(8)], e, WT[1] + 4 * e)
    g(f"s_mov_b32 s{sSPIN}, 0")
    g("s_waitcnt vmcnt(1)")
    g("s_branch L_chk1")
    g.label("L_poll1")
    poll1()
    g("s_waitcnt vmcnt(0)")
    g.label("L_chk1")
    C1, C2 = X + 42, X + 43
    tagcheck(g, [D + i for i in range(10)], C1, C2)
    g("s_cbranch_vccz L_got1")
    g(f"s_add_u32 s{sSPIN}, s{sSPIN}, 1")
    g(f"s_cmp_lt_u32 s{sSPIN}, {hex(spin_max)}")
    g("s_cbranch_scc1 L_poll1")
    g.label("L_got1")
    g.stamp(5)
    g(f"v_and_b32 v{ST}, s{sHI}, v{ST}")
    g("s_nop 1")
    g(f"v_max_f32_dpp v{C1}, v{ST}, v{ST} row_ror:1 row_mask:0xf bank_mask:0xf")
    for r in (2, 4):
        g("s_nop 1")
        g(f"v_max_f32_dpp v{C1}, v{C1}, v{C1} row_ror:{r} row_mask:0xf bank_mask:0xf")
    g(f"v_sub_f32 v{C1}, v{ST}, v{C1}")
    g(f"v_mul_f32 v{C1}, s{sLOG2E}, v{C1}")
    g(f"v_exp_f32 v{C1}, v{C1}")
    g("s_nop 0")
    g(f"v_mul_f32 v{C2}, v{C1}, v{ST+1}")
    for i in range(2):
        g(f"v_mul_f32 v{D+i}, v{C1}, v{D+i}")
    g(f"v_add_f32_dpp v{C2}, v{C2}, v{C2} row_ror:1 row_mask:0xf bank_mask:0xf")
    for i in range(2, 4):
        g(f"v_mul_f32 v{D+i}, v{C1}, v{D+i}")
    g(f"v_add_f32_dpp v{C2}, v{C2}, v{C2} row_ror:2 row_mask:0xf bank_mask:0xf")
    for i in range(4, 6):
        g(f"v_mul_f32 v{D+i}, v{C1}, v{D+i}")
    g(f"v_add_f32_dpp v{C2}, v{C2}, v{C2} row_ror:4 row_mask:0xf bank_mask:0xf")
    for i in range(6, 8):
        g(f"v_mul_f32 v{D+i}, v{C1}, v{D+i}")
    g(f"v_rcp_f32 v{C2}, v{C2}")
    for mode in ("quad_perm:[1,0,3,2]", "quad_perm:[2,3,0,1]", "row_half_mirror"):
        for i in range(8):
            g(f"v_add_f32_dpp v{D+i}, v{D+i}, v{D+i} {mode} row_mask:0xf bank_mask:0xf")
    for i in range(8):
        g(f"v_mul_f32 v{D+i}, v{C2}, v{D+i}")
    B0, B1 = X + 44, X + 48
    for i in range(4):
        g(f"v_cvt_pk_bf16_f32 v{B0+i}, v{D+2*i}, v{D+2*i+1}")
    g("s_nop 0")
    for i in range(4):
        g(f"v_mov_b32_dpp v{B1+i}, v{B0+i} row_ror:8 row_mask:0xf bank_mask:0xf")
    for e in range(8):
        g(f"v_mfma_f32_16x16x32_bf16 {vq(vO+4*e)}, {vq(B0)}, {vq(WT[0]+4*e)}, 0")
    for e in range(8):
        g(f"v_mfma_f32_16x16x32_bf16 {vq(vO+4*e)}, {vq(B1)}, {vq(WT[1]+4*e)}, {vq(vO+4*e)}")
    g("s_nop 4")
    YO = X + 52
    for i in range(4):
        g(f"v_cndmask_b32 v{YO+i}, v{vO+4*i}, v{vO+16+4*i}, s[{sMASK2}:{sMASK2+1}]")
    for i in range(4):
        g(f"v_bfi_b32 v{YO+i}, v{vFF}, s{sTAG}, v{YO+i}")
    g(f"s_mov_b64 exec, s[{sMASK}:{sMASK+1}]")
    g(f"buffer_store_dwordx4 {vq(YO)}, v{vA1}, {srd(SWS)}, s{sT0} offen sc1")
    g("s_mov_b64 exec, -1")
    g.stamp(6)
    g("s_branch L_fin")

    g.label("L_helper")
    g("s_setprio 3")
    g.srd_consts(SX, 4096)
    g.srd_consts(SWQ, 512 * 4096 * 2)
    hX = 8
    hF = 12
    hT = 20
    hACC = 32
    RING = [96 + 32 * i for i in range(4)]
    hA = 224
    vW, vX, vTAG = 1, 2, 6
    XR = 64
    XF = 80
    WF = 128
    g(f"v_and_b32 v3, 3, v0")
    g(f"v_lshlrev_b32 v{vX}, 10, v3")
    g(f"v_bfe_u32 v4, v0, 2, 2")
    g(f"v_lshl_add_u32 v{vX}, v4, 6, v{vX}")
    g(f"v_lshrrev_b32 v5, 4, v0")
    g(f"v_lshl_add_u32 v{vX}, v5, 4, v{vX}")
    g(f"v_lshrrev_b32 v{vW}, 1, v0")
    g(f"v_lshlrev_b32 v{vW}, 13, v{vW}")
    g(f"v_and_b32 v7, 1, v0")
    g(f"v_lshl_add_u32 v{vW}, v7, 4, v{vW}")
    sCI = sIT
    g(f"s_lshl_b32 s{sCI}, s{sH}, 5")
    g(f"s_lshr_b32 s{sT1}, s2, 3")
    g(f"s_add_u32 s{sCI}, s{sCI}, s{sT1}")
    g(f"s_lshl_b32 s{sA}, s{sCI}, 5")
    if 'wq' in skip:
        g(f"s_mov_b32 s{sA}, 0x10000000")
    for i in range(1, 4):
        g(f"v_add_u32 v{11+i}, {hex(i*(32*8192 - 1024))}, v{vW}")
    for i in range(1, 4):
        g(f"s_add_u32 s{sT0+i-1}, s{sA}, {hex(i*128*8192)}")
    g(f"v_lshlrev_b32 v7, 2, v3")
    g(f"s_mov_b32 s{sT3}, {hex(W_EP)}")
    g(f"s_mov_b32 m0, {L_WQ}")
    g("s_waitcnt lgkmcnt(0)")
    for j in range(4):
        g(f"buffer_load_dwordx4 {vq(XR+4*j)}, v{vX}, {srd(SX)}, 0 offen offset:{256*j} {xflags}")
    g(f"buffer_load_dword v{vTAG}, v7, {srd(SWS)}, s{sT3} offen {epflags}")
    for q4 in range(4):
        so = sA if q4 == 0 else sT0 + q4 - 1
        for i in range(4):
            vo = vW if i == 0 else 11 + i
            g(f"buffer_load_dwordx4 v{vo}, {srd(SWQ)}, s{so} offen offset:{1024*i} {wflags} lds")
        if q4 < 3:
            g(f"s_add_u32 m0, m0, 4096")
            g("s_nop 0")
    if fine: g.stamp(7)
    if bar0:
        g("s_barrier")
    for (b_, off, nb) in ((SW1, 48, 512 * 1792 * 2), (SB1, 56, 1792 * 2), (SB2, 72, 1024), (SOUT, 80, 4096)):
        g.srd_load(b_, off)
        g.srd_consts(b_, nb)
    g(f"s_lshl_b32 s{sIN}, s2, 13")
    g(f"s_add_u32 s{sIN}, s{sIN}, {hex(W_IN)}")
    vQS = 8
    g(f"v_lshlrev_b32 v{vQS}, 14, v3")
    g(f"v_lshl_add_u32 v{vQS}, v5, 4, v{vQS}")
    g(f"s_lshl_b32 s{sT2}, s{sH}, 11")
    g(f"s_lshl_b32 s{sT1}, s{sCI}, 6")
    g(f"s_lshl_b32 s{sT3}, s{sB}, 14")
    g(f"s_add_u32 s{sT2}, s{sT2}, s{sT3}")
    vTR = 9
    g(f"v_and_b32 v{vTR}, 15, v0")
    g(f"v_lshlrev_b32 v{vTR}, 3, v{vTR}")
    g(f"v_lshl_add_u32 v{vTR}, v5, 8, v{vTR}")
    g(f"s_mov_b32 s{sMASK}, 0x000f000f")
    g(f"s_mov_b32 s{sMASK+1}, 0x000f000f")
    def red4(v, t):
        for r in (4, 8):
            g("s_nop 1")
            g(f"v_add_f32_dpp v{v}, v{v}, v{v} row_ror:{r} row_mask:0xf bank_mask:0xf")
        for sw in ("v_permlane16_swap_b32", "v_permlane32_swap_b32"):
            g(f"v_mov_b32 v{t}, v{v}")
            g("s_nop 1")
            g(f"{sw} v{v}, v{t}")
            g(f"v_add_f32 v{v}, v{v}, v{t}")
    def unpack16():
        for i in range(16):
            g(f"v_lshlrev_b32 v{XF+2*i}, 16, v{XR+i}")
            g(f"v_and_b32 v{XF+2*i+1}, s{sHI}, v{XR+i}")
    def pack16():
        for i in range(16):
            g(f"v_cvt_pk_bf16_f32 v{XR+i}, v{XF+2*i}, v{XF+2*i+1}")
    g("s_waitcnt vmcnt(17)")
    if fine: g.stamp(8)
    unpack16()
    g(f"v_pk_add_f32 {vq(hT,2)}, {vq(XF,2)}, {vq(XF+2,2)}")
    g(f"v_pk_add_f32 {vq(hT+2,2)}, {vq(XF+4,2)}, {vq(XF+6,2)}")
    for i in range(4, 16):
        d = hT + 2 * (i & 1)
        g(f"v_pk_add_f32 {vq(d,2)}, {vq(d,2)}, {vq(XF+2*i,2)}")
    g(f"v_pk_add_f32 {vq(hT,2)}, {vq(hT,2)}, {vq(hT+2,2)}")
    g(f"v_add_f32 v{hT}, v{hT}, v{hT+1}")
    red4(hT, hT + 1)
    g(f"v_mul_f32 v{hT}, {f32(-1.0/512)}, v{hT}")
    g(f"v_mov_b32 v{hT+1}, v{hT}")
    for i in range(16):
        t = hT + 6 + 2 * (i & 1)
        d = hT + 2 + 2 * (i & 1)
        g(f"v_pk_add_f32 {vq(t,2)}, {vq(XF+2*i,2)}, {vq(hT,2)}")
        if i < 2:
            g(f"v_pk_mul_f32 {vq(d,2)}, {vq(t,2)}, {vq(t,2)}")
        else:
            g(f"v_pk_fma_f32 {vq(d,2)}, {vq(t,2)}, {vq(t,2)}, {vq(d,2)}")
    g(f"v_pk_add_f32 {vq(hT+2,2)}, {vq(hT+2,2)}, {vq(hT+4,2)}")
    g(f"v_add_f32 v{hT+2}, v{hT+2}, v{hT+3}")
    rne(g, hT, hT)
    g(f"v_mov_b32 v{hT+1}, v{hT}")
    red4(hT + 2, hT + 3)
    g(f"v_mul_f32 v{hT+2}, {f32(1.0/512)}, v{hT+2}")
    rne(g, hT + 2, hT + 2)
    g(f"v_add_f32 v{hT+2}, {f32(1e-5)}, v{hT+2}")
    rne(g, hT + 2, hT + 2)
    g(f"v_sqrt_f32 v{hT+2}, v{hT+2}")
    for i in range(16):
        g(f"v_pk_add_f32 {vq(XF+2*i,2)}, {vq(XF+2*i,2)}, {vq(hT,2)}")
    rne(g, hT + 2, hT + 2)
    g(f"v_rcp_f32 v{hT+4}, v{hT+2}")
    pack16()
    g(f"v_mov_b32 v{hT+5}, v{hT+4}")
    unpack16()
    for i in range(16):
        g(f"v_pk_mul_f32 {vq(XF+2*i,2)}, {vq(XF+2*i,2)}, {vq(hT+4,2)}")
    pack16()
    g.stamp(1)
    g("s_waitcnt vmcnt(16)")
    g(f"v_add_u32 v{vTAG}, 1, v{vTAG}")
    g(f"v_mov_b32 v{hT+1}, v{vTAG}")
    g(f"v_mov_b32 v{hT+3}, v{vTAG}")
    g(f"v_readlane_b32 s{sTAG}, v{vTAG}, s{sB}")
    g(f"v_lshlrev_b32 v3, 5, v0")
    g(f"v_lshlrev_b32 v4, 4, v0")
    for j in range(4):
        g(f"s_waitcnt vmcnt({12-4*j})")
        for kb in range(4 * j, 4 * j + 4):
            g(f"ds_read_b64_tr_b16 {vq(WF+4*kb,2)}, v{vTR} offset:{L_WQ + 1024*kb}")
            g(f"ds_read_b64_tr_b16 {vq(WF+4*kb+2,2)}, v{vTR} offset:{L_WQ + 1024*kb + 128}")
        if j == 3 and fine: g.stamp(9)
        g("s_waitcnt lgkmcnt(0)")
        for kq in range(4):
            c = "0" if j == 0 else vq(hACC + 4 * kq)
            g(f"v_mfma_f32_16x16x32_bf16 {vq(hACC+4*kq)}, {vq(WF+4*(4*j+kq))}, {vq(XR+4*j)}, {c}")
    g("s_nop 5")
    for kq in range(1, 4):
        for r in range(4):
            g(f"v_add_f32_dpp v{hACC+r}, v{hACC+4*kq+r}, v{hACC+r} row_shl:{4*kq} row_mask:0xf bank_mask:0xf bound_ctrl:0")
    g(f"v_cvt_pk_bf16_f32 v{hT}, v{hACC}, v{hACC+1}")
    g(f"v_cvt_pk_bf16_f32 v{hT+2}, v{hACC+2}, v{hACC+3}")
    g(f"s_mov_b32 s{sSPIN}, 0")
    g(f"s_mov_b64 exec, s[{sMASK}:{sMASK+1}]")
    g(f"buffer_store_dwordx4 {vq(hT)}, v{vQS}, {srd(SWS)}, s{sT1} offen {sflags}")
    g("s_mov_b64 exec, -1")
    if not fine: g.stamp(2)
    g(f"v_and_b32 v5, 3, v0")
    g(f"v_cmp_eq_u32 vcc, s{sB}, v5")
    g(f"v_and_b32 v7, 0x3ff, v{vX}")
    g(f"s_and_saveexec_b64 s[{sMASK}:{sMASK+1}], vcc")
    for j in range(4):
        g(f"ds_write_b128 v7, {vq(XR+4*j)} offset:{L_XN + 256*j}")
    g("s_mov_b64 exec, -1")
    g(f"v_mov_b32 v7, 0")
    g(f"v_mov_b32 v10, s{sTAG}")
    g(f"ds_write_b32 v7, v10 offset:{L_TAG}")
    g(f"v_lshrrev_b32 v{vW}, 2, v0")
    g(f"s_mov_b32 s{sT0}, {8*3584}")
    g(f"v_mul_lo_u32 v{vW}, v{vW}, s{sT0}")
    g(f"v_lshl_add_u32 v{vW}, v5, 4, v{vW}")
    for i in range(1, 4):
        g(f"v_add_u32 v{11+i}, {2*3584*i}, v{vW}")
    g(f"s_mul_i32 s{sA}, s{sH}, 7")
    g(f"s_add_u32 s{sA}, s{sA}, s{sS}")
    g(f"s_lshl_b32 s{sA}, s{sA}, 6")
    g(f"s_cmp_eq_u32 s{sS}, 7")
    g(f"s_cselect_b32 s{sA}, 0x10000000, s{sA}")
    if 'ffn' in skip:
        g(f"s_mov_b32 s{sA}, 0x10000000")
    for i in range(1, 4):
        g(f"s_add_u32 s{8+i}, s{sA}, {128*3584*i}")
    g(f"v_lshlrev_b32 v15, 4, v5")
    g(f"buffer_load_dwordx4 {vq(hX)}, v15, {srd(SB1)}, s{sA} offen")
    for grp in range(4):
        so = sA if grp == 0 else 8 + grp
        for t in range(8):
            vo = vW if t < 2 else 11 + t // 2
            g(f"buffer_load_dwordx4 {vq(RING[grp]+4*t)}, v{vo}, {srd(SW1)}, s{so} offen offset:{3584*(t&1)} {wflags}")
    if fine: g.stamp(10)
    g(f"v_mov_b32 v4, v15")
    vFO = 5
    g(f"v_lshrrev_b32 v{vFO}, 4, v0")
    g(f"v_lshlrev_b32 v{vFO}, 2, v{vFO}")
    g(f"s_lshl_b32 s{sT0}, s{sP}, 4")
    g(f"s_lshl_b32 s{sT1}, s{sB}, 10")
    g(f"s_add_u32 s{sT1}, s{sT1}, s{sT0}")
    g(f"buffer_load_dword v6, v{vFO}, {srd(SX)}, s{sT1} offen")
    g(f"buffer_load_dword v7, v{vFO}, {srd(SB2)}, s{sT0} offen")
    g("s_waitcnt lgkmcnt(0)")
    g(f"v_lshrrev_b32 v{hT}, 4, v0")
    g(f"v_lshlrev_b32 v{hT}, 6, v{hT}")
    g(f"v_add_u32 v{hT}, v{hT}, v4")
    for i in range(4):
        g(f"ds_read_b128 {vq(hA+4*i)}, v{hT} offset:{L_XN + 256*i}")
    g("s_waitcnt lgkmcnt(0)")
    for grp in range(4):
        g(f"s_waitcnt vmcnt({8*(3-grp)+2})")
        gemv_tile(g, [RING[grp] + 4 * t for t in range(8)], hA + 4 * grp, hACC, hT, grp == 0)
    g("s_nop 7")
    for e in range(8):
        g(f"v_add_f32_dpp v{hF+e}, v{hACC+4*e+1}, v{hACC+4*e} row_shl:4 row_mask:0xf bank_mask:0xf bound_ctrl:0")
    for e in range(8):
        g(f"v_add_f32_dpp v{hF+e}, v{hACC+4*e+2}, v{hF+e} row_shl:8 row_mask:0xf bank_mask:0xf bound_ctrl:0")
    for e in range(8):
        g(f"v_add_f32_dpp v{hF+e}, v{hACC+4*e+3}, v{hF+e} row_shl:12 row_mask:0xf bank_mask:0xf bound_ctrl:0")
    def round8():
        for i in range(4):
            g(f"v_cvt_pk_bf16_f32 v{hT+i}, v{hF+2*i}, v{hF+2*i+1}")
        for i in range(4):
            g(f"v_lshlrev_b32 v{hF+2*i}, 16, v{hT+i}")
            g(f"v_and_b32 v{hF+2*i+1}, s{sHI}, v{hT+i}")
    round8()
    for i in range(4):
        g(f"v_lshlrev_b32 v{hT+4}, 16, v{hX+i}")
        g(f"v_and_b32 v{hT+5}, s{sHI}, v{hX+i}")
        g(f"v_add_f32 v{hF+2*i}, v{hF+2*i}, v{hT+4}")
        g(f"v_add_f32 v{hF+2*i+1}, v{hF+2*i+1}, v{hT+5}")
    round8()
    for i in range(8):
        g(f"v_max_f32 v{hF+i}, 0, v{hF+i}")
    for i in range(8):
        g(f"v_mul_f32 v{hF+i}, v{hF+i}, v{hF+i}")
    for i in range(4):
        g(f"v_cvt_pk_bf16_f32 v{hT+i}, v{hF+2*i}, v{hF+2*i+1}")
    g("s_mov_b64 exec, 0xf")
    g(f"ds_write_b128 v4, {vq(hT)} offset:{L_H}")
    g("s_mov_b64 exec, -1")
    if fine: g.stamp(2)
    g(f"v_lshlrev_b32 v2, 4, v0")
    QG = 40
    g.label("L_pollq")
    if qsleep:
        g(f"s_sleep {qsleep}")
    g(f"buffer_load_dwordx4 {vq(QG)}, v3, {srd(SWS)}, s{sT2} offen {pflags}")
    g(f"buffer_load_dwordx4 {vq(QG+4)}, v3, {srd(SWS)}, s{sT2} offen offset:16 {pflags}")
    g("s_waitcnt vmcnt(0)")
    g(f"v_xor_b32 v{QG+1}, s{sTAG}, v{QG+1}")
    g(f"v_xor_b32 v{QG+3}, s{sTAG}, v{QG+3}")
    g(f"v_xor_b32 v{QG+5}, s{sTAG}, v{QG+5}")
    g(f"v_xor_b32 v{QG+7}, s{sTAG}, v{QG+7}")
    g(f"v_or3_b32 v{QG+1}, v{QG+1}, v{QG+3}, v{QG+5}")
    g(f"v_or_b32 v{QG+1}, v{QG+1}, v{QG+7}")
    g(f"v_cmp_ne_u32 vcc, 0, v{QG+1}")
    g("s_cbranch_vccz L_gotq")
    g(f"s_add_u32 s{sSPIN}, s{sSPIN}, 1")
    g(f"s_cmp_lt_u32 s{sSPIN}, {hex(spin_max)}")
    g("s_cbranch_scc1 L_pollq")
    g.label("L_gotq")
    g.stamp(4)
    g(f"v_mov_b32 v{QG+1}, v{QG+2}")
    g(f"v_mov_b32 v{QG+2}, v{QG+4}")
    g(f"v_mov_b32 v{QG+3}, v{QG+6}")
    g(f"ds_write_b128 v2, {vq(QG)} offset:{L_Q}")
    if diag and probe is None:
        g(f"s_mov_b32 s{sSTAMP+6}, s{sSPIN}")
    g.stamp(5)
    g("s_waitcnt lgkmcnt(0)")
    g("s_barrier")
    g("s_setprio 0")
    g(f"s_add_u32 s{sT2}, s{sIN}, {IN_Z}")
    g(f"s_add_u32 s{sT3}, s{sIN}, {IN_Y}")
    g.stamp(6)
    g("s_waitcnt lgkmcnt(0)")
    g("s_barrier")
    if not fine: g.stamp(7)

    def poll8(tag, so, R):
        g(f"s_mov_b32 s{sSPIN}, 0")
        g.label(f"L_poll{tag}")
        g(f"buffer_load_dwordx4 {vq(R)}, v3, {srd(SWS)}, s{so} offen sc1")
        g(f"buffer_load_dwordx4 {vq(R+4)}, v3, {srd(SWS)}, s{so} offen offset:16 sc1")
        g("s_waitcnt vmcnt(0)")
        tagcheck(g, [R + i for i in range(8)], hT, hT + 1)
        g(f"s_cbranch_vccz L_got{tag}")
        g(f"s_add_u32 s{sSPIN}, s{sSPIN}, 1")
        g(f"s_cmp_lt_u32 s{sSPIN}, {hex(spin_max)}")
        g(f"s_cbranch_scc1 L_poll{tag}")
        g.label(f"L_got{tag}")

    def round2(a, t):
        g(f"v_cvt_pk_bf16_f32 v{t}, v{a}, v{a+1}")
        g(f"v_lshlrev_b32 v{a}, 16, v{t}")
        g(f"v_and_b32 v{a+1}, s{sHI}, v{t}")

    Z, Y = 32, 40
    poll8("z", sT2, Z)
    if not fine: g.stamp(8)
    reduce64x8(g, Z)
    round2(Z, hT)
    g(f"v_lshlrev_b32 v{hT+2}, 16, v7")
    g(f"v_and_b32 v{hT+3}, s{sHI}, v7")
    g(f"v_add_f32 v{Z}, v{Z}, v{hT+2}")
    g(f"v_add_f32 v{Z+1}, v{Z+1}, v{hT+3}")
    round2(Z, hT)
    for i in range(2):
        g(f"v_mul_f32 v{hT+2+i}, {f32(-LOG2E)}, v{Z+i}")
    for i in range(2):
        g(f"v_exp_f32 v{hT+2+i}, v{hT+2+i}")
    g("s_nop 0")
    for i in range(2):
        g(f"v_add_f32 v{hT+2+i}, 1.0, v{hT+2+i}")
    for i in range(2):
        g(f"v_rcp_f32 v{hT+2+i}, v{hT+2+i}")
    g("s_nop 0")
    for i in range(2):
        g(f"v_mul_f32 v{Z+i}, v{Z+i}, v{hT+2+i}")
    round2(Z, hT)
    g(f"v_lshlrev_b32 v{Z+2}, 16, v6")
    g(f"v_and_b32 v{Z+3}, s{sHI}, v6")
    g(f"s_mov_b32 s{sMASK}, 0x00010001")
    g(f"s_mov_b32 s{sMASK+1}, 0x00010001")
    poll8("y", sT3, Y)
    if not fine: g.stamp(9)
    reduce64x8(g, Y)
    round2(Y, hT)
    for i in range(2):
        g(f"v_mul_f32 v{Y+i}, v{Y+i}, v{Z+i}")
    round2(Y, hT)
    for i in range(2):
        g(f"v_add_f32 v{Y+i}, v{Y+i}, v{Z+2+i}")
    g(f"v_cvt_pk_bf16_f32 v{hT}, v{Y}, v{Y+1}")
    g(f"s_mov_b64 exec, s[{sMASK}:{sMASK+1}]")
    g(f"buffer_store_dword v{hT}, v{vFO}, {srd(SOUT)}, s{sT1} offen")
    g(f"s_cmp_lg_u32 s{sP}, 0")
    g("s_cbranch_scc1 L_noep")
    g(f"s_lshl_b32 s{sT0}, s{sB}, 2")
    g(f"s_add_u32 s{sT0}, s{sT0}, {hex(W_EP)}")
    g("s_mov_b64 exec, 1")
    g(f"v_mov_b32 v10, s{sTAG}")
    g(f"buffer_store_dword v10, v3, {srd(SWS)}, s{sT0} offen sc1")
    g.label("L_noep")
    g("s_mov_b64 exec, -1")
    if not fine: g.stamp(10)

    g.label("L_fin")
    if probe is not None:
        role, idx = probe
        g("s_waitcnt vmcnt(0)")
        g.stamp(11)
        g("s_waitcnt lgkmcnt(0)")
        g(f"s_mov_b32 s{sT0}, s{sSTAMP}")
        if role == 'wg':
            g(f"s_cmp_lg_u32 s2, {idx}")
            g("s_cbranch_scc1 L_end")
            g(f"s_cmp_lg_u32 s{sWAVE}, 0")
            g("s_cbranch_scc1 L_end")
        g(f"s_cmp_eq_u32 s{sWAVE}, 0")
        if role == 'h':
            g(f"s_cselect_b32 s{sT0}, s{sSTAMP+2*idx}, s{sT0}")
        elif role == 's':
            g(f"s_cselect_b32 s{sT0}, s{sT0}, s{sSTAMP+2*idx}")
        g(f"s_add_u32 s{sT0}, s{sT0}, 10000")
        g.label("L_probe")
        g(f"s_memrealtime s[{sSTAMP+2}:{sSTAMP+3}]")
        g("s_waitcnt lgkmcnt(0)")
        g(f"s_sub_u32 s{sT1}, s{sSTAMP+2}, s{sT0}")
        g(f"s_cmp_lt_i32 s{sT1}, 0")
        g("s_cbranch_scc1 L_probe")
    if diag:
        g("s_waitcnt vmcnt(0)")
        g.stamp(11)
        g("s_waitcnt lgkmcnt(0)")
        g(f"s_mul_i32 s{sT0}, s2, 5")
        g(f"s_add_u32 s{sT0}, s{sT0}, s{sWAVE}")
        g(f"s_lshl_b32 s{sT0}, s{sT0}, 6")
        g(f"s_add_u32 s{sT0}, s{sT0}, {hex(W_DIAG)}")
        for i in range(12):
            g(f"v_mov_b32 v{8+i}, s{sSTAMP+2*i}")
        g(f"v_mov_b32 v20, s{sSPIN}")
        g("s_getreg_b32 s3, hwreg(HW_REG_XCC_ID)")
        g("v_mov_b32 v21, s3")
        g("v_mov_b32 v22, 0")
        g("v_mov_b32 v23, 0")
        g("v_mov_b32 v1, 0")
        g("s_mov_b64 exec, 1")
        for i in range(4):
            g(f"buffer_store_dwordx4 {vq(8+4*i)}, v1, {srd(SWS)}, s{sT0} offen offset:{16*i}")
    g.label("L_end")
    g("s_endpgm")
    out += g.L
    out += ['.section .rodata,"a"', ".p2align 6", f".amdhsa_kernel {NAME}_kernel",
            "  .amdhsa_next_free_vgpr 256", "  .amdhsa_next_free_sgpr 102", "  .amdhsa_accum_offset 256",
            "  .amdhsa_group_segment_fixed_size 0", "  .amdhsa_kernarg_size 104", "  .amdhsa_user_sgpr_count 2",
            "  .amdhsa_user_sgpr_kernarg_segment_ptr 1", "  .amdhsa_system_sgpr_workgroup_id_x 1",
            "  .amdhsa_float_denorm_mode_32 3",
            ".end_amdhsa_kernel"]
    return "\n".join(out) + "\n"


if __name__ == "__main__":
    kw = eval("dict(%s)" % (sys.argv[2] if len(sys.argv) > 2 else ""))
    open(sys.argv[1], "w").write(gen(**kw))
```

```python
import sys, struct

NAME = "recurrent_scan__gqa_block_cached__dense_activation_squared_relu__decode"

HEADER = """; Kernarg layout for this problem (104 bytes, ptrs only, base s[0:1]):
;   offset  24: d_in[3] A_wq  shape=(512, 4096) dtype=bfloat16
;   offset  32: d_in[4] A_wo  shape=(4096, 512) dtype=bfloat16
;   offset  96: d_ws      workspace (q hand-off, per-workgroup inboxes)
; Generated by a python script of the author (work/gen.py).
; One workgroup per (batch b, kv head h, key split s): wave 0 = helper (layernorm, q slice, FFN hidden
"""

def f32(x):
    return "0x%08x" % struct.unpack("<I", struct.pack("<f", x))[0]

LOG2E = 1.4426950408889634
SCALE = 128 ** -0.5

L_Q, L_G, L_TAG, L_STAT, L_PART = 0, 1024, 2112, 2304, 4096
L_WQ, L_W1, L_W2, L_WO, L_SIZE = 12288, 28672, 36864, 45056, 61440
W_OUT = 0x10000
O_Q, O_H, O_Z, O_Y, O_P = 0, 1024, 2048, 3072, 4096
REC = 640
W_EP = 0x220000
W_TK = 0x230000
W_DIAG = 0x280000
W_SIZE = 0x400000
OOB = 0x10000000

SK, SV, SWS, SWO, SW2, SX, SWQ, SW1, SB1, SB2, SOUT = 8, 12, 16, 20, 24, 28, 32, 36, 40, 44, 48
sWAVE, sB, sH, sS, sP = 3, 4, 5, 6, 7
sDYN, sTKV, sTKO, sDR = 52, 53, 54, 55
sSELLO, sSELHI, sSCALE, sLOG2E, sA, sBo, sIT = 56, 57, 58, 59, 60, 61, 62
sT0, sT1, sT2, sT3, sT4 = 63, 64, 65, 66, 67
sMASK = 68
sMASK2 = 70
sSPIN = 72
sHI = 73
sW = 74
sTAG = 75
sSTAMP = 76


class G:
    def __init__(self, diag=False):
        self.L = []
        self.diag = diag
        self.nstamp = {}

    def __call__(self, s):
        self.L.append("  " + s)

    def label(self, s):
        self.L.append(s + ":")

    def comment(self, s):
        self.L.append("  ; " + s)

    def stamp(self, i):
        if self.diag:
            self(f"s_memrealtime s[{sSTAMP+2*i}:{sSTAMP+2*i+1}]")

    def srd_consts(self, base, nbytes):
        self(f"s_mov_b32 s{base+2}, {hex(nbytes)}")
        self(f"s_mov_b32 s{base+3}, 0x20000")

    def srd_load(self, base, off):
        self(f"s_load_dwordx2 s[{base}:{base+1}], s[0:1], {off}")


def srd(b):
    return f"s[{b}:{b+3}]"


def vq(r, n=4):
    return f"v[{r}:{r+n-1}]"


def perms(g, raw, e, dst):
    sel = sSELHI if (e & 1) else sSELLO
    for j in range(4):
        g(f"v_perm_b32 v{dst+j}, v{raw[2*j+1] + (e >> 1)}, v{raw[2*j] + (e >> 1)}, s{sel}")


def gemv_tile(g, raw, vec, acc, tmp, first, wside_a=False):
    nq = 3
    perms(g, raw, 0, tmp)
    perms(g, raw, 1, tmp + 4)
    for e in range(8):
        t = tmp + 4 * (e % nq)
        if e + 2 < 8:
            perms(g, raw, e + 2, tmp + 4 * ((e + 2) % nq))
        c = "0" if first else vq(acc + 4 * e)
        if wside_a:
            g(f"v_mfma_f32_16x16x32_bf16 {vq(acc+4*e)}, {vq(t)}, {vq(vec)}, {c}")
        else:
            g(f"v_mfma_f32_16x16x32_bf16 {vq(acc+4*e)}, {vq(vec)}, {vq(t)}, {c}")


def rne(g, dst, src):
    g(f"v_cvt_pk_bf16_f32 v{dst}, v{src}, v{src}")
    g(f"v_lshlrev_b32 v{dst}, 16, v{dst}")


def wave_sum(g, v, t):
    for r in (8, 4, 2, 1):
        g("s_nop 1")
        g(f"v_add_f32_dpp v{v}, v{v}, v{v} row_ror:{r} row_mask:0xf bank_mask:0xf")
    for sw in ("v_permlane16_swap_b32", "v_permlane32_swap_b32"):
        g(f"v_mov_b32 v{t}, v{v}")
        g("s_nop 1")
        g(f"{sw} v{v}, v{t}")
        g(f"v_add_f32 v{v}, v{v}, v{t}")


def tagcheck(g, regs, c1, c2):
    def tree(op3, op2, dst):
        r = list(regs)
        g(f"{op3} v{dst}, v{r[0]}, v{r[1]}, v{r[2]}" + (" bitop3:0x80" if "bitop" in op3 else ""))
        r = r[3:]
        while len(r) >= 2:
            g(f"{op3} v{dst}, v{dst}, v{r[0]}, v{r[1]}" + (" bitop3:0x80" if "bitop" in op3 else ""))
            r = r[2:]
        if r:
            g(f"{op2} v{dst}, v{dst}, v{r[0]}")
    tree("v_bitop3_b32", "v_and_b32", c1)
    tree("v_or3_b32", "v_or_b32", c2)
    g(f"v_bitop3_b32 v{c1}, v{c1}, v{c2}, s{sTAG} bitop3:0x7e")
    g(f"v_and_b32 v{c1}, 0xff, v{c1}")
    g(f"v_cmp_ne_u32 vcc, 0, v{c1}")


def reduce32x4(g, a):
    g(f"v_permlane32_swap_b32 v{a}, v{a+2}")
    g(f"v_permlane32_swap_b32 v{a+1}, v{a+3}")
    g(f"v_add_f32 v{a}, v{a}, v{a+2}")
    g(f"v_add_f32 v{a+1}, v{a+1}, v{a+3}")
    g("s_nop 1")
    g(f"v_permlane16_swap_b32 v{a}, v{a+1}")
    g(f"v_add_f32 v{a}, v{a}, v{a+1}")
    for r in (8, 4, 2):
        g("s_nop 1")
        g(f"v_add_f32_dpp v{a}, v{a}, v{a} row_ror:{r} row_mask:0xf bank_mask:0xf")


def gen(diag=False, kvflags="nt", wflags="", pace=11, spin_max=1 << 20, skip=(), probe=None, qwait=40, psleep=0,
        NS=16, zwait=3, wolate=True):
    ND = 512 - 32 * NS
    NSREF = NS - 3
    g = G(diag or probe is not None)
    out = [HEADER + f"; @launch grid=(256,1,1) block=(320,1,1) lds={L_SIZE}",
           '.amdgcn_target "amdgcn-amd-amdhsa--gfx950"', ".text", f".globl {NAME}_kernel", ".p2align 8",
           f".type {NAME}_kernel,@function", f"{NAME}_kernel:"]

    def poll(tag, loads, regs, t, sleep, restore="-1"):
        g(f"s_mov_b32 s{sSPIN}, 0")
        g.label(f"L_poll{tag}")
        for l in loads:
            g(l)
        g("s_waitcnt vmcnt(0)")
        tagcheck(g, regs, t, t + 1)
        g(f"s_cbranch_vccz L_got{tag}")
        g("s_mov_b64 exec, vcc")
        if sleep:
            g(f"s_sleep {sleep}")
        g(f"s_add_u32 s{sSPIN}, s{sSPIN}, 1")
        g(f"s_cmp_lt_u32 s{sSPIN}, {hex(spin_max)}")
        g(f"s_cbranch_scc1 L_poll{tag}")
        g.label(f"L_got{tag}")
        g("s_mov_b64 exec, -1")

    g("s_cmp_ge_u32 s2, 256")
    g("s_cbranch_scc1 L_end")
    g.srd_load(SX, 0)
    g.srd_load(SWQ, 24)
    g.srd_load(SWS, 96)
    g.srd_load(SK, 8)
    g.srd_load(SV, 16)
    g.srd_consts(SWS, W_SIZE)
    g.stamp(0)
    g("v_lshrrev_b32 v1, 6, v0")
    g("v_and_b32 v0, 63, v0")
    g(f"s_lshr_b32 s{sB}, s2, 6")
    g(f"v_readfirstlane_b32 s{sWAVE}, v1")
    g(f"s_and_b32 s{sH}, s2, 7")
    g(f"s_bfe_u32 s{sS}, s2, 0x30003")
    g(f"s_mov_b32 s{sHI}, 0xffff0000")
    g(f"s_lshl_b32 s{sT4}, s{sB}, 3")
    g(f"s_add_u32 s{sT4}, s{sT4}, s{sH}")
    if ND:
        g(f"s_lshl_b32 s{sTKV}, s{sT4}, 8")
        g(f"s_add_u32 s{sTKV}, s{sTKV}, {hex(W_TK)}")
    g(f"s_cmp_eq_u32 s{sWAVE}, 0")
    g("s_cbranch_scc1 L_helper")

    vK, vV, vM, vL, vMC, vT6, vT7 = 1, 2, 3, 4, 5, 6, 7
    vS, vQ, vO = 8, 16, 32
    SLOT = [64, 128, 192]
    g.srd_consts(SK, 0x8000000)
    g.srd_consts(SV, 0x8000000)
    g(f"s_sub_u32 s{sW}, s{sWAVE}, 1")
    g(f"s_lshl_b32 s{sDYN}, s{sT4}, 22")
    g(f"s_lshl_b32 s{sA}, s{sS}, 19")
    g(f"s_add_u32 s{sA}, s{sA}, s{sDYN}")
    g(f"s_lshl_b32 s{sT0}, s{sW}, 12")
    g(f"s_add_u32 s{sA}, s{sA}, s{sT0}")
    g(f"s_add_u32 s{sBo}, s{sA}, 0x4000")
    g(f"s_add_u32 s{sDYN}, s{sDYN}, {NS*0x8000}")
    g(f"v_and_b32 v{vT6}, 3, v0")
    g(f"v_lshlrev_b32 v{vK}, 10, v{vT6}")
    g(f"v_bfe_u32 v{vT6}, v0, 2, 2")
    g(f"v_lshl_add_u32 v{vK}, v{vT6}, 8, v{vK}")
    g(f"v_lshrrev_b32 v{vT6}, 4, v0")
    g(f"v_lshl_add_u32 v{vK}, v{vT6}, 4, v{vK}")
    g(f"v_lshlrev_b32 v{vV}, 4, v0")
    g("s_waitcnt lgkmcnt(0)")
    g.stamp(10)
    g("s_barrier")
    g.stamp(9)

    def kv_issue(X, paced=None):
        for (base, voff, rs, so, step) in ((X, vK, SK, sA, 64), (X + 16, vV, SV, sA, 1024),
                                           (X + 32, vK, SK, sBo, 64), (X + 48, vV, SV, sBo, 1024)):
            for j in range(4):
                g(f"buffer_load_dwordx4 {vq(base+4*j)}, v{voff}, {srd(rs)}, s{so} offen offset:{j*step} {kvflags}")
                if paced is not None:
                    g(f"s_waitcnt vmcnt({paced})")
        g(f"s_add_u32 s{sA}, s{sA}, 0x8000")
        g(f"s_add_u32 s{sBo}, s{sBo}, 0x8000")

    kv_issue(SLOT[0], pace)
    g.srd_load(SWO, 32)
    g.srd_load(SOUT, 80)
    g.srd_consts(SWO, 4096 * 512 * 2)
    g.srd_consts(SOUT, 4096)
    g(f"s_mov_b32 s{sSELLO}, 0x05040100")
    g(f"s_mov_b32 s{sSELHI}, 0x07060302")
    g(f"s_mov_b32 s{sLOG2E}, {f32(LOG2E)}")
    g(f"s_mov_b32 s{sSCALE}, {f32(SCALE)}")
    g(f"s_mov_b32 s{sIT}, 0")
    g(f"s_mov_b32 s{sDR}, 0")
    for i in range(32):
        g(f"v_mov_b32 v{vO+i}, 0")
    g(f"v_mov_b32 v{vM}, 0xff800000")
    g(f"v_mov_b32 v{vL}, 0")
    g(f"v_mov_b32 v{vMC}, 0")
    g(f"v_and_b32 v{vS}, 3, v0")
    g(f"v_lshlrev_b32 v{vS}, 8, v{vS}")
    g(f"v_lshl_add_u32 v{vS}, v{vT6}, 4, v{vS}")
    g(f"v_min_u32 v{vT7}, 1, v0")
    g(f"v_lshlrev_b32 v{vT7}, 28, v{vT7}")
    sD0 = 28
    g(f"s_lshl_b32 s{sD0}, s{sH}, 2")
    g(f"s_add_u32 s{sD0}, s{sD0}, s{sB}")
    g(f"s_lshl_b32 s{sD0}, s{sD0}, 6")
    g(f"s_add_u32 s{sD0}, s{sD0}, s{sW}")
    g(f"s_lshl_b32 s{sD0}, s{sD0}, 11")
    g(f"s_lshl_b32 s{sT0}, s{sS}, 7")
    g(f"s_add_u32 s{sD0}, s{sD0}, s{sT0}")
    if 'wo' in skip:
        g(f"s_mov_b32 s{sD0}, {hex(OOB)}")
    g(f"s_add_u32 s{sD0+1}, s{sD0}, {64*1024 - 2048}")
    sH1S, sH1G, sYS, sYG, sOO, sOOB, sLD = 36, 37, 39, 40, 41, 42, 43
    g(f"s_lshl_b32 s{sLD}, s{sW}, 12")
    g(f"s_add_u32 s{sLD}, s{sLD}, {L_WO}")
    g(f"s_lshl_b32 s{sT0}, s2, 13")
    g(f"s_add_u32 s{sT0}, s{sT0}, {hex(W_OUT)}")
    g(f"s_mul_i32 s{sH1S}, s{sW}, {REC}")
    g(f"s_add_u32 s{sH1S}, s{sH1S}, s{sT0}")
    g(f"s_add_u32 s{sH1S}, s{sH1S}, {O_P}")
    g(f"s_lshl_b32 s{sYS}, s{sW}, 8")
    g(f"s_add_u32 s{sYS}, s{sYS}, s{sT0}")
    g(f"s_add_u32 s{sYS}, s{sYS}, {O_Y}")
    g(f"s_lshl_b32 s{sH1G}, s{sW}, 6")
    g(f"s_add_u32 s{sH1G}, s{sH1G}, s{sH}")
    g(f"s_lshl_b32 s{sH1G}, s{sH1G}, 13")
    g(f"s_mul_i32 s{sT1}, s{sB}, {REC}")
    g(f"s_add_u32 s{sH1G}, s{sH1G}, s{sT1}")
    g(f"s_add_u32 s{sH1G}, s{sH1G}, {hex(W_OUT + O_P)}")
    g(f"s_lshl_b32 s{sYG}, s{sS}, 16")
    g(f"s_lshl_b32 s{sT1}, s{sB}, 8")
    g(f"s_add_u32 s{sYG}, s{sYG}, s{sT1}")
    g(f"s_lshl_b32 s{sT1}, s{sH}, 5")
    g(f"s_add_u32 s{sYG}, s{sYG}, s{sT1}")
    g(f"s_add_u32 s{sYG}, s{sYG}, {hex(W_OUT + O_Y)}")
    g(f"s_lshr_b32 s{sOO}, s2, 3")
    g(f"s_lshl_b32 s{sOO}, s{sOO}, 7")
    g(f"s_lshl_b32 s{sT1}, s{sH}, 2")
    g(f"s_add_u32 s{sOO}, s{sOO}, s{sT1}")
    g(f"s_mov_b32 s{sOOB}, {hex(OOB)}")
    g(f"s_mov_b32 m0, s{sLD}")

    def wo_issue(va):
        g(f"v_lshrrev_b32 v{va}, 3, v0")
        g(f"v_lshlrev_b32 v{va}, 13, v{va}")
        g(f"v_and_b32 v{va+1}, 7, v0")
        g(f"v_lshl_add_u32 v{va}, v{va+1}, 4, v{va}")
        for i in range(4):
            g(f"buffer_load_dwordx4 v{va}, {srd(SWO)}, s{sD0 + (i>>1)} offen offset:{1024*i} {wflags} lds")

    kv_issue(SLOT[1], pace)
    kv_issue(SLOT[2], pace)
    g.stamp(1)
    g("s_waitcnt lgkmcnt(0)")
    if not wolate:
        wo_issue(vS + 2)
    g("s_barrier")
    for j in range(4):
        g(f"ds_read_b128 {vq(vQ+4*j)}, v{vS} offset:{L_Q + 64*j}")
    g(f"ds_read_b32 v{vT6}, v{vL} offset:{L_TAG}")
    g.stamp(2)
    g("s_waitcnt lgkmcnt(0)")
    g(f"v_readfirstlane_b32 s{sTAG}, v{vT6}")

    def tile(X, tag):
        Ka, Va, Kb, Vb = X, X + 16, X + 32, X + 48
        raw = [Va, Va + 4, Va + 8, Va + 12, Vb, Vb + 4, Vb + 8, Vb + 12]
        U = Ka
        T = Kb
        P = Kb + 4
        MX, TM = Kb + 8, Kb + 9
        g("s_waitcnt vmcnt(44)")
        for j in range(4):
            c = "0" if j == 0 else vq(vS)
            g(f"v_mfma_f32_16x16x32_bf16 {vq(vS)}, {vq(Ka+4*j)}, {vq(vQ+4*j)}, {c}")
        g("s_waitcnt vmcnt(36)")
        for j in range(4):
            c = "0" if j == 0 else vq(vS + 4)
            g(f"v_mfma_f32_16x16x32_bf16 {vq(vS+4)}, {vq(Kb+4*j)}, {vq(vQ+4*j)}, {c}")
        g("s_nop 3")
        g(f"v_cvt_pk_bf16_f32 v{T}, v{vS}, v{vS+1}")
        g(f"v_cvt_pk_bf16_f32 v{T+1}, v{vS+2}, v{vS+3}")
        g(f"v_lshlrev_b32 v{vS}, 16, v{T}")
        g(f"v_and_b32 v{vS+1}, s{sHI}, v{T}")
        g(f"v_lshlrev_b32 v{vS+2}, 16, v{T+1}")
        g(f"v_and_b32 v{vS+3}, s{sHI}, v{T+1}")
        g(f"v_cvt_pk_bf16_f32 v{T+2}, v{vS+4}, v{vS+5}")
        g(f"v_cvt_pk_bf16_f32 v{T+3}, v{vS+6}, v{vS+7}")
        g(f"v_lshlrev_b32 v{vS+4}, 16, v{T+2}")
        g(f"v_and_b32 v{vS+5}, s{sHI}, v{T+2}")
        g(f"v_lshlrev_b32 v{vS+6}, 16, v{T+3}")
        g(f"v_and_b32 v{vS+7}, s{sHI}, v{T+3}")
        for i in range(8):
            g(f"v_mul_f32 v{vS+i}, s{sSCALE}, v{vS+i}")
        for i in range(4):
            g(f"v_cvt_pk_bf16_f32 v{T+i}, v{vS+2*i}, v{vS+2*i+1}")
        for i in range(4):
            g(f"v_lshlrev_b32 v{vS+2*i}, 16, v{T+i}")
            g(f"v_and_b32 v{vS+2*i+1}, s{sHI}, v{T+i}")
        g(f"v_max3_f32 v{MX}, v{vS}, v{vS+1}, v{vS+2}")
        g(f"v_max3_f32 v{TM}, v{vS+3}, v{vS+4}, v{vS+5}")
        g(f"v_max3_f32 v{MX}, v{MX}, v{vS+6}, v{vS+7}")
        g(f"v_max3_f32 v{MX}, v{MX}, v{TM}, v{vM}")
        for sw in ("v_permlane32_swap_b32", "v_permlane16_swap_b32"):
            g(f"v_mov_b32 v{TM}, v{MX}")
            g("s_nop 1")
            g(f"{sw} v{MX}, v{TM}")
            g(f"v_max_f32 v{MX}, v{MX}, v{TM}")
        g(f"v_cmp_gt_f32 vcc, v{MX}, v{vM}")
        g(f"s_cbranch_vccz L_nr{tag}")
        g(f"v_sub_f32 v{TM}, v{vM}, v{MX}")
        g(f"v_mul_f32 v{TM}, s{sLOG2E}, v{TM}")
        g(f"v_exp_f32 v{TM}, v{TM}")
        g(f"v_mov_b32 v{vM}, v{MX}")
        g(f"v_mul_f32 v{vMC}, s{sLOG2E}, v{MX}")
        g(f"v_mul_f32 v{vL}, v{vL}, v{TM}")
        for i in range(32):
            g(f"v_mul_f32 v{vO+i}, v{vO+i}, v{TM}")
        g.label(f"L_nr{tag}")
        for i in range(8):
            g(f"v_fma_f32 v{vS+i}, v{vS+i}, s{sLOG2E}, -v{vMC}")
        for i in range(8):
            g(f"v_exp_f32 v{vS+i}, v{vS+i}")
        g("s_waitcnt vmcnt(32)")
        perms(g, raw, 0, U)
        for i in range(4):
            g(f"v_cvt_pk_bf16_f32 v{P+i}, v{vS+2*i}, v{vS+2*i+1}")
        perms(g, raw, 1, U + 4)
        for e in range(8):
            g(f"v_mfma_f32_16x16x32_bf16 {vq(vO+4*e)}, {vq(U+4*(e%4))}, {vq(P)}, {vq(vO+4*e)}")
            if e + 2 < 8:
                perms(g, raw, e + 2, U + 4 * ((e + 2) % 4))
            else:
                b = 4 * (e - 6)
                g(f"v_add_f32 v{vS+b}, v{vS+b}, v{vS+b+1}")
                g(f"v_add_f32 v{vS+b+2}, v{vS+b+2}, v{vS+b+3}")
                g(f"v_add_f32 v{vS+b}, v{vS+b}, v{vS+b+2}")
                g(f"v_add_f32 v{vL}, v{vL}, v{vS+b}")

    g.L.append(".p2align 3")
    for k in range(3):
        X = SLOT[k]
        g.label(f"L_tile{k}")
        tile(X, "abc"[k])
        g(f"s_add_u32 s{sIT}, s{sIT}, 1")
        g(f"s_cmp_ge_u32 s{sIT}, {NSREF if ND else NSREF + 1}")
        g(f"s_cbranch_scc1 L_dyn{k}")
        g.label(f"L_kv{k}")
        kv_issue(X)
    g("s_branch L_tile0")

    for k in range(3):
        X = SLOT[k]
        nxt = f"L_tile{(k+1)%3}"
        g.label(f"L_dyn{k}")
        g(f"s_cmp_eq_u32 s{sDR}, 2")
        g(f"s_cbranch_scc1 L_tail")
        g(f"s_cmp_eq_u32 s{sDR}, 1")
        g(f"s_cbranch_scc1 L_dr2{k}")
        if ND:
            g(f"s_cmp_eq_u32 s{sIT}, {NSREF}")
            g(f"s_cbranch_scc1 L_tk{k}")
            g("s_waitcnt vmcnt(16)")
            g(f"v_readfirstlane_b32 s{sT0}, v{vT6}")
            g(f"s_cmp_ge_u32 s{sT0}, {ND}")
            g(f"s_cbranch_scc1 L_dr1{k}")
            g(f"s_bfe_u32 s{sA}, s{sT0}, 0x30002")
            g(f"s_lshl_b32 s{sA}, s{sA}, 19")
            g(f"s_and_b32 s{sT1}, s{sT0}, 3")
            g(f"s_lshl_b32 s{sT1}, s{sT1}, 12")
            g(f"s_add_u32 s{sA}, s{sA}, s{sT1}")
            g(f"s_lshr_b32 s{sT0}, s{sT0}, 5")
            g(f"s_lshl_b32 s{sT0}, s{sT0}, 15")
            g(f"s_add_u32 s{sA}, s{sA}, s{sT0}")
            g(f"s_add_u32 s{sA}, s{sA}, s{sDYN}")
            g(f"s_add_u32 s{sBo}, s{sA}, 0x4000")
            g.label(f"L_tk{k}")
            g(f"v_mov_b32 v{vT6}, 1")
            g(f"buffer_atomic_add v{vT6}, v{vT7}, {srd(SWS)}, s{sTKV} offen sc0 sc1")
            g(f"s_branch L_kv{k}")
        g.label(f"L_dr1{k}")
        if wolate:
            wo_issue(vS)
            g(f"s_branch L_dr3{k}")
        g.label(f"L_dr2{k}")
        for t in range(16):
            if t == 4:
                g.label(f"L_dr3{k}")
            g(f"buffer_load_dword v{X+t}, v{vV}, {srd(SK)}, s{sOOB} offen")
        g(f"s_add_u32 s{sDR}, s{sDR}, 1")
        g(f"v_and_b32 v{vT6}, 3, v0")
        g(f"v_lshrrev_b32 v{vT7}, 4, v0")
        g(f"v_lshlrev_b32 v{vT7}, 4, v{vT7}")
        g(f"v_lshl_add_u32 v{vT7}, v{vT6}, 9, v{vT7}")
        g(f"s_lshl_b32 s{sT0}, s{sW}, 11")
        g(f"v_add_u32 v{vT7}, s{sT0}, v{vT7}")
        g(f"s_lshl_b32 s{sT0}, s{sW}, 2")
        g(f"v_lshl_add_u32 v{vT6}, v{vT6}, 5, s{sT0}")
        g(f"s_mov_b32 s{sMASK}, 0x000f000f")
        g(f"s_mov_b32 s{sMASK+1}, 0x000f000f")
        g(f"s_branch {nxt}")

    X = 64
    WT = 128
    g.label("L_tail")
    g.stamp(3)
    TM = vS + 7
    vFF = vMC
    for sw in ("v_permlane32_swap_b32", "v_permlane16_swap_b32"):
        g(f"v_mov_b32 v{TM}, v{vL}")
        g("s_nop 1")
        g(f"{sw} v{vL}, v{TM}")
        g(f"v_add_f32 v{vL}, v{vL}, v{TM}")
    g(f"s_mov_b64 exec, s[{sMASK}:{sMASK+1}]")
    for e in range(8):
        g(f"ds_write_b128 v{vT7}, {vq(vO+4*e)} offset:{L_PART + 64*e}")
    g(f"ds_write_b32 v{vT6}, v{vM} offset:{L_STAT}")
    g(f"ds_write_b32 v{vT6}, v{vL} offset:{L_STAT+16}")
    g("s_mov_b64 exec, -1")
    RA, RS = vS, vS + 1
    g(f"v_and_b32 v{RA}, 31, v0")
    g(f"s_lshl_b32 s{sT0}, s{sW}, 9")
    g(f"v_lshl_add_u32 v{RA}, v{RA}, 4, s{sT0}")
    g(f"s_lshl_b32 s{sT0}, s{sW}, 5")
    g(f"v_mov_b32 v{RS}, s{sT0}")
    g(f"v_mov_b32 v{vFF}, 0xff")
    g(f"v_cmp_lt_u32 vcc, 31, v0")
    vP1, vP2, vG, vTRW = vS + 2, vS + 3, vS + 4, vS + 5
    g(f"v_and_b32 v{vP2}, 7, v0")
    g(f"v_lshlrev_b32 v{vP2}, 16, v{vP2}")
    g(f"v_bfe_u32 v{vP1}, v0, 3, 1")
    g(f"v_lshl_add_u32 v{vP1}, v{vP1}, 8, v{vP2}")
    g(f"v_lshrrev_b32 v{vG}, 4, v0")
    g(f"v_lshl_add_u32 v{vP1}, v{vG}, 5, v{vP1}")
    g(f"v_bfe_u32 v{vTRW}, v0, 2, 2")
    g(f"v_lshlrev_b32 v{vTRW}, 7, v{vTRW}")
    g(f"v_and_b32 v{TM}, 3, v0")
    g(f"v_lshl_add_u32 v{vTRW}, v{TM}, 3, v{vTRW}")
    g(f"v_bfe_u32 v{TM}, v0, 4, 1")
    g(f"v_lshl_add_u32 v{vTRW}, v{TM}, 11, v{vTRW}")
    g(f"v_lshrrev_b32 v{TM}, 5, v0")
    g(f"v_lshl_add_u32 v{vTRW}, v{TM}, 10, v{vTRW}")
    g(f"s_mov_b32 s{sMASK}, -1")
    g(f"s_mov_b32 s{sMASK+1}, 0xff")
    g("s_waitcnt vmcnt(0) lgkmcnt(0)")
    g("s_barrier")
    PR = X
    SM, SL = X + 16, X + 20
    g(f"ds_read_b128 {vq(SM)}, v{RS} offset:{L_STAT}")
    g(f"ds_read_b128 {vq(SL)}, v{RS} offset:{L_STAT+16}")
    for w in range(4):
        g(f"ds_read_b128 {vq(PR+4*w)}, v{RA} offset:{L_PART + 2048*w}")
    g.stamp(4)
    g("s_waitcnt lgkmcnt(0)" if g.diag else "s_waitcnt lgkmcnt(5)")
    MM, LL = X + 24, X + 25
    g(f"v_max3_f32 v{MM}, v{SM}, v{SM+1}, v{SM+2}")
    g(f"v_max_f32 v{MM}, v{MM}, v{SM+3}")
    for w in range(4):
        g(f"v_sub_f32 v{SM+w}, v{SM+w}, v{MM}")
    for w in range(4):
        g(f"v_mul_f32 v{SM+w}, s{sLOG2E}, v{SM+w}")
    for w in range(4):
        g(f"v_exp_f32 v{SM+w}, v{SM+w}")
    g("s_waitcnt lgkmcnt(0)")
    g(f"v_mul_f32 v{LL}, v{SM}, v{SL}")
    for i in range(4):
        g(f"v_mul_f32 v{PR+i}, v{SM}, v{PR+i}")
    for w in range(1, 4):
        g(f"v_fmac_f32 v{LL}, v{SM+w}, v{SL+w}")
        for i in range(4):
            g(f"v_fmac_f32 v{PR+i}, v{SM+w}, v{PR+4*w+i}")
    g(f"v_cndmask_b32 v{PR}, v{PR}, v{MM}, vcc")
    g(f"v_cndmask_b32 v{PR+1}, v{PR+1}, v{LL}, vcc")
    for i in range(4):
        g(f"v_bfi_b32 v{PR+i}, v{vFF}, s{sTAG}, v{PR+i}")
    g(f"s_mov_b64 exec, s[{sMASK}:{sMASK+1}]")
    g(f"buffer_store_dwordx4 {vq(PR)}, v{vV}, {srd(SWS)}, s{sH1S} offen sc1")
    g("s_mov_b64 exec, -1")
    D = X + 28
    ST = X + 44
    C1, C2 = X + 46, X + 47
    for step in range(4):
        for j in range(4):
            for half in range(2):
                g(f"ds_read_b64_tr_b16 {vq(WT+16*step+4*j+2*half,2)}, v{vTRW} offset:{L_WO + 4096*step + 512*half + 32*j}")
    poll("1", [f"buffer_load_dwordx4 {vq(D+4*i)}, v{vP1}, {srd(SWS)}, s{sH1G} offen offset:{(0,16,128,144)[i]} sc1" for i in range(4)]
         + [f"buffer_load_dwordx2 {vq(ST,2)}, v{vP2}, {srd(SWS)}, s{sH1G} offen offset:512 sc1"],
         [D + i for i in range(18)], C1, psleep)
    g.stamp(5)
    g(f"v_and_b32 v{ST}, s{sHI}, v{ST}")
    g("s_nop 1")
    g(f"v_max_f32_dpp v{C1}, v{ST}, v{ST} row_ror:1 row_mask:0xf bank_mask:0xf")
    for r in (2, 4):
        g("s_nop 1")
        g(f"v_max_f32_dpp v{C1}, v{C1}, v{C1} row_ror:{r} row_mask:0xf bank_mask:0xf")
    g(f"v_sub_f32 v{C1}, v{ST}, v{C1}")
    g(f"v_mul_f32 v{C1}, s{sLOG2E}, v{C1}")
    g(f"v_exp_f32 v{C1}, v{C1}")
    g("s_nop 0")
    g(f"v_mul_f32 v{C2}, v{C1}, v{ST+1}")
    for r in (1, 2, 4):
        g("s_nop 1")
        g(f"v_add_f32_dpp v{C2}, v{C2}, v{C2} row_ror:{r} row_mask:0xf bank_mask:0xf")
    g(f"v_rcp_f32 v{C2}, v{C2}")
    g("s_nop 0")
    g(f"v_mul_f32 v{C1}, v{C1}, v{C2}")
    for i in range(16):
        g(f"v_mul_f32 v{D+i}, v{C1}, v{D+i}")
    for mode in ("quad_perm:[1,0,3,2]", "quad_perm:[2,3,0,1]", "row_half_mirror"):
        for i in range(16):
            g(f"v_add_f32_dpp v{D+i}, v{D+i}, v{D+i} {mode} row_mask:0xf bank_mask:0xf")
    B0 = X + 48
    for i in range(8):
        g(f"v_cvt_pk_bf16_f32 v{B0+i}, v{D+2*i}, v{D+2*i+1}")
    g("s_waitcnt lgkmcnt(0)")
    for step in range(4):
        for j in range(4):
            c = "0" if step == 0 else vq(vO + 4 * j)
            g(f"v_mfma_f32_16x16x32_bf16 {vq(vO+4*j)}, {vq(B0+4*step)}, {vq(WT+16*step+4*j)}, {c}")
            if step < 2:
                g(f"v_mov_b32_dpp v{B0+8+4*step+j}, v{B0+4*step+j} row_ror:8 row_mask:0xf bank_mask:0xf")
    g(f"v_lshlrev_b32 v{vK}, 19, v{vG}")
    g(f"v_bfe_u32 v{TM}, v0, 1, 3")
    g(f"v_lshl_add_u32 v{vK}, v{TM}, 13, v{vK}")
    g(f"v_and_b32 v{TM}, 1, v0")
    g(f"v_lshl_add_u32 v{vK}, v{TM}, 4, v{vK}")
    YO = 16
    for j in range(4):
        g(f"v_bfi_b32 v{YO+j}, v{vFF}, s{sTAG}, v{vO+4*j}")
    g("s_mov_b64 exec, 0xffff")
    g(f"buffer_store_dwordx4 {vq(YO)}, v{vV}, {srd(SWS)}, s{sYS} offen sc1")
    g("s_mov_b64 exec, -1")
    g.stamp(6)
    g(f"s_cmp_lg_u32 s{sW}, 0")
    g("s_cbranch_scc1 L_fin")

    Y, GX, FT = 64, 68, 70
    g(f"v_lshlrev_b32 v{vT6}, 3, v0")
    g(f"ds_read_b64 {vq(GX,2)}, v{vT6} offset:{L_G}")
    g(f"v_lshlrev_b32 v{vT7}, 5, v{vG}")
    g(f"v_lshl_add_u32 v{vT7}, v{TM}, 1, v{vT7}")
    g(f"s_mov_b32 s{sMASK}, 0x00030003")
    g(f"s_mov_b32 s{sMASK+1}, 0x00030003")
    poll("y", [f"buffer_load_dwordx4 {vq(Y)}, v{vK}, {srd(SWS)}, s{sYG} offen sc1"], [Y + i for i in range(4)], FT, psleep)
    g.stamp(7)
    g("s_waitcnt lgkmcnt(0)")
    reduce32x4(g, Y)
    rne(g, Y, Y)
    g(f"v_mul_f32 v{Y}, v{Y}, v{GX}")
    rne(g, Y, Y)
    g(f"v_add_f32 v{Y}, v{Y}, v{GX+1}")
    g(f"v_cvt_pk_bf16_f32 v{Y}, v{Y}, v{Y}")
    g(f"s_mov_b64 exec, s[{sMASK}:{sMASK+1}]")
    g(f"buffer_store_short v{Y}, v{vT7}, {srd(SOUT)}, s{sOO} offen")
    g(f"s_cmp_lg_u32 s2, 0")
    g("s_cbranch_scc1 L_noep")
    g(f"s_mov_b32 s{sT0}, {hex(W_EP)}")
    g("s_mov_b64 exec, 1")
    g(f"v_mov_b32 v{FT}, s{sTAG}")
    g(f"buffer_store_dword v{FT}, v{vT7}, {srd(SWS)}, s{sT0} offen sc1")
    g.label("L_noep")
    g("s_mov_b64 exec, -1")
    g.stamp(8)
    g("s_branch L_fin")

    g.label("L_helper")
    g.srd_load(SW1, 48)
    g.srd_load(SW2, 64)
    g("s_setprio 3")
    g.srd_consts(SX, 4096)
    g.srd_consts(SWQ, 512 * 4096 * 2)
    g.srd_consts(SW1, 512 * 1792 * 2)
    g.srd_consts(SW2, 1792 * 512 * 2)
    hT = 20
    hACC = 32
    R = 48
    XR = 64
    XF = 80
    WF = 128
    vX, vTAG, vTR, vFFh = 2, 6, 9, 8
    sU, sC1 = 52, 54
    g(f"s_and_b32 s{sU}, s{sS}, 1")
    g(f"s_lshr_b32 s{sC1}, s{sS}, 1")
    g(f"s_lshl_b32 s{sC1}, s{sC1}, 3")
    g(f"s_add_u32 s{sC1}, s{sC1}, s{sH}")
    g(f"v_and_b32 v3, 3, v0")
    g(f"v_lshlrev_b32 v{vX}, 10, v3")
    g(f"v_bfe_u32 v4, v0, 2, 2")
    g(f"s_lshl_b32 s{sT0}, s{sU}, 1")
    g(f"v_xor_b32 v7, s{sT0}, v4")
    g(f"v_lshl_add_u32 v{vX}, v7, 6, v{vX}")
    g(f"v_lshrrev_b32 v5, 4, v0")
    g(f"v_lshl_add_u32 v{vX}, v5, 4, v{vX}")
    SXO = (56, 57, 58, 59)
    for j in range(4):
        g(f"s_xor_b32 s{SXO[j]}, s{sB}, {j}")
        g(f"s_lshl_b32 s{SXO[j]}, s{SXO[j]}, 8")
    g(f"v_lshrrev_b32 v10, 3, v0")
    g(f"v_and_b32 v11, 7, v0")
    g(f"v_lshlrev_b32 v11, 4, v11")
    VQ, V1, V2 = 112, 116, 120
    g(f"v_lshl_add_u32 v{VQ}, v10, 13, v11")
    g(f"v_mul_u32_u24 v{V1}, 3584, v10")
    g(f"v_add_u32 v{V1}, v{V1}, v11")
    g(f"v_lshl_add_u32 v{V2}, v10, 10, v11")
    for (V, rs) in ((VQ, 8192), (V1, 3584), (V2, 1024)):
        for i in range(1, 4):
            g(f"v_add_u32 v{V+i}, {hex(i*(8*rs - 1024))}, v{V}")
    SQO = (sA, sBo, sIT, sT0)
    g(f"s_lshl_b32 s{sT1}, s{sH}, 3")
    g(f"s_add_u32 s{sT1}, s{sT1}, s{sS}")
    g(f"s_lshl_b32 s{sT1}, s{sT1}, 7")
    g(f"s_lshl_b32 s{sT2}, s{sB}, 20")
    g(f"s_add_u32 s{sT1}, s{sT1}, s{sT2}")
    if 'wq' in skip:
        g(f"s_mov_b32 s{sT1}, {hex(OOB)}")
    g(f"s_lshl_b32 s{sT2}, s{sU}, 19")
    g(f"s_add_u32 s{SQO[0]}, s{sT1}, s{sT2}")
    g(f"s_add_u32 s{SQO[1]}, s{SQO[0]}, {hex(32*8192)}")
    g(f"s_xor_b32 s{sT2}, s{sT2}, {hex(64*8192)}")
    g(f"s_add_u32 s{SQO[2]}, s{sT1}, s{sT2}")
    g(f"s_add_u32 s{SQO[3]}, s{SQO[2]}, {hex(32*8192)}")
    g(f"s_lshl_b32 s{sT4}, s{sB}, 1")
    g(f"s_add_u32 s{sT4}, s{sT4}, s{sU}")
    g(f"s_mul_i32 s{sT1}, s{sT4}, {64*3584}")
    g(f"s_lshl_b32 s{sT2}, s{sC1}, 7")
    g(f"s_add_u32 s{sT1}, s{sT1}, s{sT2}")
    g(f"s_lshl_b32 s{sT3}, s{sC1}, 16")
    g(f"s_lshl_b32 s{sT4}, s{sT4}, 7")
    g(f"s_add_u32 s{sT3}, s{sT3}, s{sT4}")
    g(f"s_cmp_ge_u32 s{sC1}, {0 if 'ffn' in skip else 28}")
    g(f"s_cselect_b32 s{sT1}, {hex(OOB)}, s{sT1}")
    g(f"s_cselect_b32 s{sT3}, {hex(OOB)}, s{sT3}")
    g(f"s_add_u32 s{sT2}, s{sT1}, {32*3584}")
    g(f"s_add_u32 s{sT4}, s{sT3}, {32*1024}")
    g(f"v_mov_b32 v7, 0")
    g(f"s_mov_b32 s{sSPIN}, {hex(W_EP)}")
    g(f"s_mov_b32 m0, {L_WQ}")
    if ND:
        g(f"s_cmp_eq_u32 s{sS}, 0")
        g(f"s_cselect_b32 s{sTKV}, s{sTKV}, {hex(OOB)}")
        g(f"v_lshlrev_b32 v10, 2, v0")
    g("s_waitcnt lgkmcnt(0)")
    g.stamp(10)
    for j in range(4):
        g(f"buffer_load_dwordx4 {vq(XR+4*j)}, v{vX}, {srd(SX)}, s{SXO[j]} offen")
    g(f"buffer_load_dword v{vTAG}, v7, {srd(SWS)}, s{sSPIN} offen sc1")
    if ND:
        g(f"buffer_store_dword v7, v10, {srd(SWS)}, s{sTKV} offen sc1")
    bursts = [(VQ, SWQ, so) for so in SQO] + [(V1, SW1, sT1), (V1, SW1, sT2), (V2, SW2, sT3), (V2, SW2, sT4)]
    for n, (V, rs, so) in enumerate(bursts):
        for i in range(4):
            g(f"buffer_load_dwordx4 v{V+i}, {srd(rs)}, s{so} offen offset:{1024*i} {wflags} lds")
        if n < len(bursts) - 1:
            g(f"s_add_u32 m0, m0, 4096")
            g("s_nop 0")
    g("s_barrier")
    for (b_, off, nb) in ((SB1, 56, 1792 * 2), (SB2, 72, 1024)):
        g.srd_load(b_, off)
        g.srd_consts(b_, nb)
    vQS = 10
    g(f"v_lshlrev_b32 v{vQS}, 8, v3")
    g(f"v_lshl_add_u32 v{vQS}, v4, 6, v{vQS}")
    g(f"v_lshl_add_u32 v{vQS}, v5, 4, v{vQS}")
    sOWN = sA
    g(f"s_lshl_b32 s{sOWN}, s2, 13")
    g(f"s_add_u32 s{sOWN}, s{sOWN}, {hex(W_OUT)}")
    g(f"v_lshlrev_b32 v{vTR}, 10, v5")
    g(f"v_lshl_add_u32 v{vTR}, v4, 7, v{vTR}")
    g(f"v_lshl_add_u32 v{vTR}, v3, 3, v{vTR}")
    g(f"v_mov_b32 v{vFFh}, 0xff")
    SM1, SM2, SM3 = 12, 14, 68
    for (sm, c) in ((SM1, 1), (SM2, 2), (SM3, 3)):
        g(f"s_mov_b32 s{sm}, {hex(0x000f000f << (4*c))}")
        g(f"s_mov_b32 s{sm+1}, {hex(0x000f000f << (4*c))}")
    def red4(v, t):
        for r in (4, 8):
            g("s_nop 1")
            g(f"v_add_f32_dpp v{v}, v{v}, v{v} row_ror:{r} row_mask:0xf bank_mask:0xf")
        for sw in ("v_permlane16_swap_b32", "v_permlane32_swap_b32"):
            g(f"v_mov_b32 v{t}, v{v}")
            g("s_nop 1")
            g(f"{sw} v{v}, v{t}")
            g(f"v_add_f32 v{v}, v{v}, v{t}")
    NY = 32 + (1 if ND else 0)
    g(f"s_waitcnt vmcnt({NY + 1})")
    for i in range(16):
        g(f"v_lshlrev_b32 v{XF+2*i}, 16, v{XR+i}")
        g(f"v_and_b32 v{XF+2*i+1}, s{sHI}, v{XR+i}")
    g(f"v_pk_add_f32 {vq(hT,2)}, {vq(XF,2)}, {vq(XF+2,2)}")
    g(f"v_pk_add_f32 {vq(hT+2,2)}, {vq(XF+4,2)}, {vq(XF+6,2)}")
    for i in range(4, 16):
        d = hT + 2 * (i & 1)
        g(f"v_pk_add_f32 {vq(d,2)}, {vq(d,2)}, {vq(XF+2*i,2)}")
    g(f"v_pk_add_f32 {vq(hT,2)}, {vq(hT,2)}, {vq(hT+2,2)}")
    g(f"v_add_f32 v{hT}, v{hT}, v{hT+1}")
    red4(hT, hT + 1)
    g(f"v_mul_f32 v{hT}, {f32(-1.0/512)}, v{hT}")
    g(f"v_mov_b32 v{hT+1}, v{hT}")
    for i in range(16):
        t = hT + 6 + 2 * (i & 1)
        d = hT + 2 + 2 * (i & 1)
        g(f"v_pk_add_f32 {vq(t,2)}, {vq(XF+2*i,2)}, {vq(hT,2)}")
        if i < 2:
            g(f"v_pk_mul_f32 {vq(d,2)}, {vq(t,2)}, {vq(t,2)}")
        else:
            g(f"v_pk_fma_f32 {vq(d,2)}, {vq(t,2)}, {vq(t,2)}, {vq(d,2)}")
    g(f"v_pk_add_f32 {vq(hT+2,2)}, {vq(hT+2,2)}, {vq(hT+4,2)}")
    g(f"v_add_f32 v{hT+2}, v{hT+2}, v{hT+3}")
    rne(g, hT, hT)
    red4(hT + 2, hT + 3)
    g(f"v_mul_f32 v{hT+2}, {f32(1.0/512)}, v{hT+2}")
    rne(g, hT + 2, hT + 2)
    g(f"v_add_f32 v{hT+2}, {f32(1e-5)}, v{hT+2}")
    rne(g, hT + 2, hT + 2)
    g(f"v_sqrt_f32 v{hT+2}, v{hT+2}")
    for i in range(8):
        g(f"v_add_f32 v{XF+i}, v{XF+i}, v{hT}")
    rne(g, hT + 2, hT + 2)
    g(f"v_rcp_f32 v{hT+4}, v{hT+2}")
    def round8(F, T):
        for i in range(4):
            g(f"v_cvt_pk_bf16_f32 v{T+i}, v{F+2*i}, v{F+2*i+1}")
        for i in range(4):
            g(f"v_lshlrev_b32 v{F+2*i}, 16, v{T+i}")
            g(f"v_and_b32 v{F+2*i+1}, s{sHI}, v{T+i}")
    round8(XF, R)
    for i in range(8):
        g(f"v_mul_f32 v{XF+8+i}, v{XF+i}, v{hT+4}")
    for i in range(8):
        g(f"v_fma_f32 v{XF+i}, -v{XF+8+i}, v{hT+2}, v{XF+i}")
    for i in range(8):
        g(f"v_fma_f32 v{XF+i}, v{XF+i}, v{hT+4}, v{XF+8+i}")
    for i in range(4):
        g(f"v_cvt_pk_bf16_f32 v{R+i}, v{XF+2*i}, v{XF+2*i+1}")
    g.stamp(1)
    g(f"s_waitcnt vmcnt({NY})")
    g(f"v_add_u32 v{vTAG}, 1, v{vTAG}")
    for t in range(1, 4):
        for i in range(4):
            g(f"v_mov_b32_dpp v{R+4*t+i}, v{R+i} row_ror:{4*t} row_mask:0xf bank_mask:0xf")
    g(f"v_readfirstlane_b32 s{sTAG}, v{vTAG}")

    def gemm1(base, nstep, vm, off):
        for s_ in range(nstep):
            g(f"s_waitcnt vmcnt({vm - 4*(s_+1)})")
            for c in range(4):
                for half in range(2):
                    g(f"ds_read_b64_tr_b16 {vq(WF+16*s_+4*c+2*half,2)}, v{vTR} offset:{base + 4096*s_ + 512*half + 32*c}")
            g("s_waitcnt lgkmcnt(0)")
            for c in range(4):
                cc = "0" if s_ == 0 else vq(hACC + 4 * c)
                g(f"v_mfma_f32_16x16x32_bf16 {vq(hACC+4*c)}, {vq(WF+16*s_+4*c)}, {vq(R+4*((c-s_)&3))}, {cc}")
        g("s_nop 5")
        for (sm, c) in ((SM1, 1), (SM2, 2), (SM3, 3)):
            for r in range(4):
                g(f"v_cndmask_b32 v{hACC+r}, v{hACC+r}, v{hACC+4*c+r}, s[{sm}:{sm+1}]")
        for r in range(4):
            g(f"v_bfi_b32 v{hT+off//256+r}, v{vFFh}, s{sTAG}, v{hACC+r}")
        g(f"buffer_store_dwordx4 {vq(hT+off//256)}, v{vQS}, {srd(SWS)}, s{sOWN} offen offset:{off} sc1")

    gemm1(L_WQ, 4, 32, O_Q)
    g.stamp(2)
    gemm1(L_W1, 2, 17, O_H)
    g(f"v_mov_b32 v11, s{sTAG}")
    g(f"ds_write_b32 v7, v11 offset:{L_TAG}")
    g(f"v_lshrrev_b32 v12, 3, v0")
    g(f"v_lshlrev_b32 v12, 16, v12")
    g(f"v_and_b32 v13, 7, v0")
    g(f"v_lshl_add_u32 v12, v13, 5, v12")
    g(f"s_lshl_b32 s{SXO[0]}, s{sH}, 13")
    g(f"s_lshl_b32 s{sT0}, s{sB}, 8")
    g(f"s_add_u32 s{SXO[0]}, s{SXO[0]}, s{sT0}")
    g(f"s_add_u32 s{SXO[0]}, s{SXO[0]}, {hex(W_OUT + O_Q)}")
    for j in range(1, 4):
        g(f"s_add_u32 s{SXO[j]}, s{SXO[0]}, {hex(j << 19)}")
    g(f"v_lshlrev_b32 v13, 4, v0")
    g(f"v_and_b32 v14, 1, v4")
    g(f"v_lshlrev_b32 v14, 6, v14")
    g(f"v_lshl_add_u32 v14, v5, 4, v14")
    g(f"s_lshl_b32 s{sT1}, s{sC1}, 7")
    g(f"v_and_b32 v15, 1, v0")
    g(f"v_lshlrev_b32 v15, 1, v15")
    g(f"v_lshl_add_u32 v15, v5, 5, v15")
    g(f"s_lshl_b32 s{sT2}, s{sS}, 7")
    g(f"s_lshl_b32 s{sT3}, s{sH}, 2")
    g(f"s_add_u32 s{sT2}, s{sT2}, s{sT3}")
    g(f"s_lshl_b32 s{sT3}, s{sB}, 10")
    g(f"s_add_u32 s{sT3}, s{sT3}, s{sT2}")
    g(f"buffer_load_dwordx4 {vq(16)}, v14, {srd(SB1)}, s{sT1} offen")
    g(f"buffer_load_ushort v28, v15, {srd(SX)}, s{sT3} offen")
    g(f"buffer_load_ushort v29, v15, {srd(SB2)}, s{sT2} offen")
    if qwait:
        g(f"s_sleep {qwait}")
    QG = 64
    poll("q", [f"buffer_load_dwordx4 {vq(QG+8*j+4*i)}, v12, {srd(SWS)}, s{SXO[j]} offen offset:{16*i} sc1"
               for j in range(4) for i in range(2)], [QG + i for i in range(32)], 30, 0)
    g.stamp(4)
    for i in range(4):
        g(f"v_pk_add_f32 {vq(QG+2*i,2)}, {vq(QG+2*i,2)}, {vq(QG+8+2*i,2)}")
        g(f"v_pk_add_f32 {vq(QG+16+2*i,2)}, {vq(QG+16+2*i,2)}, {vq(QG+24+2*i,2)}")
    for i in range(4):
        g(f"v_pk_add_f32 {vq(QG+2*i,2)}, {vq(QG+2*i,2)}, {vq(QG+16+2*i,2)}")
    for i in range(4):
        g(f"v_cvt_pk_bf16_f32 v{hACC+i}, v{QG+2*i}, v{QG+2*i+1}")
    g(f"ds_write_b128 v13, {vq(hACC)} offset:{L_Q}")
    if diag and probe is None:
        g(f"s_mov_b32 s{sSTAMP+6}, s{sSPIN}")
    g(f"v_lshrrev_b32 v12, 1, v4")
    g(f"v_lshlrev_b32 v12, 20, v12")
    g(f"v_lshl_add_u32 v12, v3, 8, v12")
    g(f"v_lshl_add_u32 v12, v14, 1, v12")
    g(f"s_and_b32 s{SXO[0]}, s2, 0x37")
    g(f"s_lshl_b32 s{SXO[0]}, s{SXO[0]}, 13")
    g(f"s_add_u32 s{SXO[0]}, s{SXO[0]}, {hex(W_OUT + O_H)}")
    g(f"s_add_u32 s{SXO[1]}, s{SXO[0]}, {hex(8 << 13)}")
    g(f"s_add_u32 s{SXO[2]}, s{SXO[0]}, {hex(64 << 13)}")
    g(f"s_add_u32 s{SXO[3]}, s{SXO[0]}, {hex(72 << 13)}")
    g.stamp(5)
    g("s_waitcnt lgkmcnt(0)")
    g("s_barrier")
    g("s_setprio 0")
    g(f"s_cmp_ge_u32 s{sC1}, 28")
    g("s_cbranch_scc1 L_noffn")
    for s_ in range(2):
        for j in range(4):
            for half in range(2):
                g(f"ds_read_b64_tr_b16 {vq(WF+16*s_+4*j+2*half,2)}, v{vTR} offset:{L_W2 + 4096*s_ + 512*half + 32*j}")
    poll("h", [f"buffer_load_dwordx4 {vq(QG+8*j+4*i)}, v12, {srd(SWS)}, s{SXO[j]} offen offset:{16*i} sc1"
               for j in range(4) for i in range(2)], [QG + i for i in range(32)], 30, 16)
    for i in range(4):
        g(f"v_pk_add_f32 {vq(QG+2*i,2)}, {vq(QG+2*i,2)}, {vq(QG+8+2*i,2)}")
        g(f"v_pk_add_f32 {vq(QG+16+2*i,2)}, {vq(QG+16+2*i,2)}, {vq(QG+24+2*i,2)}")
    for i in range(4):
        g(f"v_pk_add_f32 {vq(QG+2*i,2)}, {vq(QG+2*i,2)}, {vq(QG+16+2*i,2)}")
    g("s_nop 1")
    for i in range(8):
        g(f"v_add_f32_dpp v{QG+i}, v{QG+i}, v{QG+i} row_ror:8 row_mask:0xf bank_mask:0xf")
    round8(QG, hT)
    for i in range(4):
        g(f"v_lshlrev_b32 v{hT+4}, 16, v{16+i}")
        g(f"v_and_b32 v{hT+5}, s{sHI}, v{16+i}")
        g(f"v_add_f32 v{QG+2*i}, v{QG+2*i}, v{hT+4}")
        g(f"v_add_f32 v{QG+2*i+1}, v{QG+2*i+1}, v{hT+5}")
    round8(QG, hT)
    for i in range(8):
        g(f"v_max_f32 v{QG+i}, 0, v{QG+i}")
    for i in range(8):
        g(f"v_mul_f32 v{QG+i}, v{QG+i}, v{QG+i}")
    for i in range(4):
        g(f"v_cvt_pk_bf16_f32 v{R+i}, v{QG+2*i}, v{QG+2*i+1}")
    g("s_nop 0")
    for i in range(4):
        g(f"v_mov_b32_dpp v{R+4+i}, v{R+i} row_ror:4 row_mask:0xf bank_mask:0xf")
    g.stamp(6)
    g("s_waitcnt lgkmcnt(0)")
    g("s_nop 0")
    for s_ in range(2):
        for j in range(4):
            cc = "0" if s_ == 0 else vq(hACC + 4 * j)
            g(f"v_mfma_f32_16x16x32_bf16 {vq(hACC+4*j)}, {vq(R+4*s_)}, {vq(WF+16*s_+4*j)}, {cc}")
    g("s_nop 7")
    for b_ in range(4):
        for j in range(4):
            g(f"v_bfi_b32 v{QG+4*b_+j}, v{vFFh}, s{sTAG}, v{hACC+4*j+b_}")
    g("s_mov_b64 exec, 0xffff")
    for b_ in range(4):
        g(f"buffer_store_dwordx4 {vq(QG+4*b_)}, v13, {srd(SWS)}, s{sOWN} offen offset:{O_Z + 256*b_} sc1")
    g("s_mov_b64 exec, -1")
    g.label("L_noffn")
    g.stamp(7)
    g(f"v_lshlrev_b32 v12, 17, v5")
    g(f"v_bfe_u32 v14, v0, 1, 3")
    g(f"v_lshl_add_u32 v12, v14, 13, v12")
    g(f"v_and_b32 v14, 1, v0")
    g(f"v_lshl_add_u32 v12, v14, 4, v12")
    g(f"s_lshr_b32 s{sT0}, s{sS}, 1")
    g(f"s_lshl_b32 s{sT0}, s{sT0}, 19")
    g(f"s_lshl_b32 s{sT1}, s{sU}, 16")
    g(f"s_add_u32 s{sT0}, s{sT0}, s{sT1}")
    g(f"s_lshl_b32 s{sT1}, s{sB}, 8")
    g(f"s_add_u32 s{sT0}, s{sT0}, s{sT1}")
    g(f"s_lshl_b32 s{sT1}, s{sH}, 5")
    g(f"s_add_u32 s{sT0}, s{sT0}, s{sT1}")
    g(f"s_add_u32 s{sT0}, s{sT0}, {hex(W_OUT + O_Z)}")
    Z = 32
    for i in range(4):
        g(f"v_mov_b32 v{Z+i}, 0")
    for _ in range(zwait):
        g("s_sleep 64")
    g(f"s_mov_b32 s{sMASK2}, -1")
    g(f"s_mov_b32 s{sMASK2+1}, 0x00ffffff")
    g(f"s_mov_b64 exec, s[{sMASK2}:{sMASK2+1}]")
    poll("z", [f"buffer_load_dwordx4 {vq(Z)}, v12, {srd(SWS)}, s{sT0} offen sc1"], [Z + i for i in range(4)], 30, 32)
    g.stamp(8)
    reduce32x4(g, Z)
    rne(g, Z, Z)
    g(f"v_lshlrev_b32 v29, 16, v29")
    g(f"v_add_f32 v{Z}, v{Z}, v29")
    rne(g, Z, Z)
    g(f"v_mul_f32 v30, {f32(-LOG2E)}, v{Z}")
    g(f"v_exp_f32 v30, v30")
    g("s_nop 0")
    g(f"v_add_f32 v30, 1.0, v30")
    g(f"v_rcp_f32 v30, v30")
    g("s_nop 0")
    g(f"v_mul_f32 v{Z}, v{Z}, v30")
    rne(g, Z, Z)
    g(f"v_lshlrev_b32 v{Z+1}, 16, v28")
    g(f"v_lshlrev_b32 v12, 3, v0")
    g(f"ds_write_b64 v12, {vq(Z,2)} offset:{L_G}")
    g.stamp(9)
    g("s_waitcnt lgkmcnt(0)")
    if g.diag:
        g("s_barrier")

    g.label("L_fin")
    if probe is not None:
        role, idx = probe
        g("s_waitcnt vmcnt(0)")
        g.stamp(11)
        g("s_waitcnt lgkmcnt(0)")
        g(f"s_mov_b32 s{sT0}, s{sSTAMP}")
        if role == 'wg':
            g(f"s_cmp_lg_u32 s2, {idx}")
            g("s_cbranch_scc1 L_end")
            g(f"s_cmp_lg_u32 s{sWAVE}, 0")
            g("s_cbranch_scc1 L_end")
        g(f"s_cmp_eq_u32 s{sWAVE}, 0")
        if role == 'h':
            g(f"s_cselect_b32 s{sT0}, s{sSTAMP+2*idx}, s{sT0}")
        elif role == 's':
            g(f"s_cselect_b32 s{sT0}, s{sT0}, s{sSTAMP+2*idx}")
        g(f"s_add_u32 s{sT0}, s{sT0}, 10000")
        g.label("L_probe")
        g(f"s_memrealtime s[{sSTAMP+2}:{sSTAMP+3}]")
        g("s_waitcnt lgkmcnt(0)")
        g(f"s_sub_u32 s{sT1}, s{sSTAMP+2}, s{sT0}")
        g(f"s_cmp_lt_i32 s{sT1}, 0")
        g("s_cbranch_scc1 L_probe")
    if diag:
        g("s_waitcnt vmcnt(0)")
        g.stamp(11)
        g("s_waitcnt lgkmcnt(0)")
        g(f"s_mul_i32 s{sT0}, s2, 5")
        g(f"s_add_u32 s{sT0}, s{sT0}, s{sWAVE}")
        g(f"s_lshl_b32 s{sT0}, s{sT0}, 6")
        g(f"s_add_u32 s{sT0}, s{sT0}, {hex(W_DIAG)}")
        for i in range(12):
            g(f"v_mov_b32 v{8+i}, s{sSTAMP+2*i}")
        g(f"v_mov_b32 v20, s{sSPIN}")
        g(f"v_mov_b32 v22, s{sIT}")
        g("s_getreg_b32 s3, hwreg(HW_REG_XCC_ID)")
        g("v_mov_b32 v21, s3")
        g("v_mov_b32 v23, 0")
        g("v_mov_b32 v1, 0")
        g("s_mov_b64 exec, 1")
        for i in range(4):
            g(f"buffer_store_dwordx4 {vq(8+4*i)}, v1, {srd(SWS)}, s{sT0} offen offset:{16*i}")
    g.label("L_end")
    g("s_endpgm")
    out += g.L
    out += ['.section .rodata,"a"', ".p2align 6", f".amdhsa_kernel {NAME}_kernel",
            "  .amdhsa_next_free_vgpr 256", "  .amdhsa_next_free_sgpr 102", "  .amdhsa_accum_offset 256",
            "  .amdhsa_group_segment_fixed_size 0", "  .amdhsa_kernarg_size 104", "  .amdhsa_user_sgpr_count 2",
            "  .amdhsa_user_sgpr_kernarg_segment_ptr 1", "  .amdhsa_system_sgpr_workgroup_id_x 1",
            "  .amdhsa_float_denorm_mode_32 3",
            ".end_amdhsa_kernel"]
    return "\n".join(out) + "\n"


if __name__ == "__main__":
    kw = eval("dict(%s)" % (sys.argv[2] if len(sys.argv) > 2 else ""))
    open(sys.argv[1], "w").write(gen(**kw))
```

```python
import sys, struct

NAME = "recurrent_scan__gqa_block_cached__dense_activation_squared_relu__decode"

HEADER = """; Kernarg layout for this problem (104 bytes, ptrs only, base s[0:1]):
;   offset  24: d_in[3] A_wq  shape=(512, 4096) dtype=bfloat16
;   offset  32: d_in[4] A_wo  shape=(4096, 512) dtype=bfloat16
;   offset  96: d_ws      workspace (q hand-off, per-workgroup inboxes)
; Generated by a python script of the author (work/gen.py).
; One workgroup per (batch b, kv head h, key split s): wave 0 = helper (layernorm, q slice, FFN hidden
; slice, final reduction), waves 1..4 stream K/V straight into registers (MFMA QK^T, online softmax, MFMA PV).
"""

def f32(x):
    return "0x%08x" % struct.unpack("<I", struct.pack("<f", x))[0]

LOG2E = 1.4426950408889634
SCALE = 128 ** -0.5

L_Q, L_G, L_TAG, L_CNT, L_STAT, L_PART = 0, 1024, 2112, 2120, 2304, 4096
L_WQ, L_W1, L_W2, L_WO, L_SIZE = 12288, 28672, 36864, 45056, 61440
A_Q, A_H, A_Z, A_Y, A_P = 0, 0x40000, 0x80000, 0xc0000, 0x100000
PS = 2560
REC = 640
W_EP = 0x220000
W_TK = 0x230000
W_DIAG = 0x280000
W_SIZE = 0x400000
OOB = 0x10000000

SK, SV, SWS, SWO, SW2, SX, SWQ, SW1, SB1, SB2, SOUT = 8, 12, 16, 20, 24, 28, 32, 36, 40, 44, 48
sWAVE, sB, sH, sS, sP = 3, 4, 5, 6, 7
sDYN, sTKV, sTKO, sDR = 52, 53, 54, 55
sSELLO, sSELHI, sSCALE, sLOG2E, sA, sBo, sIT = 56, 57, 58, 59, 60, 61, 62
sT0, sT1, sT2, sT3, sT4 = 63, 64, 65, 66, 67
sMASK = 68
sMASK2 = 70
sSPIN = 72
sHI = 73
sW = 74
sTAG = 75
sSTAMP = 76


class G:
    def __init__(self, diag=False):
        self.L = []
        self.diag = diag
        self.nstamp = {}

    def __call__(self, s):
        self.L.append("  " + s)

    def label(self, s):
        self.L.append(s + ":")

    def comment(self, s):
        self.L.append("  ; " + s)

    def stamp(self, i):
        if self.diag:
            self(f"s_memrealtime s[{sSTAMP+2*i}:{sSTAMP+2*i+1}]")

    def srd_consts(self, base, nbytes):
        self(f"s_mov_b32 s{base+2}, {hex(nbytes)}")
        self(f"s_mov_b32 s{base+3}, 0x20000")

    def srd_load(self, base, off):
        self(f"s_load_dwordx2 s[{base}:{base+1}], s[0:1], {off}")


def srd(b):
    return f"s[{b}:{b+3}]"


def vq(r, n=4):
    return f"v[{r}:{r+n-1}]"


def perms(g, raw, e, dst):
    sel = sSELHI if (e & 1) else sSELLO
    for j in range(4):
        g(f"v_perm_b32 v{dst+j}, v{raw[2*j+1] + (e >> 1)}, v{raw[2*j] + (e >> 1)}, s{sel}")


def gemv_tile(g, raw, vec, acc, tmp, first, wside_a=False):
    nq = 3
    perms(g, raw, 0, tmp)
    perms(g, raw, 1, tmp + 4)
    for e in range(8):
        t = tmp + 4 * (e % nq)
        if e + 2 < 8:
            perms(g, raw, e + 2, tmp + 4 * ((e + 2) % nq))
        c = "0" if first else vq(acc + 4 * e)
        if wside_a:
            g(f"v_mfma_f32_16x16x32_bf16 {vq(acc+4*e)}, {vq(t)}, {vq(vec)}, {c}")
        else:
            g(f"v_mfma_f32_16x16x32_bf16 {vq(acc+4*e)}, {vq(vec)}, {vq(t)}, {c}")


def rne(g, dst, src):
    g(f"v_cvt_pk_bf16_f32 v{dst}, v{src}, v{src}")
    g(f"v_lshlrev_b32 v{dst}, 16, v{dst}")


def wave_sum(g, v, t):
    for r in (8, 4, 2, 1):
        g("s_nop 1")
        g(f"v_add_f32_dpp v{v}, v{v}, v{v} row_ror:{r} row_mask:0xf bank_mask:0xf")
    for sw in ("v_permlane16_swap_b32", "v_permlane32_swap_b32"):
        g(f"v_mov_b32 v{t}, v{v}")
        g("s_nop 1")
        g(f"{sw} v{v}, v{t}")
        g(f"v_add_f32 v{v}, v{v}, v{t}")


def tagcheck(g, regs, c1, c2, tag=None, mask=0xff):
    def tree(op3, op2, dst):
        r = list(regs)
        g(f"{op3} v{dst}, v{r[0]}, v{r[1]}, v{r[2]}" + (" bitop3:0x80" if "bitop" in op3 else ""))
        r = r[3:]
        while len(r) >= 2:
            g(f"{op3} v{dst}, v{dst}, v{r[0]}, v{r[1]}" + (" bitop3:0x80" if "bitop" in op3 else ""))
            r = r[2:]
        if r:
            g(f"{op2} v{dst}, v{dst}, v{r[0]}")
    tree("v_bitop3_b32", "v_and_b32", c1)
    tree("v_or3_b32", "v_or_b32", c2)
    g(f"v_bitop3_b32 v{c1}, v{c1}, v{c2}, s{sTAG if tag is None else tag} bitop3:0x7e")
    g(f"v_and_b32 v{c2}, {hex(mask)}, v{c1}")
    g(f"v_cmp_ne_u32 vcc, 0, v{c2}")


def reduce32x4(g, a):
    g(f"v_permlane32_swap_b32 v{a}, v{a+2}")
    g(f"v_permlane32_swap_b32 v{a+1}, v{a+3}")
    g(f"v_add_f32 v{a}, v{a}, v{a+2}")
    g(f"v_add_f32 v{a+1}, v{a+1}, v{a+3}")
    g("s_nop 1")
    g(f"v_permlane16_swap_b32 v{a}, v{a+1}")
    g(f"v_add_f32 v{a}, v{a}, v{a+1}")
    for r in (8, 4, 2):
        g("s_nop 1")
        g(f"v_add_f32_dpp v{a}, v{a}, v{a} row_ror:{r} row_mask:0xf bank_mask:0xf")


def gen(diag=False, kvflags="nt", wflags="", pace=11, spin_max=1 << 20, skip=(), probe=None, qwait=20, psleep=0,
        NS=16, zwait=0, wolate=True, remap=False, pace3=None, flag=True, tkearly=True, fake=False, pgrp=4, hstop=None, nocomp=False, brk=8, brkop='s_nop 0', kperm=True, lay=0, sflags='sc1', gflags='sc1', tks=256, warm=None, p1wait=0, trlate=True, fast=True, repub=3, swz=True, bar0=4, pf=True, p1l='sc1', p1s='', trig=8, ysig=4, notail=False, statictile=False, touch=False):
    ND = 512 - 32 * NS
    NSREF = NS - 3
    g = G(diag or probe is not None)
    out = [HEADER + f"; @launch grid=(256,1,1) block=(320,1,1) lds={L_SIZE}",
           '.amdgcn_target "amdgcn-amd-amdhsa--gfx950"', ".text", f".globl {NAME}_kernel", ".p2align 8",
           f".type {NAME}_kernel,@function", f"{NAME}_kernel:"]

    def poll(tag, loads, regs, t, sleep, first=None):
        g(f"s_mov_b32 s{sSPIN}, 0")
        if first is not None:
            for l in loads:
                g(l)
            first()
            g(f"s_branch L_pw{tag}")
        g.label(f"L_poll{tag}")
        for l in loads:
            g(l)
        g.label(f"L_pw{tag}")
        g("s_waitcnt vmcnt(0)")
        if tag == "1" and g.diag:
            g(f"s_cmp_lg_u32 s{sSPIN}, 0")
            g("s_cbranch_scc1 L_nost")
            g.stamp(10)
            g.label("L_nost")
        tagcheck(g, regs, t, t + 1)
        g(f"s_cbranch_vccz L_got{tag}")
        g("s_mov_b64 exec, vcc")
        if sleep:
            g(f"s_sleep {sleep}")
        g(f"s_add_u32 s{sSPIN}, s{sSPIN}, 1")
        g(f"s_cmp_lt_u32 s{sSPIN}, {hex(spin_max)}")
        g(f"s_cbranch_scc1 L_poll{tag}")
        g.label(f"L_got{tag}")
        g("s_mov_b64 exec, -1")

    g("s_cmp_ge_u32 s2, 256")
    g("s_cbranch_scc1 L_end")
    g.srd_load(SX, 0)
    g.srd_load(SWQ, 24)
    g.srd_load(SWS, 96)
    g.srd_load(SK, 8)
    g.srd_load(SV, 16)
    g.srd_consts(SWS, W_SIZE)
    g.stamp(0)
    if pf:
        g("s_getpc_b64 s[44:45]")
        g.label("L_pc0")
        g("s_lshr_b32 s46, s2, 3")
        g("s_lshl_b32 s46, s46, 9")
        g("v_and_b32 v2, 3, v0")
        g("v_lshl_add_u32 v2, v2, 7, s46")
        g("v_min_u32 v2, L_end - L_pc0, v2")
        g("global_load_dword v64, v2, s[44:45]")
    g("v_lshrrev_b32 v1, 6, v0")
    g("v_and_b32 v0, 63, v0")
    g(f"s_lshr_b32 s{sB}, s2, 6")
    g(f"v_readfirstlane_b32 s{sWAVE}, v1")
    if remap:
        g(f"s_and_b32 s{sS}, s2, 7")
        g(f"s_bfe_u32 s{sH}, s2, 0x30003")
        g(f"s_lshl_b32 s2, s{sB}, 3")
        g(f"s_add_u32 s2, s2, s{sS}")
        g(f"s_lshl_b32 s2, s2, 3")
        g(f"s_add_u32 s2, s2, s{sH}")
    else:
        g(f"s_and_b32 s{sH}, s2, 7")
        g(f"s_bfe_u32 s{sS}, s2, 0x30003")
    g(f"s_mov_b32 s{sHI}, 0xffff0000")
    g(f"s_lshl_b32 s{sT4}, s{sB}, 3")
    g(f"s_add_u32 s{sT4}, s{sT4}, s{sH}")
    if ND:
        g(f"s_mul_i32 s{sTKV}, s{sT4}, {tks}")
        g(f"s_add_u32 s{sTKV}, s{sTKV}, {hex(W_TK)}")
    g(f"s_cmp_eq_u32 s{sWAVE}, 0")
    g("s_cbranch_scc1 L_helper")

    vK, vV, vM, vL, vMC, vT6, vT7 = 1, 2, 3, 4, 5, 6, 7
    vS, vQ, vO = 8, 16, 32
    SLOT = [64, 128, 192]
    g.srd_consts(SK, 0x8000000)
    g.srd_consts(SV, 0x8000000)
    g(f"s_sub_u32 s{sW}, s{sWAVE}, 1")
    if touch:
        g(f"s_lshl_b32 s46, s{sW}, 3")
        g(f"s_add_u32 s46, s46, 48")
        g(f"s_load_dwordx2 s[44:45], s[0:1], s46")
        g.srd_load(SWO, 32)
        g(f"s_lshl_b32 s47, s{sH}, 19")
        g(f"v_mov_b32 v3, 0")
        g(f"v_mov_b32 v4, s47")
    g(f"s_lshl_b32 s{sDYN}, s{sT4}, 22")
    g(f"s_lshl_b32 s{sA}, s{sS}, 19")
    g(f"s_add_u32 s{sA}, s{sA}, s{sDYN}")
    sWGB, sNX, sMODE = 33, 34, 35
    g(f"s_mov_b32 s{sT3}, s{sA}")
    wsh, boff, tstep = {0: (12, 0x4000, 0x8000), 1: (13, 0x1000, 0x8000), 2: (17, 0x1000, 0x2000), 3: (12, 0x40000, 0x4000)}[lay]
    g(f"s_lshl_b32 s{sT0}, s{sW}, {wsh}")
    g(f"s_add_u32 s{sA}, s{sA}, s{sT0}")
    g(f"s_add_u32 s{sBo}, s{sA}, {boff}")
    g(f"s_add_u32 s{sDYN}, s{sDYN}, {NS*0x8000}")
    g(f"v_and_b32 v{vT6}, 3, v0")
    g(f"v_lshlrev_b32 v{vK}, 10, v{vT6}")
    g(f"v_bfe_u32 v{vT6}, v0, 2, 2")
    g(f"v_lshl_add_u32 v{vK}, v{vT6}, 8, v{vK}")
    if not kperm:
        g(f"v_and_b32 v{vK}, 15, v0")
        g(f"v_lshlrev_b32 v{vK}, 8, v{vK}")
    g(f"v_lshrrev_b32 v{vT6}, 4, v0")
    g(f"v_lshl_add_u32 v{vK}, v{vT6}, 4, v{vK}")
    g(f"v_lshlrev_b32 v{vV}, 4, v0")
    if touch:
        g("s_waitcnt lgkmcnt(0)")
        g("global_load_dword v64, v3, s[44:45]")
        g(f"global_load_dword v64, v4, s[{SWO}:{SWO+1}]")
    g("s_barrier")
    g("s_waitcnt lgkmcnt(0)")

    def kv_issue(X, paced=None, step=True):
        n = 0
        for (base, voff, rs, so, st) in ((X, vK, SK, sA, 64), (X + 16, vV, SV, sA, 1024),
                                           (X + 32, vK, SK, sBo, 64), (X + 48, vV, SV, sBo, 1024)):
            for j in range(4):
                g(f"buffer_load_dwordx4 {vq(base+4*j)}, v{voff}, {srd(rs)}, s{so} offen offset:{j*st} {kvflags}")
                n += 1
                if paced is not None and (j + 1) % pgrp == 0:
                    g(f"s_waitcnt vmcnt({paced})")
                elif brk and n % brk == 0 and n < 16:
                    g(brkop)
        if step:
            g(f"s_add_u32 s{sA}, s{sA}, {tstep}")
            g(f"s_add_u32 s{sBo}, s{sBo}, {tstep}")

    kv_issue(SLOT[0], pace)
    if not touch:
        g.srd_load(SWO, 32)
    g.srd_consts(SWO, 4096 * 512 * 2)
    g(f"s_mov_b32 s{sSELLO}, 0x05040100")
    g(f"s_mov_b32 s{sSELHI}, 0x07060302")
    g(f"s_mov_b32 s{sLOG2E}, {f32(LOG2E)}")
    g(f"s_mov_b32 s{sSCALE}, {f32(SCALE)}")
    g(f"s_mov_b32 s{sIT}, 0")
    g(f"s_mov_b32 s{sDR}, 0")
    for i in range(32):
        g(f"v_mov_b32 v{vO+i}, 0")
    g(f"v_mov_b32 v{vM}, 0xff800000")
    g(f"v_mov_b32 v{vL}, 0")
    g(f"v_mov_b32 v{vMC}, 0")
    g(f"v_and_b32 v{vS}, 3, v0")
    g(f"v_lshlrev_b32 v{vS}, 8, v{vS}")
    g(f"v_lshl_add_u32 v{vS}, v{vT6}, 4, v{vS}")
    sTKA, sTK = 30, 32
    g(f"s_mov_b32 s{sWGB}, s{sT3}")
    g(f"s_mov_b32 s{sMODE}, 0")
    if ND:
        g(f"s_add_u32 s{sTKA}, s{SWS}, s{sTKV}")
        g(f"s_addc_u32 s{sTKA+1}, s{SWS+1}, 0")
    sD0 = 28
    g(f"s_lshl_b32 s{sD0}, s{sH}, 2")
    g(f"s_add_u32 s{sD0}, s{sD0}, s{sB}")
    g(f"s_lshl_b32 s{sD0}, s{sD0}, 6")
    g(f"s_add_u32 s{sD0}, s{sD0}, s{sW}")
    g(f"s_lshl_b32 s{sD0}, s{sD0}, 11")
    g(f"s_lshl_b32 s{sT0}, s{sS}, 7")
    g(f"s_add_u32 s{sD0}, s{sD0}, s{sT0}")
    if 'wo' in skip:
        g(f"s_mov_b32 s{sD0}, {hex(OOB)}")
    g(f"s_add_u32 s{sD0+1}, s{sD0}, {64*1024 - 2048}")
    sH1S, sH1G, sYS, sYG, sOO, sOOB, sLD = 36, 37, 39, 40, 41, 42, 43
    g(f"s_lshl_b32 s{sLD}, s{sW}, 12")
    g(f"s_add_u32 s{sLD}, s{sLD}, {L_WO}")
    g(f"s_mul_i32 s{sT0}, s2, {PS}")
    g(f"s_mul_i32 s{sH1S}, s{sW}, {REC}")
    g(f"s_add_u32 s{sH1S}, s{sH1S}, s{sT0}")
    g(f"s_add_u32 s{sH1S}, s{sH1S}, {hex(A_P)}")
    g(f"s_lshl_b32 s{sT0}, s2, 10")
    g(f"s_lshl_b32 s{sYS}, s{sW}, 8")
    g(f"s_add_u32 s{sYS}, s{sYS}, s{sT0}")
    g(f"s_add_u32 s{sYS}, s{sYS}, {hex(A_Y)}")
    g(f"s_lshl_b32 s{sH1G}, s{sW}, 6")
    g(f"s_add_u32 s{sH1G}, s{sH1G}, s{sH}")
    g(f"s_mul_i32 s{sH1G}, s{sH1G}, {PS}")
    g(f"s_mul_i32 s{sT1}, s{sB}, {REC}")
    g(f"s_add_u32 s{sH1G}, s{sH1G}, s{sT1}")
    g(f"s_add_u32 s{sH1G}, s{sH1G}, {hex(A_P)}")
    g(f"s_mov_b32 s{sOOB}, {hex(OOB)}")
    g(f"s_mov_b32 m0, s{sLD}")

    def wo_issue(va):
        g(f"v_lshrrev_b32 v{va}, 3, v0")
        g(f"v_lshlrev_b32 v{va}, 13, v{va}")
        g(f"v_and_b32 v{va+1}, 7, v0")
        g(f"v_lshl_add_u32 v{va}, v{va+1}, 4, v{va}")
        g(f"v_and_b32 v{va+1}, 16, v0")
        g(f"v_lshlrev_b32 v{va+1}, 1, v{va+1}")
        g(f"s_and_b32 s{sT0}, s{sW}, 1")
        g(f"s_lshl_b32 s{sT0}, s{sT0}, 6")
        g(f"v_bitop3_b32 v{va}, v{va}, v{va+1}, s{sT0} bitop3:0x96")
        for i in range(4):
            g(f"buffer_load_dwordx4 v{va}, {srd(SWO)}, s{sD0 + (i>>1)} offen offset:{1024*i} {wflags} lds")

    kv_issue(SLOT[1], pace)
    kv_issue(SLOT[2], pace3)
    g.stamp(1)
    g("s_waitcnt lgkmcnt(0)")
    if not wolate:
        wo_issue(vS + 2)
    if flag:
        g(f"s_mov_b32 s{sSPIN}, 0")
        g.label("L_wq")
        g(f"ds_read_b64 {vq(vT6,2)}, v{vL} offset:{L_TAG}")
        g(f"s_add_u32 s{sSPIN}, s{sSPIN}, 1")
        g("s_waitcnt lgkmcnt(0)")
        g(f"v_cmp_ne_u32 vcc, 0, v{vT7}")
        g("s_cbranch_vccnz L_wq_ok")
        g("s_sleep 2")
        g(f"s_cmp_lt_u32 s{sSPIN}, {hex(spin_max*16)}")
        g("s_cbranch_scc1 L_wq")
        g.label("L_wq_ok")
    else:
        g("s_barrier")
        g(f"ds_read_b32 v{vT6}, v{vL} offset:{L_TAG}")
    for j in range(4):
        g(f"ds_read_b128 {vq(vQ+4*j)}, v{vS} offset:{L_Q + 64*j}")
    g.stamp(2)
    g("s_waitcnt lgkmcnt(0)")
    g(f"v_readfirstlane_b32 s{sTAG}, v{vT6}")
    sSLOW = 38
    g(f"v_readfirstlane_b32 s{sSLOW}, v{vT7}")

    def tile(X, tag):
        Ka, Va, Kb, Vb = X, X + 16, X + 32, X + 48
        raw = [Va, Va + 4, Va + 8, Va + 12, Vb, Vb + 4, Vb + 8, Vb + 12]
        U = Ka
        T = Kb
        P = Kb + 4
        MX, TM = Kb + 8, Kb + 9
        NW = 4 if wolate else 0
        cnt = [0]
        def wait(n):
            g(f"s_waitcnt vmcnt({n})")
            g(f"s_cbranch_scc0 L_w{tag}{cnt[0]}")
            g(f"s_waitcnt vmcnt({n - 32 + NW})")
            g.label(f"L_w{tag}{cnt[0]}")
            cnt[0] += 1
        g(f"s_cmp_eq_u32 s{sDR}, 2")
        if nocomp:
            wait(32)
            return
        wait(44)
        for j in range(4):
            c = "0" if j == 0 else vq(vS)
            g(f"v_mfma_f32_16x16x32_bf16 {vq(vS)}, {vq(Ka+4*j)}, {vq(vQ+4*j)}, {c}")
        wait(36)
        for j in range(4):
            c = "0" if j == 0 else vq(vS + 4)
            g(f"v_mfma_f32_16x16x32_bf16 {vq(vS+4)}, {vq(Kb+4*j)}, {vq(vQ+4*j)}, {c}")
        g("s_nop 3")
        g(f"v_cvt_pk_bf16_f32 v{T}, v{vS}, v{vS+1}")
        g(f"v_cvt_pk_bf16_f32 v{T+1}, v{vS+2}, v{vS+3}")
        g(f"v_lshlrev_b32 v{vS}, 16, v{T}")
        g(f"v_and_b32 v{vS+1}, s{sHI}, v{T}")
        g(f"v_lshlrev_b32 v{vS+2}, 16, v{T+1}")
        g(f"v_and_b32 v{vS+3}, s{sHI}, v{T+1}")
        g(f"v_cvt_pk_bf16_f32 v{T+2}, v{vS+4}, v{vS+5}")
        g(f"v_cvt_pk_bf16_f32 v{T+3}, v{vS+6}, v{vS+7}")
        g(f"v_lshlrev_b32 v{vS+4}, 16, v{T+2}")
        g(f"v_and_b32 v{vS+5}, s{sHI}, v{T+2}")
        g(f"v_lshlrev_b32 v{vS+6}, 16, v{T+3}")
        g(f"v_and_b32 v{vS+7}, s{sHI}, v{T+3}")
        for i in range(8):
            g(f"v_mul_f32 v{vS+i}, s{sSCALE}, v{vS+i}")
        for i in range(4):
            g(f"v_cvt_pk_bf16_f32 v{T+i}, v{vS+2*i}, v{vS+2*i+1}")
        for i in range(4):
            g(f"v_lshlrev_b32 v{vS+2*i}, 16, v{T+i}")
            g(f"v_and_b32 v{vS+2*i+1}, s{sHI}, v{T+i}")
        g(f"v_max3_f32 v{MX}, v{vS}, v{vS+1}, v{vS+2}")
        g(f"v_max3_f32 v{TM}, v{vS+3}, v{vS+4}, v{vS+5}")
        g(f"v_max3_f32 v{MX}, v{MX}, v{vS+6}, v{vS+7}")
        g(f"v_max3_f32 v{MX}, v{MX}, v{TM}, v{vM}")
        for sw in ("v_permlane32_swap_b32", "v_permlane16_swap_b32"):
            g(f"v_mov_b32 v{TM}, v{MX}")
            g("s_nop 1")
            g(f"{sw} v{MX}, v{TM}")
            g(f"v_max_f32 v{MX}, v{MX}, v{TM}")
        g(f"v_cmp_gt_f32 vcc, v{MX}, v{vM}")
        g(f"s_cbranch_vccz L_nr{tag}")
        g(f"v_sub_f32 v{TM}, v{vM}, v{MX}")
        g(f"v_mul_f32 v{TM}, s{sLOG2E}, v{TM}")
        g(f"v_exp_f32 v{TM}, v{TM}")
        g(f"v_mov_b32 v{vM}, v{MX}")
        g(f"v_mul_f32 v{vMC}, s{sLOG2E}, v{MX}")
        g(f"v_mul_f32 v{vL}, v{vL}, v{TM}")
        for i in range(32):
            g(f"v_mul_f32 v{vO+i}, v{vO+i}, v{TM}")
        g.label(f"L_nr{tag}")
        for i in range(8):
            g(f"v_fma_f32 v{vS+i}, v{vS+i}, s{sLOG2E}, -v{vMC}")
        for i in range(8):
            g(f"v_exp_f32 v{vS+i}, v{vS+i}")
        wait(32)
        perms(g, raw, 0, U)
        for i in range(4):
            g(f"v_cvt_pk_bf16_f32 v{P+i}, v{vS+2*i}, v{vS+2*i+1}")
        perms(g, raw, 1, U + 4)
        for e in range(8):
            g(f"v_mfma_f32_16x16x32_bf16 {vq(vO+4*e)}, {vq(U+4*(e%4))}, {vq(P)}, {vq(vO+4*e)}")
            if e + 2 < 8:
                perms(g, raw, e + 2, U + 4 * ((e + 2) % 4))
            else:
                b = 4 * (e - 6)
                g(f"v_add_f32 v{vS+b}, v{vS+b}, v{vS+b+1}")
                g(f"v_add_f32 v{vS+b+2}, v{vS+b+2}, v{vS+b+3}")
                g(f"v_add_f32 v{vS+b}, v{vS+b}, v{vS+b+2}")
                g(f"v_add_f32 v{vL}, v{vL}, v{vS+b}")

    NL = 4 * NS
    def lookahead(tag):
        g(f"s_cmp_lg_u32 s{sMODE}, 0")
        g(f"s_cbranch_scc1 L_lg{tag}")
        if statictile:
            if tag == "p":
                g(f"s_add_u32 s{sNX}, s{sW}, 8")
            g(f"s_add_u32 s{sNX}, s{sNX}, 4")
        else:
            g("s_mov_b64 exec, 1")
            g(f"ds_add_rtn_u32 v{vS}, v{vT6}, v{vT7} offset:{L_CNT}")
            g("s_mov_b64 exec, -1")
            g("s_waitcnt lgkmcnt(0)")
            g(f"v_readfirstlane_b32 s{sNX}, v{vS}")
        g(f"s_cmp_lt_u32 s{sNX}, {NL}")
        g(f"s_cbranch_scc1 L_le{tag}")
        g(f"s_mov_b32 s{sMODE}, 1")
        g.label(f"L_lg{tag}")
        if ND:
            g(f"s_mov_b32 s{sTK}, 1")
            g(f"s_atomic_add s{sTK}, s[{sTKA}:{sTKA+1}], 0x0 glc")
        g.label(f"L_le{tag}")
    g(f"v_mov_b32 v{vT6}, 0")
    g(f"v_mov_b32 v{vT7}, 1")
    lookahead("p")
    g.L.append(".p2align 3")
    for k in range(3):
        X = SLOT[k]
        g.label(f"L_tile{k}")
        tile(X, "abc"[k])
        if g.diag:
            g(f"s_add_u32 s{sIT}, s{sIT}, 1")
        g(f"s_cmp_lg_u32 s{sMODE}, 0")
        g(f"s_cbranch_scc1 L_dyn{k}")
        g(f"s_lshr_b32 s{sA}, s{sNX}, 2")
        g(f"s_lshl_b32 s{sA}, s{sA}, 15")
        g(f"s_and_b32 s{sT1}, s{sNX}, 3")
        g(f"s_lshl_b32 s{sT1}, s{sT1}, {wsh}")
        g(f"s_add_u32 s{sA}, s{sA}, s{sT1}")
        g(f"s_add_u32 s{sA}, s{sA}, s{sWGB}")
        g.label(f"L_kv{k}")
        g(f"s_add_u32 s{sBo}, s{sA}, {boff}")
        lookahead(k)
        kv_issue(X, step=False)
    g("s_branch L_tile0")

    for k in range(3):
        X = SLOT[k]
        nxt = f"L_tile{(k+1)%3}"
        g.label(f"L_dyn{k}")
        g(f"s_cmp_eq_u32 s{sDR}, 2")
        g(f"s_cbranch_scc1 L_tail")
        g(f"s_cmp_eq_u32 s{sDR}, 1")
        g(f"s_cbranch_scc1 L_dr2{k}")
        if ND:
            g("s_waitcnt lgkmcnt(0)")
            g(f"s_cmp_ge_u32 s{sTK}, {ND}")
            g(f"s_cbranch_scc1 L_dr1{k}")
            g(f"s_bfe_u32 s{sA}, s{sTK}, 0x30002")
            g(f"s_lshl_b32 s{sA}, s{sA}, 19")
            g(f"s_and_b32 s{sT1}, s{sTK}, 3")
            g(f"s_lshl_b32 s{sT1}, s{sT1}, {wsh}")
            g(f"s_add_u32 s{sA}, s{sA}, s{sT1}")
            g(f"s_lshr_b32 s{sT0}, s{sTK}, 5")
            g(f"s_lshl_b32 s{sT0}, s{sT0}, 15")
            g(f"s_add_u32 s{sA}, s{sA}, s{sT0}")
            g(f"s_add_u32 s{sA}, s{sA}, s{sDYN}")
            g(f"s_branch L_kv{k}")
        g.label(f"L_dr1{k}")
        g("s_mov_b64 exec, 1")
        g(f"ds_add_u32 v{vT6}, v{vT7} offset:{L_CNT}")
        g("s_mov_b64 exec, -1")
        if wolate:
            wo_issue(vS)
        g(f"v_and_b32 v{vT6}, 3, v0")
        g(f"v_lshrrev_b32 v{vT7}, 4, v0")
        g(f"v_lshlrev_b32 v{vT7}, 4, v{vT7}")
        g(f"v_lshl_add_u32 v{vT7}, v{vT6}, 9, v{vT7}")
        g(f"s_lshl_b32 s{sT0}, s{sW}, 11")
        g(f"v_add_u32 v{vT7}, s{sT0}, v{vT7}")
        g(f"s_lshl_b32 s{sT0}, s{sW}, 2")
        g(f"v_lshl_add_u32 v{vT6}, v{vT6}, 5, s{sT0}")
        g(f"s_mov_b32 s{sMASK}, 0x000f000f")
        g(f"s_mov_b32 s{sMASK+1}, 0x000f000f")
        g(f"s_waitcnt vmcnt({20 if wolate else 16})")
        g.label(f"L_dr2{k}")
        g(f"s_add_u32 s{sDR}, s{sDR}, 1")
        g(f"s_branch {nxt}")

    X = 64
    WT = 128
    g.label("L_tail")
    g.stamp(3)
    if notail:
        g("s_branch L_fin")
    TM = vS + 7
    vFF = vMC
    for sw in ("v_permlane32_swap_b32", "v_permlane16_swap_b32"):
        g(f"v_mov_b32 v{TM}, v{vL}")
        g("s_nop 1")
        g(f"{sw} v{vL}, v{TM}")
        g(f"v_add_f32 v{vL}, v{vL}, v{TM}")
    RA, RS = vS, vS + 1
    g(f"s_mov_b64 exec, s[{sMASK}:{sMASK+1}]")
    for e in range(8):
        g(f"ds_write_b128 v{vT7}, {vq(vO+4*e)} offset:{L_PART + 64*e}")
    g(f"ds_write_b32 v{vT6}, v{vM} offset:{L_STAT}")
    g("s_waitcnt vmcnt(0)")
    g(f"ds_write_b32 v{vT6}, v{vL} offset:{L_STAT+16}")
    g("s_mov_b64 exec, -1")
    g(f"v_and_b32 v{RA}, 31, v0")
    g(f"s_lshl_b32 s{sT0}, s{sW}, 9")
    g(f"v_lshl_add_u32 v{RA}, v{RA}, 4, s{sT0}")
    g(f"s_lshl_b32 s{sT0}, s{sW}, 5")
    g(f"v_mov_b32 v{RS}, s{sT0}")
    PR = X
    SM, SL = X + 16, X + 20
    def joinreads():
        g(f"ds_read_b128 {vq(SL)}, v{RS} offset:{L_STAT+16}")
        g(f"ds_read_b128 {vq(SM)}, v{RS} offset:{L_STAT}")
        for w in range(4):
            g(f"ds_read_b128 {vq(PR+4*w)}, v{RA} offset:{L_PART + 2048*w}")
    joinreads()
    g(f"v_mov_b32 v{vFF}, 0xff")
    vZ0, vZ1 = 20, 21
    g(f"v_mov_b32 v{vZ0}, 0")
    g(f"v_mov_b32 v{vZ1}, 1")
    vP1, vP2, vG, vTRW = vS + 2, vS + 3, vS + 4, vS + 5
    g(f"v_lshrrev_b32 v{vP2}, 3, v0")
    g(f"v_mul_u32_u24 v{vP2}, {8*PS}, v{vP2}")
    g(f"v_and_b32 v{vP1}, 7, v0")
    g(f"v_lshl_add_u32 v{vP1}, v{vP1}, 4, v{vP2}")
    g(f"v_lshrrev_b32 v{vG}, 4, v0")
    g(f"v_bfe_u32 v{vTRW}, v0, 2, 2")
    g(f"v_lshlrev_b32 v{vTRW}, 7, v{vTRW}")
    g(f"v_and_b32 v{TM}, 3, v0")
    g(f"v_lshl_add_u32 v{vTRW}, v{TM}, 3, v{vTRW}")
    g(f"v_lshl_add_u32 v{vTRW}, v{vG}, 12, v{vTRW}")
    TRA = (vTRW, 16, 17, 18)
    g(f"v_bfe_u32 v{TM}, v0, 3, 2")
    g(f"v_lshl_add_u32 v{vTRW}, v{TM}, 5, v{vTRW}")
    for j in range(1, 4):
        g(f"v_xor_b32 v{TRA[j]}, {32*j}, v{vTRW}")
    g(f"s_mov_b32 s{sMASK}, -1")
    g(f"s_mov_b32 s{sMASK+1}, 0xff")
    g(f"s_mov_b32 s{sMASK2}, 0")
    g(f"s_mov_b32 s{sMASK2+1}, -1")
    g(f"s_mov_b32 s{sSPIN}, 0")
    g.label("L_join")
    g("s_waitcnt lgkmcnt(0)" if g.diag else "s_waitcnt lgkmcnt(4)")
    g(f"v_min3_u32 v{TM}, v{SL}, v{SL+1}, v{SL+2}")
    g(f"v_min_u32 v{TM}, v{TM}, v{SL+3}")
    g(f"v_cmp_eq_u32 vcc, 0, v{TM}")
    g("s_cbranch_vccz L_joined")
    g("s_waitcnt lgkmcnt(0)")
    joinreads()
    g(f"s_add_u32 s{sSPIN}, s{sSPIN}, 1")
    g(f"s_cmp_lt_u32 s{sSPIN}, {hex(spin_max*16)}")
    g("s_cbranch_scc1 L_join")
    g.label("L_joined")
    g.stamp(4)
    MM, LL = X + 24, X + 25
    g(f"v_max3_f32 v{MM}, v{SM}, v{SM+1}, v{SM+2}")
    g(f"v_max_f32 v{MM}, v{MM}, v{SM+3}")
    for w in range(4):
        g(f"v_sub_f32 v{SM+w}, v{SM+w}, v{MM}")
    for w in range(4):
        g(f"v_mul_f32 v{SM+w}, s{sLOG2E}, v{SM+w}")
    for w in range(4):
        g(f"v_exp_f32 v{SM+w}, v{SM+w}")
    g("s_waitcnt lgkmcnt(0)")
    g(f"v_mul_f32 v{LL}, v{SM}, v{SL}")
    for i in range(4):
        g(f"v_mul_f32 v{PR+i}, v{SM}, v{PR+i}")
    for w in range(1, 4):
        g(f"v_fmac_f32 v{LL}, v{SM+w}, v{SL+w}")
        for i in range(4):
            g(f"v_fmac_f32 v{PR+i}, v{SM+w}, v{PR+4*w+i}")
    g(f"v_cndmask_b32 v{PR}, v{PR}, v{MM}, s[{sMASK2}:{sMASK2+1}]")
    g(f"v_cndmask_b32 v{PR+1}, v{PR+1}, v{LL}, s[{sMASK2}:{sMASK2+1}]")
    for i in range(4):
        g(f"v_bfi_b32 v{PR+i}, v{vFF}, s{sTAG}, v{PR+i}")
    g(f"s_mov_b64 exec, s[{sMASK}:{sMASK+1}]")
    if fast:
        g(f"s_cmp_eq_u32 s{sSLOW}, 1")
        g("s_cbranch_scc0 L_p1slow")
        g(f"buffer_store_dwordx4 {vq(PR)}, v{vV}, {srd(SWS)}, s{sH1S} offen {p1s}")
        g("s_branch L_p1done")
        g.label("L_p1slow")
    g(f"buffer_store_dwordx4 {vq(PR)}, v{vV}, {srd(SWS)}, s{sH1S} offen sc1")
    g.label("L_p1done")
    g("s_mov_b64 exec, -1")
    D = X + 28
    ST = X + 44
    C1, C2 = X + 46, X + 47
    def wofrag():
        for step in range(4):
            for j in range(4):
                for half in range(2):
                    g(f"ds_read_b64_tr_b16 {vq(WT+16*step+4*j+2*half,2)}, v{TRA[j]} offset:{L_WO + 1024*((step>>1) + 2*(step&1)) + 512*half}")
    if not trlate:
        wofrag()
    if p1wait:
        g(f"s_sleep {p1wait}")
    g.stamp(9)
    poll("1", [f"buffer_load_dwordx4 {vq(D+4*i)}, v{vP1}, {srd(SWS)}, s{sH1G} offen offset:{128*i} {p1l}" for i in range(4)]
         + [f"buffer_load_dwordx2 {vq(ST,2)}, v{vP1}, {srd(SWS)}, s{sH1G} offen offset:512 {p1l}"],
         [D + i for i in range(18)], C1, psleep, wofrag if trlate else None)
    g.stamp(5)
    g("s_mov_b64 exec, 1")
    g(f"ds_add_u32 v{vZ0}, v{vZ1} offset:{L_CNT}")
    g("s_mov_b64 exec, -1")
    C3 = X + 26
    g(f"v_and_b32 v{ST}, s{sHI}, v{ST}")
    g("s_nop 1")
    g(f"v_max_f32_dpp v{C1}, v{ST}, v{ST} row_ror:8 row_mask:0xf bank_mask:0xf")
    for sw in ("v_permlane16_swap_b32", "v_permlane32_swap_b32"):
        g(f"v_mov_b32 v{C3}, v{C1}")
        g("s_nop 1")
        g(f"{sw} v{C1}, v{C3}")
        g(f"v_max_f32 v{C1}, v{C1}, v{C3}")
    g(f"v_sub_f32 v{C1}, v{ST}, v{C1}")
    g(f"v_mul_f32 v{C1}, s{sLOG2E}, v{C1}")
    g(f"v_exp_f32 v{C1}, v{C1}")
    g("s_nop 0")
    g(f"v_mul_f32 v{C2}, v{C1}, v{ST+1}")
    for i in range(16):
        g(f"v_mul_f32 v{D+i}, v{C1}, v{D+i}")
        if i == 1:
            g(f"v_add_f32_dpp v{C2}, v{C2}, v{C2} row_ror:8 row_mask:0xf bank_mask:0xf")
        if i in (2, 7):
            g(f"v_mov_b32 v{C3}, v{C2}")
        if i == 5:
            g(f"v_permlane16_swap_b32 v{C2}, v{C3}")
        if i == 10:
            g(f"v_permlane32_swap_b32 v{C2}, v{C3}")
        if i in (6, 11):
            g(f"v_add_f32 v{C2}, v{C2}, v{C3}")
        if i == 12:
            g(f"v_rcp_f32 v{C2}, v{C2}")
    for i in range(8):
        g(f"v_permlane32_swap_b32 v{D+i}, v{D+8+i}")
    for i in range(8):
        g(f"v_add_f32 v{D+i}, v{D+i}, v{D+8+i}")
    for i in range(4):
        if i == 3:
            g("s_nop 0")
        g(f"v_permlane16_swap_b32 v{D+i}, v{D+4+i}")
    for i in range(4):
        g(f"v_add_f32 v{D+i}, v{D+i}, v{D+4+i}")
    for i in range(4):
        g(f"v_add_f32_dpp v{D+i}, v{D+i}, v{D+i} row_ror:8 row_mask:0xf bank_mask:0xf")
    for i in range(4):
        g(f"v_mul_f32 v{D+i}, v{C2}, v{D+i}")
    B0 = X + 48
    g(f"v_cvt_pk_bf16_f32 v{B0}, v{D}, v{D+1}")
    g(f"v_cvt_pk_bf16_f32 v{B0+1}, v{D+2}, v{D+3}")
    g("s_waitcnt lgkmcnt(0)")
    def mv(c):
        for i in range(2):
            g(f"v_mov_b32_dpp v{B0+2*c+i}, v{B0+i} row_shl:{c} row_mask:0xf bank_mask:0xf bound_ctrl:0")
    mv(1)
    mv(2)
    for step in range(4):
        for j in range(4):
            c = "0" if step == 0 else vq(vO + 4 * j)
            g(f"v_mfma_f32_16x16x32_bf16 {vq(vO+4*j)}, {vq(B0+4*step)}, {vq(WT+16*step+4*j)}, {c}")
            if step * 4 + j < 5:
                mv(3 + step * 4 + j)
    g("s_mov_b64 exec, 0xffff")
    g("s_nop 3")
    YO = 16
    for j in range(4):
        g(f"v_bfi_b32 v{YO+j}, v{vFF}, s{sTAG}, v{vO+4*j}")
    g(f"buffer_store_dwordx4 {vq(YO)}, v{vV}, {srd(SWS)}, s{sYS} offen sc1")
    g("s_mov_b64 exec, -1")
    g.stamp(6)
    g("s_branch L_fin")

    g.label("L_helper")
    g(f"v_mov_b32 v7, 0")
    g(f"v_mov_b32 v8, 12")
    g(f"ds_write_b32 v7, v7 offset:{L_TAG+4}")
    g(f"ds_write_b32 v7, v8 offset:{L_CNT}")
    g(f"v_lshlrev_b32 v8, 2, v0")
    g(f"ds_write_b32 v8, v7 offset:{L_STAT}")
    if bar0 == 0:
        g("s_waitcnt lgkmcnt(0)")
        g("s_barrier")
    g("s_setprio 3")
    g.srd_consts(SX, 4096)
    g.srd_consts(SWQ, 512 * 4096 * 2)
    hT = 20
    hACC = 32
    R = 48
    XR = 64
    XF = 80
    WF = 128
    vX, vTAG, vTR, vFFh = 2, 6, 9, 8
    sU, sC1 = 52, 54
    g(f"s_and_b32 s{sU}, s{sS}, 1")
    g(f"s_lshr_b32 s{sC1}, s{sS}, 1")
    g(f"s_lshl_b32 s{sC1}, s{sC1}, 3")
    g(f"s_add_u32 s{sC1}, s{sC1}, s{sH}")
    g(f"v_and_b32 v3, 3, v0")
    g(f"v_lshlrev_b32 v{vX}, 10, v3")
    g(f"v_bfe_u32 v4, v0, 2, 2")
    g(f"s_lshl_b32 s{sT0}, s{sU}, 1")
    g(f"v_xor_b32 v7, s{sT0}, v4")
    g(f"v_lshl_add_u32 v{vX}, v7, 6, v{vX}")
    g(f"v_lshrrev_b32 v5, 4, v0")
    g(f"v_lshl_add_u32 v{vX}, v5, 4, v{vX}")
    SXO = (56, 57, 58, 59)
    for j in range(4):
        g(f"s_xor_b32 s{SXO[j]}, s{sB}, {j}")
        g(f"s_lshl_b32 s{SXO[j]}, s{SXO[j]}, 8")
    g(f"v_lshrrev_b32 v10, 3, v0")
    g(f"v_and_b32 v11, 7, v0")
    g(f"v_lshlrev_b32 v11, 4, v11")
    VQ, V1, V2 = 112, 116, 120
    g(f"v_lshl_add_u32 v{VQ}, v10, 13, v11")
    for i in range(1, 4):
        g(f"v_add_u32 v{VQ+i}, {hex(i*(8*8192 - 1024))}, v{VQ}")
    SQO = (sA, sBo, sIT, sT0)
    g(f"s_lshl_b32 s{sT1}, s{sH}, 3")
    g(f"s_add_u32 s{sT1}, s{sT1}, s{sS}")
    g(f"s_lshl_b32 s{sT1}, s{sT1}, 7")
    g(f"s_lshl_b32 s{sT2}, s{sB}, 20")
    g(f"s_add_u32 s{sT1}, s{sT1}, s{sT2}")
    if 'wq' in skip:
        g(f"s_mov_b32 s{sT1}, {hex(OOB)}")
    g(f"s_lshl_b32 s{sT2}, s{sU}, 19")
    g(f"s_add_u32 s{SQO[0]}, s{sT1}, s{sT2}")
    g(f"s_add_u32 s{SQO[1]}, s{SQO[0]}, {hex(32*8192)}")
    g(f"s_xor_b32 s{sT2}, s{sT2}, {hex(64*8192)}")
    g(f"s_add_u32 s{SQO[2]}, s{sT1}, s{sT2}")
    g(f"s_add_u32 s{SQO[3]}, s{SQO[2]}, {hex(32*8192)}")
    g(f"v_mov_b32 v7, 0")
    g(f"s_mov_b32 s{sSPIN}, {hex(W_EP)}")
    g(f"s_mov_b32 m0, {L_WQ}")
    if ND:
        g(f"s_cmp_eq_u32 s{sS}, 0")
        g(f"s_cselect_b32 s{sTKV}, s{sTKV}, {hex(OOB)}")
        g(f"v_lshlrev_b32 v10, 2, v0")
    g("s_waitcnt lgkmcnt(0)")
    for j in range(4):
        g(f"buffer_load_dwordx4 {vq(XR+4*j)}, v{vX}, {srd(SX)}, s{SXO[j]} offen")
    g(f"buffer_load_dword v{vTAG}, v7, {srd(SWS)}, s{sSPIN} offen sc1")
    if ND:
        g(f"buffer_store_dword v7, v10, {srd(SWS)}, s{sTKV} offen sc1")
    bursts = [(VQ, SWQ, so) for so in SQO]
    for n, (V, rs, so) in enumerate(bursts):
        for i in range(4):
            g(f"buffer_load_dwordx4 v{V+i}, {srd(rs)}, s{so} offen offset:{1024*i} {wflags} lds")
        if n + 1 == bar0:
            g("s_barrier")
        if n < len(bursts) - 1:
            g(f"s_add_u32 m0, m0, 4096")
            g("s_nop 0")
    if hstop == 1:
        g(f"v_mov_b32 v7, 0")
        g(f"v_mov_b32 v8, 1")
        g(f"ds_write_b32 v7, v8 offset:{L_TAG+4}")
        g("s_waitcnt lgkmcnt(0)")
        g("s_branch L_hend")
    for (b_, off, nb) in ((SB1, 56, 1792 * 2), (SB2, 72, 1024), (SW1, 48, 512 * 1792 * 2), (SW2, 64, 1792 * 512 * 2), (SOUT, 80, 4096)):
        g.srd_load(b_, off)
        g.srd_consts(b_, nb)
    vQS = 10
    g(f"v_lshlrev_b32 v{vQS}, 8, v3")
    g(f"v_lshl_add_u32 v{vQS}, v4, 6, v{vQS}")
    g(f"v_lshl_add_u32 v{vQS}, v5, 4, v{vQS}")
    sOWN, sOWNH, sOWNZ = sA, sBo, sIT
    g(f"s_lshl_b32 s{sOWN}, s2, 10")
    g(f"s_add_u32 s{sOWNH}, s{sOWN}, {hex(A_H)}")
    g(f"s_add_u32 s{sOWNZ}, s{sOWN}, {hex(A_Z)}")
    g(f"v_lshlrev_b32 v{vTR}, 10, v5")
    g(f"v_lshl_add_u32 v{vTR}, v4, 7, v{vTR}")
    g(f"v_lshl_add_u32 v{vTR}, v3, 3, v{vTR}")
    g(f"v_mov_b32 v{vFFh}, 0xff")
    SM1, SM2, SM3 = 12, 14, 68
    for (sm, c) in ((SM1, 1), (SM2, 2), (SM3, 3)):
        g(f"s_mov_b32 s{sm}, {hex(0x000f000f << (4*c))}")
        g(f"s_mov_b32 s{sm+1}, {hex(0x000f000f << (4*c))}")
    def red4(v, t):
        for r in (4, 8):
            g("s_nop 1")
            g(f"v_add_f32_dpp v{v}, v{v}, v{v} row_ror:{r} row_mask:0xf bank_mask:0xf")
        for sw in ("v_permlane16_swap_b32", "v_permlane32_swap_b32"):
            g(f"v_mov_b32 v{t}, v{v}")
            g("s_nop 1")
            g(f"{sw} v{v}, v{t}")
            g(f"v_add_f32 v{v}, v{v}, v{t}")
    NY = 16 + (1 if ND else 0)
    g(f"s_waitcnt vmcnt({NY + 1})")
    for i in range(16):
        g(f"v_lshlrev_b32 v{XF+2*i}, 16, v{XR+i}")
        g(f"v_and_b32 v{XF+2*i+1}, s{sHI}, v{XR+i}")
    g(f"v_pk_add_f32 {vq(hT,2)}, {vq(XF,2)}, {vq(XF+2,2)}")
    g(f"v_pk_add_f32 {vq(hT+2,2)}, {vq(XF+4,2)}, {vq(XF+6,2)}")
    for i in range(4, 16):
        d = hT + 2 * (i & 1)
        g(f"v_pk_add_f32 {vq(d,2)}, {vq(d,2)}, {vq(XF+2*i,2)}")
    g(f"v_pk_add_f32 {vq(hT,2)}, {vq(hT,2)}, {vq(hT+2,2)}")
    g(f"v_add_f32 v{hT}, v{hT}, v{hT+1}")
    red4(hT, hT + 1)
    g(f"v_mul_f32 v{hT}, {f32(-1.0/512)}, v{hT}")
    g(f"v_mov_b32 v{hT+1}, v{hT}")
    for i in range(16):
        t = hT + 6 + 2 * (i & 1)
        d = hT + 2 + 2 * (i & 1)
        g(f"v_pk_add_f32 {vq(t,2)}, {vq(XF+2*i,2)}, {vq(hT,2)}")
        if i < 2:
            g(f"v_pk_mul_f32 {vq(d,2)}, {vq(t,2)}, {vq(t,2)}")
        else:
            g(f"v_pk_fma_f32 {vq(d,2)}, {vq(t,2)}, {vq(t,2)}, {vq(d,2)}")
    g(f"v_pk_add_f32 {vq(hT+2,2)}, {vq(hT+2,2)}, {vq(hT+4,2)}")
    g(f"v_add_f32 v{hT+2}, v{hT+2}, v{hT+3}")
    rne(g, hT, hT)
    red4(hT + 2, hT + 3)
    g(f"v_mul_f32 v{hT+2}, {f32(1.0/512)}, v{hT+2}")
    rne(g, hT + 2, hT + 2)
    g(f"v_add_f32 v{hT+2}, {f32(1e-5)}, v{hT+2}")
    rne(g, hT + 2, hT + 2)
    g(f"v_sqrt_f32 v{hT+2}, v{hT+2}")
    for i in range(8):
        g(f"v_add_f32 v{XF+i}, v{XF+i}, v{hT}")
    rne(g, hT + 2, hT + 2)
    g(f"v_rcp_f32 v{hT+4}, v{hT+2}")
    def round8(F, T):
        for i in range(4):
            g(f"v_cvt_pk_bf16_f32 v{T+i}, v{F+2*i}, v{F+2*i+1}")
        for i in range(4):
            g(f"v_lshlrev_b32 v{F+2*i}, 16, v{T+i}")
            g(f"v_and_b32 v{F+2*i+1}, s{sHI}, v{T+i}")
    round8(XF, R)
    for i in range(8):
        g(f"v_mul_f32 v{XF+8+i}, v{XF+i}, v{hT+4}")
    for i in range(8):
        g(f"v_fma_f32 v{XF+i}, -v{XF+8+i}, v{hT+2}, v{XF+i}")
    for i in range(8):
        g(f"v_fma_f32 v{XF+i}, v{XF+i}, v{hT+4}, v{XF+8+i}")
    for i in range(4):
        g(f"v_cvt_pk_bf16_f32 v{R+i}, v{XF+2*i}, v{XF+2*i+1}")
    g.stamp(1)
    g(f"s_waitcnt vmcnt({NY})")
    g(f"v_add_u32 v{vTAG}, 1, v{vTAG}")
    for t in range(1, 4):
        for i in range(4):
            g(f"v_mov_b32_dpp v{R+4*t+i}, v{R+i} row_ror:{4*t} row_mask:0xf bank_mask:0xf")
    g(f"v_readfirstlane_b32 s{sTAG}, v{vTAG}")
    sTAGQ, sRP = 70, 71
    g(f"s_getreg_b32 s{sTAGQ}, hwreg(HW_REG_XCC_ID)")
    g(f"s_and_b32 s{sTAGQ}, s{sTAGQ}, 7")
    g(f"s_lshl_b32 s{sTAGQ}, s{sTAGQ}, 5")
    g(f"s_and_b32 s{sRP}, s{sTAG}, 31")
    g(f"s_or_b32 s{sTAGQ}, s{sTAGQ}, s{sRP}")

    def gemm1(base, nstep, vm, off, so, tg, store=True):
        for s_ in range(nstep):
            g(f"s_waitcnt vmcnt({vm - 4*(s_+1)})")
            for c in range(4):
                for half in range(2):
                    g(f"ds_read_b64_tr_b16 {vq(WF+16*s_+4*c+2*half,2)}, v{vTR} offset:{base + 4096*s_ + 512*half + 32*c}")
            g("s_waitcnt lgkmcnt(0)")
            for c in range(4):
                cc = "0" if s_ == 0 else vq(hACC + 4 * c)
                g(f"v_mfma_f32_16x16x32_bf16 {vq(hACC+4*c)}, {vq(WF+16*s_+4*c)}, {vq(R+4*((c-s_)&3))}, {cc}")
        g("s_nop 5")
        for (sm, c) in ((SM1, 1), (SM2, 2), (SM3, 3)):
            for r in range(4):
                g(f"v_cndmask_b32 v{hACC+r}, v{hACC+r}, v{hACC+4*c+r}, s[{sm}:{sm+1}]")
        for r in range(4):
            g(f"v_bfi_b32 v{hT+off+r}, v{vFFh}, s{tg}, v{hACC+r}")
        if store:
            g(f"buffer_store_dwordx4 {vq(hT+off)}, v{vQS}, {srd(SWS)}, s{so} offen {'' if fast else 'sc1'}")

    gemm1(L_WQ, 4, 16, 0, sOWN, sTAGQ)
    g.stamp(2)
    if hstop == 2:
        g(f"v_mov_b32 v7, 0")
        g(f"v_mov_b32 v8, 1")
        g(f"ds_write_b32 v7, v8 offset:{L_TAG+4}")
        g("s_waitcnt lgkmcnt(0)")
        g("s_branch L_hend")
    g(f"v_mov_b32 v11, s{sTAG}")
    g(f"ds_write_b32 v7, v11 offset:{L_TAG}")
    g(f"v_lshrrev_b32 v12, 3, v0")
    g(f"v_lshlrev_b32 v12, 13, v12")
    g(f"v_and_b32 v13, 7, v0")
    g(f"v_lshl_add_u32 v12, v13, 5, v12")
    g(f"s_lshl_b32 s{SXO[0]}, s{sH}, 10")
    g(f"s_lshl_b32 s{sT0}, s{sB}, 8")
    g(f"s_add_u32 s{SXO[0]}, s{SXO[0]}, s{sT0}")
    for j in range(1, 4):
        g(f"s_add_u32 s{SXO[j]}, s{SXO[0]}, {hex(j << 16)}")
    g(f"v_lshlrev_b32 v13, 4, v0")
    if qwait:
        g(f"s_sleep {qwait}")
    QG = 64
    def republish():
        g(f"buffer_store_dwordx4 {vq(hT)}, v{vQS}, {srd(SWS)}, s{sOWN} offen sc1")
    g(f"s_mov_b32 s{sSPIN}, 0")
    g.label("L_pollq")
    for j in range(4):
        for i in range(2):
            g(f"buffer_load_dwordx4 {vq(QG+8*j+4*i)}, v12, {srd(SWS)}, s{SXO[j]} offen offset:{16*i} sc1")
    g("s_waitcnt vmcnt(0)")
    tagcheck(g, [QG + i for i in range(32)], 30, 31, sTAGQ, 0x1f)
    g("s_cbranch_vccz L_gotq")
    g(f"s_add_u32 s{sSPIN}, s{sSPIN}, 1")
    g(f"s_cmp_lg_u32 s{sSPIN}, {repub}")
    g("s_cbranch_scc1 L_norp")
    g("s_mov_b64 exec, -1")
    republish()
    g.label("L_norp")
    g("s_mov_b64 exec, vcc")
    g(f"s_cmp_lt_u32 s{sSPIN}, {hex(spin_max)}")
    g("s_cbranch_scc1 L_pollq")
    g.label("L_gotq")
    g("s_mov_b64 exec, -1")
    g(f"v_and_b32 v30, 0xe0, v30")
    g(f"v_cmp_ne_u32 vcc, 0, v30")
    g(f"v_mov_b32 v31, 1")
    g("s_cbranch_vccz L_same")
    g(f"v_mov_b32 v31, 2")
    republish()
    g.label("L_same")
    g.stamp(4)
    for i in range(4):
        g(f"v_pk_add_f32 {vq(QG+2*i,2)}, {vq(QG+2*i,2)}, {vq(QG+8+2*i,2)}")
        g(f"v_pk_add_f32 {vq(QG+16+2*i,2)}, {vq(QG+16+2*i,2)}, {vq(QG+24+2*i,2)}")
    for i in range(4):
        g(f"v_pk_add_f32 {vq(QG+2*i,2)}, {vq(QG+2*i,2)}, {vq(QG+16+2*i,2)}")
    for i in range(4):
        g(f"v_cvt_pk_bf16_f32 v{hACC+i}, v{QG+2*i}, v{QG+2*i+1}")
    g(f"ds_write_b128 v13, {vq(hACC)} offset:{L_Q}")
    if diag and probe is None:
        g(f"s_mov_b32 s{sSTAMP+6}, s{sSPIN}")
    g.stamp(5)
    g("s_waitcnt lgkmcnt(0)")
    if flag:
        g(f"ds_write_b32 v7, v31 offset:{L_TAG+4}")
    else:
        g("s_barrier")
    g("s_setprio 0")
    if hstop == 3:
        g(f"v_mov_b32 v7, 0")
        g(f"v_mov_b32 v8, 1")
        g(f"ds_write_b32 v7, v8 offset:{L_TAG+4}")
        g("s_waitcnt lgkmcnt(0)")
        g("s_branch L_hend")
    sSLOWH = sRP
    g(f"v_readfirstlane_b32 s{sSLOWH}, v31")
    sOO = 53
    g(f"v_and_b32 v14, 1, v4")
    g(f"v_lshlrev_b32 v14, 6, v14")
    g(f"v_lshl_add_u32 v14, v5, 4, v14")
    g(f"s_lshl_b32 s{sT1}, s{sC1}, 7")
    g(f"v_and_b32 v15, 1, v0")
    g(f"v_lshlrev_b32 v15, 1, v15")
    g(f"v_lshl_add_u32 v15, v5, 5, v15")
    g(f"s_lshl_b32 s{sT2}, s{sS}, 7")
    g(f"s_lshl_b32 s{sT3}, s{sH}, 2")
    g(f"s_add_u32 s{sT2}, s{sT2}, s{sT3}")
    g(f"s_lshl_b32 s{sT3}, s{sB}, 10")
    g(f"s_add_u32 s{sT3}, s{sT3}, s{sT2}")
    g(f"s_mov_b32 s{sOO}, s{sT3}")
    g(f"s_mov_b32 s8, s{sT1}")
    g(f"s_mov_b32 s9, s{sT2}")
    g(f"v_lshrrev_b32 v12, 1, v4")
    g(f"v_lshlrev_b32 v12, 17, v12")
    g(f"v_lshl_add_u32 v12, v3, 8, v12")
    g(f"v_lshl_add_u32 v12, v14, 1, v12")
    g(f"s_and_b32 s{SXO[0]}, s2, 0x37")
    g(f"s_lshl_b32 s{SXO[0]}, s{SXO[0]}, 10")
    g(f"s_add_u32 s{SXO[0]}, s{SXO[0]}, {hex(A_H)}")
    g(f"s_add_u32 s{SXO[1]}, s{SXO[0]}, {hex(8 << 10)}")
    g(f"s_add_u32 s{SXO[2]}, s{SXO[0]}, {hex(64 << 10)}")
    g(f"s_add_u32 s{SXO[3]}, s{SXO[0]}, {hex(72 << 10)}")
    g(f"v_lshrrev_b32 v30, 3, v0")
    g(f"v_and_b32 v31, 7, v0")
    g(f"v_lshlrev_b32 v31, 4, v31")
    g(f"v_mul_u32_u24 v{V1}, 3584, v30")
    g(f"v_add_u32 v{V1}, v{V1}, v31")
    g(f"v_lshl_add_u32 v{V2}, v30, 10, v31")
    for (V, rs) in ((V1, 3584), (V2, 1024)):
        for i in range(1, 4):
            g(f"v_add_u32 v{V+i}, {hex(i*(8*rs - 1024))}, v{V}")
    g(f"s_lshl_b32 s{sT4}, s{sB}, 1")
    g(f"s_add_u32 s{sT4}, s{sT4}, s{sU}")
    g(f"s_mul_i32 s{sT1}, s{sT4}, {64*3584}")
    g(f"s_lshl_b32 s{sT2}, s{sC1}, 7")
    g(f"s_add_u32 s{sT1}, s{sT1}, s{sT2}")
    g(f"s_lshl_b32 s{sT3}, s{sC1}, 16")
    g(f"s_lshl_b32 s{sT4}, s{sT4}, 7")
    g(f"s_add_u32 s{sT3}, s{sT3}, s{sT4}")
    g(f"s_cmp_ge_u32 s{sC1}, {0 if 'ffn' in skip else 28}")
    g(f"s_cselect_b32 s{sT1}, {hex(OOB)}, s{sT1}")
    g(f"s_cselect_b32 s{sT3}, {hex(OOB)}, s{sT3}")
    g(f"s_add_u32 s{sT2}, s{sT1}, {32*3584}")
    g(f"s_add_u32 s{sT4}, s{sT3}, {32*1024}")
    g(f"s_mov_b32 m0, {L_W1}")
    g(f"buffer_load_ushort v28, v15, {srd(SX)}, s{sOO} offen")
    g(f"buffer_load_ushort v29, v15, {srd(SB2)}, s9 offen")
    g(f"s_cmp_ge_u32 s{sC1}, 28")
    g("s_cbranch_scc1 L_noffn")
    g(f"buffer_load_dwordx4 {vq(16)}, v14, {srd(SB1)}, s8 offen")
    for n, (V, rs, so) in enumerate([(V1, SW1, sT1), (V1, SW1, sT2)]):
        for i in range(4):
            g(f"buffer_load_dwordx4 v{V+i}, {srd(rs)}, s{so} offen offset:{1024*i} {wflags} lds")
        g(f"s_add_u32 m0, m0, 4096")
        g("s_nop 0")
    gemm1(L_W1, 2, 8, 4, sOWNH, sTAG, store=False)
    if fast:
        g(f"s_cmp_eq_u32 s{sSLOWH}, 1")
        g("s_cbranch_scc0 L_hslow")
        g(f"buffer_store_dwordx4 {vq(hT+4)}, v{vQS}, {srd(SWS)}, s{sOWNH} offen")
        g("s_branch L_hdone")
        g.label("L_hslow")
    g(f"buffer_store_dwordx4 {vq(hT+4)}, v{vQS}, {srd(SWS)}, s{sOWNH} offen sc1")
    g.label("L_hdone")
    if hstop == 4:
        g("s_branch L_hend")
    def ldswait(tag, thr, sleep):
        g(f"s_mov_b32 s{sSPIN}, 0")
        g.label(f"L_w{tag}")
        g(f"s_sleep {sleep}")
        g(f"ds_read_b32 v30, v7 offset:{L_CNT}")
        g(f"s_add_u32 s{sSPIN}, s{sSPIN}, 1")
        g("s_waitcnt lgkmcnt(0)")
        g(f"v_cmp_le_u32 vcc, {thr}, v30")
        g(f"s_cbranch_vccnz L_g{tag}")
        g(f"s_cmp_lt_u32 s{sSPIN}, {hex(spin_max*16)}")
        g(f"s_cbranch_scc1 L_w{tag}")
        g.label(f"L_g{tag}")
    ldswait("trig", 4 * NS + trig, 4)
    g.stamp(10)
    for n, (V, rs, so) in enumerate([(V2, SW2, sT3), (V2, SW2, sT4)]):
        for i in range(4):
            g(f"buffer_load_dwordx4 v{V+i}, {srd(rs)}, s{so} offen offset:{1024*i} {wflags} lds")
        if n < 1:
            g(f"s_add_u32 m0, m0, 4096")
            g("s_nop 0")
    poll("h", [f"buffer_load_dwordx4 {vq(QG+8*j+4*i)}, v12, {srd(SWS)}, s{SXO[j]} offen offset:{16*i} {gflags}"
               for j in range(4) for i in range(2)], [QG + i for i in range(32)], 30, 2)
    for s_ in range(2):
        for j in range(4):
            for half in range(2):
                g(f"ds_read_b64_tr_b16 {vq(WF+16*s_+4*j+2*half,2)}, v{vTR} offset:{L_W2 + 4096*s_ + 512*half + 32*j}")
    for i in range(4):
        g(f"v_pk_add_f32 {vq(QG+2*i,2)}, {vq(QG+2*i,2)}, {vq(QG+8+2*i,2)}")
        g(f"v_pk_add_f32 {vq(QG+16+2*i,2)}, {vq(QG+16+2*i,2)}, {vq(QG+24+2*i,2)}")
    for i in range(4):
        g(f"v_pk_add_f32 {vq(QG+2*i,2)}, {vq(QG+2*i,2)}, {vq(QG+16+2*i,2)}")
    g("s_nop 1")
    for i in range(8):
        g(f"v_add_f32_dpp v{QG+i}, v{QG+i}, v{QG+i} row_ror:8 row_mask:0xf bank_mask:0xf")
    round8(QG, hT)
    for i in range(4):
        g(f"v_lshlrev_b32 v{hT+4}, 16, v{16+i}")
        g(f"v_and_b32 v{hT+5}, s{sHI}, v{16+i}")
        g(f"v_add_f32 v{QG+2*i}, v{QG+2*i}, v{hT+4}")
        g(f"v_add_f32 v{QG+2*i+1}, v{QG+2*i+1}, v{hT+5}")
    round8(QG, hT)
    for i in range(8):
        g(f"v_max_f32 v{QG+i}, 0, v{QG+i}")
    for i in range(8):
        g(f"v_mul_f32 v{QG+i}, v{QG+i}, v{QG+i}")
    for i in range(4):
        g(f"v_cvt_pk_bf16_f32 v{R+i}, v{QG+2*i}, v{QG+2*i+1}")
    g("s_nop 0")
    for i in range(4):
        g(f"v_mov_b32_dpp v{R+4+i}, v{R+i} row_ror:4 row_mask:0xf bank_mask:0xf")
    g.stamp(6)
    g("s_waitcnt lgkmcnt(0)")
    g("s_nop 0")
    for s_ in range(2):
        for j in range(4):
            cc = "0" if s_ == 0 else vq(hACC + 4 * j)
            g(f"v_mfma_f32_16x16x32_bf16 {vq(hACC+4*j)}, {vq(R+4*s_)}, {vq(WF+16*s_+4*j)}, {cc}")
    g("s_nop 7")
    for b_ in range(4):
        for j in range(4):
            g(f"v_bfi_b32 v{QG+4*b_+j}, v{vFFh}, s{sTAG}, v{hACC+4*j+b_}")
    g("s_mov_b64 exec, 0xffff")
    for b_ in range(4):
        g(f"buffer_store_dwordx4 {vq(QG+4*b_)}, v13, {srd(SWS)}, s{sOWNZ} offen offset:{256*b_} {sflags}")
    g("s_mov_b64 exec, -1")
    g.label("L_noffn")
    if hstop in (4, 5):
        g("s_branch L_hend")
    g.stamp(7)
    g(f"v_lshlrev_b32 v12, 14, v5")
    g(f"v_bfe_u32 v14, v0, 1, 3")
    g(f"v_lshl_add_u32 v12, v14, 10, v12")
    g(f"v_and_b32 v14, 1, v0")
    g(f"v_lshl_add_u32 v12, v14, 4, v12")
    g(f"s_lshr_b32 s{sT0}, s{sS}, 1")
    g(f"s_lshl_b32 s{sT0}, s{sT0}, 16")
    g(f"s_lshl_b32 s{sT1}, s{sU}, 13")
    g(f"s_add_u32 s{sT0}, s{sT0}, s{sT1}")
    g(f"s_lshl_b32 s{sT1}, s{sB}, 8")
    g(f"s_add_u32 s{sT0}, s{sT0}, s{sT1}")
    g(f"s_lshl_b32 s{sT1}, s{sH}, 5")
    g(f"s_add_u32 s{sT0}, s{sT0}, s{sT1}")
    g(f"s_add_u32 s{sT0}, s{sT0}, {hex(A_Z)}")
    Z = 32
    for i in range(4):
        g(f"v_mov_b32 v{Z+i}, 0")
    if warm is not None:
        g(f"s_mul_i32 s{sT1}, s2, {PS}")
        g(f"s_add_u32 s{sT1}, s{sT1}, {hex(A_P)}")
        g(f"s_add_u32 s{sT2}, s{sOWN}, {hex(A_Y)}")
        g(f"v_lshlrev_b32 v15, 7, v0")
        if warm == 'st':
            g(f"s_xor_b32 s{sT3}, s{sTAG}, 0xff")
            for i in range(4):
                g(f"v_mov_b32 v{40+i}, s{sT3}")
            g(f"buffer_store_dwordx4 {vq(40)}, v13, {srd(SWS)}, s{sT1} offen sc1")
            g(f"buffer_store_dwordx4 {vq(40)}, v13, {srd(SWS)}, s{sT1} offen offset:1024 sc1")
            g(f"buffer_store_dwordx4 {vq(40)}, v13, {srd(SWS)}, s{sT1} offen offset:1536 sc1")
            g(f"buffer_store_dwordx4 {vq(40)}, v13, {srd(SWS)}, s{sT2} offen sc1")
        else:
            g("s_mov_b64 exec, 0xfffff")
            g(f"buffer_load_dword v40, v15, {srd(SWS)}, s{sT1} offen {warm}")
            g("s_mov_b64 exec, 0xff")
            g(f"buffer_load_dword v41, v15, {srd(SWS)}, s{sT2} offen {warm}")
            g("s_mov_b64 exec, -1")
    ldswait("y", 4 * NS + 8 + ysig, 1)
    g(f"s_mov_b32 s{sMASK2}, -1")
    g(f"s_mov_b32 s{sMASK2+1}, 0x00ffffff")
    g(f"s_mov_b64 exec, s[{sMASK2}:{sMASK2+1}]")
    poll("z", [f"buffer_load_dwordx4 {vq(Z)}, v12, {srd(SWS)}, s{sT0} offen sc1"], [Z + i for i in range(4)], 30, 0)
    g.stamp(8)
    reduce32x4(g, Z)
    rne(g, Z, Z)
    g(f"v_lshlrev_b32 v29, 16, v29")
    g(f"v_add_f32 v{Z}, v{Z}, v29")
    rne(g, Z, Z)
    g(f"v_mul_f32 v30, {f32(-LOG2E)}, v{Z}")
    g(f"v_exp_f32 v30, v30")
    g("s_nop 0")
    g(f"v_add_f32 v30, 1.0, v30")
    g(f"v_rcp_f32 v30, v30")
    g("s_nop 0")
    g(f"v_mul_f32 v{Z}, v{Z}, v30")
    rne(g, Z, Z)
    g(f"v_lshlrev_b32 v{Z+1}, 16, v28")
    g(f"v_lshlrev_b32 v12, 16, v5")
    g(f"v_bfe_u32 v14, v0, 1, 3")
    g(f"v_lshl_add_u32 v12, v14, 10, v12")
    g(f"v_and_b32 v14, 1, v0")
    g(f"v_lshl_add_u32 v12, v14, 4, v12")
    g(f"s_lshl_b32 s{sT0}, s{sS}, 13")
    g(f"s_lshl_b32 s{sT1}, s{sB}, 8")
    g(f"s_add_u32 s{sT0}, s{sT0}, s{sT1}")
    g(f"s_lshl_b32 s{sT1}, s{sH}, 5")
    g(f"s_add_u32 s{sT0}, s{sT0}, s{sT1}")
    g(f"s_add_u32 s{sT0}, s{sT0}, {hex(A_Y)}")
    g(f"s_mov_b32 s{sMASK2}, 0x00030003")
    g(f"s_mov_b32 s{sMASK2+1}, 0x00030003")
    Y = 36
    poll("y", [f"buffer_load_dwordx4 {vq(Y)}, v12, {srd(SWS)}, s{sT0} offen sc1"], [Y + i for i in range(4)], 30, psleep)
    g.stamp(9)
    reduce32x4(g, Y)
    rne(g, Y, Y)
    g(f"v_mul_f32 v{Y}, v{Y}, v{Z}")
    rne(g, Y, Y)
    g(f"v_add_f32 v{Y}, v{Y}, v{Z+1}")
    g(f"v_cvt_pk_bf16_f32 v{Y}, v{Y}, v{Y}")
    g(f"s_mov_b64 exec, s[{sMASK2}:{sMASK2+1}]")
    g(f"buffer_store_short v{Y}, v15, {srd(SOUT)}, s{sOO} offen")
    g(f"s_cmp_lg_u32 s2, 0")
    g("s_cbranch_scc1 L_noep")
    g(f"s_mov_b32 s{sT0}, {hex(W_EP)}")
    g("s_mov_b64 exec, 1")
    g(f"v_mov_b32 v30, s{sTAG}")
    g(f"buffer_store_dword v30, v7, {srd(SWS)}, s{sT0} offen sc1")
    g.label("L_noep")
    g("s_mov_b64 exec, -1")
    g.label("L_hend")

    g.label("L_fin")
    if probe is not None:
        role, idx = probe
        g("s_waitcnt vmcnt(0)")
        g.stamp(11)
        g("s_waitcnt lgkmcnt(0)")
        g(f"s_mov_b32 s{sT0}, s{sSTAMP}")
        if role == 'wg':
            g(f"s_cmp_lg_u32 s2, {idx}")
            g("s_cbranch_scc1 L_end")
            g(f"s_cmp_lg_u32 s{sWAVE}, 0")
            g("s_cbranch_scc1 L_end")
        g(f"s_cmp_eq_u32 s{sWAVE}, 0")
        if role == 'h':
            g(f"s_cselect_b32 s{sT0}, s{sSTAMP+2*idx}, s{sT0}")
        elif role == 's':
            g(f"s_cselect_b32 s{sT0}, s{sT0}, s{sSTAMP+2*idx}")
        g(f"s_add_u32 s{sT0}, s{sT0}, 10000")
        g.label("L_probe")
        g(f"s_memrealtime s[{sSTAMP+2}:{sSTAMP+3}]")
        g("s_waitcnt lgkmcnt(0)")
        g(f"s_sub_u32 s{sT1}, s{sSTAMP+2}, s{sT0}")
        g(f"s_cmp_lt_i32 s{sT1}, 0")
        g("s_cbranch_scc1 L_probe")
    if diag:
        g("s_waitcnt vmcnt(0)")
        g.stamp(11)
        g("s_waitcnt lgkmcnt(0)")
        g(f"s_mul_i32 s{sT0}, s2, 5")
        g(f"s_add_u32 s{sT0}, s{sT0}, s{sWAVE}")
        g(f"s_lshl_b32 s{sT0}, s{sT0}, 6")
        g(f"s_add_u32 s{sT0}, s{sT0}, {hex(W_DIAG)}")
        for i in range(12):
            g(f"v_mov_b32 v{8+i}, s{sSTAMP+2*i}")
        g(f"v_mov_b32 v20, s{sSPIN}")
        g(f"v_mov_b32 v22, s{sIT}")
        g("s_getreg_b32 s3, hwreg(HW_REG_XCC_ID)")
        g("v_mov_b32 v21, s3")
        g("v_mov_b32 v23, 0")
        g("v_mov_b32 v1, 0")
        g("s_mov_b64 exec, 1")
        for i in range(4):
            g(f"buffer_store_dwordx4 {vq(8+4*i)}, v1, {srd(SWS)}, s{sT0} offen offset:{16*i}")
    g.label("L_end")
    g("s_endpgm")
    out += g.L
    out += ['.section .rodata,"a"', ".p2align 6", f".amdhsa_kernel {NAME}_kernel",
            "  .amdhsa_next_free_vgpr 256", "  .amdhsa_next_free_sgpr 102", "  .amdhsa_accum_offset 256",
            "  .amdhsa_group_segment_fixed_size 0", "  .amdhsa_kernarg_size 104", "  .amdhsa_user_sgpr_count 2",
            "  .amdhsa_user_sgpr_kernarg_segment_ptr 1", "  .amdhsa_system_sgpr_workgroup_id_x 1",
            "  .amdhsa_float_denorm_mode_32 3",
            ".end_amdhsa_kernel"]
    return "\n".join(out) + "\n"


if __name__ == "__main__":
    kw = eval("dict(%s)" % (sys.argv[2] if len(sys.argv) > 2 else ""))
    open(sys.argv[1], "w").write(gen(**kw))
```

```python
import sys, struct

NAME = "recurrent_scan__gqa_block_cached__dense_activation_squared_relu__decode"

HEADER = """; Kernarg layout for this problem (104 bytes, ptrs only, base s[0:1]):
;   offset  24: d_in[3] A_wq  shape=(512, 4096) dtype=bfloat16
;   offset  32: d_in[4] A_wo  shape=(4096, 512) dtype=bfloat16
;   offset  96: d_ws      workspace (tagged hand-offs between workgroups)
; One workgroup per (batch b, kv head h, key split s of 2048 keys). Waves 1..4 stream first all K, then all V of
; Wave 0 does the small work: layernorm, a slice of the q projection, softmax statistics across the 8 splits,
; a slice of the FFN and the final reduction. Every word handed between workgroups carries a launch tag
; (epoch word of d_ws + 1) in its low bits; readers poll until the tag is there.
"""

def f32(x):
    return "0x%08x" % struct.unpack("<I", struct.pack("<f", x))[0]

LOG2E = 1.4426950408889634
SCALE = 128 ** -0.5

L_Q = 0
L_TAG, L_CNT, L_KD, L_MAX, L_JN, L_F = 2048, 2056, 2060, 2064, 2080, 2096
L_PART, HS, WSP = 3072, 528, 2112
L_WQ, L_W1, L_W2, L_WO, L_SIZE = 12288, 28672, 36864, 45056, 61440
L_SC = L_WQ
A_Q, A_H, A_Z, A_Y, A_P, A_S = 0, 0x40000, 0x80000, 0xc0000, 0x100000, 0x180000
W_EP = 0x1c0000
W_DIAG = 0x280000
W_SIZE = 0x400000
OOB = 0x10000000

SK, SV, SWS, SWO, SW2, SX, SWQ, SW1, SB1, SB2, SOUT = 8, 12, 16, 20, 24, 28, 32, 36, 40, 44, 48
sWAVE, sB, sH, sS = 3, 4, 5, 6
sDR = 55
sSELLO, sSELHI, sSCALE, sLOG2E, sA, sBo, sIT = 56, 57, 58, 59, 60, 61, 62
sT0, sT1, sT2, sT3, sT4 = 63, 64, 65, 66, 67
sMASK = 68
sMASK2 = 70
sSPIN = 72
sHI = 73
sW = 74
sTAG = 75
sSTAMP = 76


class G:
    def __init__(self, diag=False):
        self.L = []
        self.diag = diag
        self.nstamp = {}

    def __call__(self, s):
        self.L.append("  " + s)

    def label(self, s):
        self.L.append(s + ":")

    def comment(self, s):
        self.L.append("  ; " + s)

    def stamp(self, i):
        if self.diag:
            self(f"s_memrealtime s[{sSTAMP+2*i}:{sSTAMP+2*i+1}]")

    def srd_consts(self, base, nbytes):
        self(f"s_mov_b32 s{base+2}, {hex(nbytes)}")
        self(f"s_mov_b32 s{base+3}, 0x20000")

    def srd_load(self, base, off):
        self(f"s_load_dwordx2 s[{base}:{base+1}], s[0:1], {off}")


def srd(b):
    return f"s[{b}:{b+3}]"


def vq(r, n=4):
    return f"v[{r}:{r+n-1}]"


def perms(g, raw, e, dst):
    sel = sSELHI if (e & 1) else sSELLO
    for j in range(4):
        g(f"v_perm_b32 v{dst+j}, v{raw[2*j+1] + (e >> 1)}, v{raw[2*j] + (e >> 1)}, s{sel}")


def rne(g, dst, src):
    g(f"v_cvt_pk_bf16_f32 v{dst}, v{src}, v{src}")
    g(f"v_lshlrev_b32 v{dst}, 16, v{dst}")


def tagcheck(g, regs, c1, c2, tag=None, mask=0xff):
    def tree(op3, op2, dst):
        r = list(regs)
        g(f"{op3} v{dst}, v{r[0]}, v{r[1]}, v{r[2]}" + (" bitop3:0x80" if "bitop" in op3 else ""))
        r = r[3:]
        while len(r) >= 2:
            g(f"{op3} v{dst}, v{dst}, v{r[0]}, v{r[1]}" + (" bitop3:0x80" if "bitop" in op3 else ""))
            r = r[2:]
        if r:
            g(f"{op2} v{dst}, v{dst}, v{r[0]}")
    tree("v_bitop3_b32", "v_and_b32", c1)
    tree("v_or3_b32", "v_or_b32", c2)
    g(f"v_bitop3_b32 v{c1}, v{c1}, v{c2}, s{sTAG if tag is None else tag} bitop3:0x7e")
    g(f"v_and_b32 v{c2}, {hex(mask)}, v{c1}")
    g(f"v_cmp_ne_u32 vcc, 0, v{c2}")


def reduce32x4(g, a):
    g(f"v_permlane32_swap_b32 v{a}, v{a+2}")
    g(f"v_permlane32_swap_b32 v{a+1}, v{a+3}")
    g(f"v_add_f32 v{a}, v{a}, v{a+2}")
    g(f"v_add_f32 v{a+1}, v{a+1}, v{a+3}")
    g("s_nop 1")
    g(f"v_permlane16_swap_b32 v{a}, v{a+1}")
    g(f"v_add_f32 v{a}, v{a}, v{a+1}")
    for r in (8, 4, 2):
        g("s_nop 1")
        g(f"v_add_f32_dpp v{a}, v{a}, v{a} row_ror:{r} row_mask:0xf bank_mask:0xf")


def gen(diag=False, kvflags="nt", wflags="", pace=11, pace3=None, spin_max=1 << 20, skip=(), probe=None, qwait=20,
        remap=False, fast=True, repub=3, bar0=4, pf=False, trig=4, ysig=4, brk=True, hstop=None, notail=False, lpace=None, pgrp=4, ks=2, vs=2):
    nK, nV = 4 + ks, 4 + vs
    nM = min(nK, nV)
    g = G(diag or probe is not None)
    out = [HEADER + f"; @launch grid=(256,1,1) block=(320,1,1) lds={L_SIZE}",
           '.amdgcn_target "amdgcn-amd-amdhsa--gfx950"', ".text", f".globl {NAME}_kernel", ".p2align 8",
           f".type {NAME}_kernel,@function", f"{NAME}_kernel:"]

    def poll(tag, loads, regs, t, sleep, first=None):
        g(f"s_mov_b32 s{sSPIN}, 0")
        if first is not None:
            for l in loads:
                g(l)
            first()
            g(f"s_branch L_pw{tag}")
        g.label(f"L_poll{tag}")
        for l in loads:
            g(l)
        g.label(f"L_pw{tag}")
        g("s_waitcnt vmcnt(0)")
        if tag == "1" and g.diag:
            g(f"s_cmp_lg_u32 s{sSPIN}, 0")
            g("s_cbranch_scc1 L_nost")
            g.stamp(10)
            g.label("L_nost")
        tagcheck(g, regs, t, t + 1)
        g(f"s_cbranch_vccz L_got{tag}")
        g("s_mov_b64 exec, vcc")
        if sleep:
            g(f"s_sleep {sleep}")
        g(f"s_add_u32 s{sSPIN}, s{sSPIN}, 1")
        g(f"s_cmp_lt_u32 s{sSPIN}, {hex(spin_max)}")
        g(f"s_cbranch_scc1 L_poll{tag}")
        g.label(f"L_got{tag}")
        g("s_mov_b64 exec, -1")

    def ldswait(tag, off, thr, sleep, vz, vt):
        g(f"s_mov_b32 s{sSPIN}, 0")
        g.label(f"L_w{tag}")
        g(f"ds_read_b32 v{vt}, v{vz} offset:{off}")
        g(f"s_add_u32 s{sSPIN}, s{sSPIN}, 1")
        g("s_waitcnt lgkmcnt(0)")
        g(f"v_cmp_le_u32 vcc, {thr}, v{vt}")
        g(f"s_cbranch_vccnz L_g{tag}")
        g(f"s_sleep {sleep}")
        g(f"s_cmp_lt_u32 s{sSPIN}, {hex(spin_max*16)}")
        g(f"s_cbranch_scc1 L_w{tag}")
        g.label(f"L_g{tag}")

    def store_mode(tag, instr, smode):
        if fast:
            g(f"s_cmp_eq_u32 s{smode}, 1")
            g(f"s_cbranch_scc0 L_sl{tag}")
            g(instr)
            g(f"s_branch L_sd{tag}")
            g.label(f"L_sl{tag}")
        g(instr + " sc1")
        g.label(f"L_sd{tag}")

    g("s_cmp_ge_u32 s2, 256")
    g("s_cbranch_scc1 L_end")
    g.srd_load(SX, 0)
    g.srd_load(SWQ, 24)
    g.srd_load(SWS, 96)
    g.srd_load(SK, 8)
    g.srd_consts(SWS, W_SIZE)
    g.stamp(0)
    if pf:
        g("s_getpc_b64 s[44:45]")
        g.label("L_pc0")
        g("s_lshr_b32 s46, s2, 3")
        g("s_lshl_b32 s46, s46, 9")
        g("v_and_b32 v2, 3, v0")
        g("v_lshl_add_u32 v2, v2, 7, s46")
        g("v_min_u32 v2, L_end - L_pc0, v2")
        g("global_load_dword v64, v2, s[44:45]")
    g("v_lshrrev_b32 v1, 6, v0")
    g("v_and_b32 v0, 63, v0")
    g(f"s_lshr_b32 s{sB}, s2, 6")
    g(f"v_readfirstlane_b32 s{sWAVE}, v1")
    if remap:
        g(f"s_and_b32 s{sS}, s2, 7")
        g(f"s_bfe_u32 s{sH}, s2, 0x30003")
        g(f"s_lshl_b32 s2, s{sB}, 3")
        g(f"s_add_u32 s2, s2, s{sS}")
        g(f"s_lshl_b32 s2, s2, 3")
        g(f"s_add_u32 s2, s2, s{sH}")
    else:
        g(f"s_and_b32 s{sH}, s2, 7")
        g(f"s_bfe_u32 s{sS}, s2, 0x30003")
    g(f"s_mov_b32 s{sHI}, 0xffff0000")
    g(f"s_cmp_eq_u32 s{sWAVE}, 0")
    g("s_cbranch_scc1 L_helper")

    vK, vV, vSC, vH4, vMC, vZ0, vZ1 = 1, 2, 3, 4, 5, 6, 7
    vQ, vT, vO = 8, 16, 32
    SLOT = [64, 128, 192]
    sWGB, sSLOW = 52, 53
    sTI = (33, 34, 35)
    g.srd_consts(SK, 0x8000000)
    g(f"s_sub_u32 s{sW}, s{sWAVE}, 1")
    g(f"s_lshl_b32 s{sWGB}, s{sB}, 3")
    g(f"s_add_u32 s{sWGB}, s{sWGB}, s{sH}")
    g(f"s_lshl_b32 s{sWGB}, s{sWGB}, 3")
    g(f"s_add_u32 s{sWGB}, s{sWGB}, s{sS}")
    g(f"s_lshl_b32 s{sWGB}, s{sWGB}, 19")
    g(f"s_lshl_b32 s{sA}, s{sW}, 12")
    g(f"s_add_u32 s{sA}, s{sA}, s{sWGB}")
    g(f"v_bfe_u32 v{vK}, v0, 1, 1")
    g(f"v_lshlrev_b32 v{vK}, 10, v{vK}")
    g(f"v_bfe_u32 v{vZ0}, v0, 2, 2")
    g(f"v_lshl_add_u32 v{vK}, v{vZ0}, 8, v{vK}")
    g(f"v_lshrrev_b32 v{vZ1}, 4, v0")
    g(f"v_lshl_add_u32 v{vK}, v{vZ1}, 5, v{vK}")
    g(f"v_and_b32 v{vZ0}, 1, v0")
    g(f"v_lshl_add_u32 v{vK}, v{vZ0}, 4, v{vK}")
    g("s_barrier")
    g("s_waitcnt lgkmcnt(0)")

    def issue(X, isk, paced=None):
        if not brk:
            for u in range(1, 4):
                g(f"s_add_u32 s{sT0+u-1}, s{sA}, {u*0x4000}")
        for u in range(4):
            so = sA if (brk or u == 0) else sT0 + u - 1
            for j in range(4):
                vo, rs, off = (vK, SK, (j & 1) * 128 + (j >> 1) * 2048) if isk else (vV, SV, j * 1024)
                d = X + 16 * u + 4 * j
                if j < (ks if isk else vs):
                    g(f"buffer_load_dwordx2 {vq(d,2)}, v{vo}, {srd(rs)}, s{so} offen offset:{off} {kvflags}")
                    g(f"buffer_load_dwordx2 {vq(d+2,2)}, v{vo}, {srd(rs)}, s{so} offen offset:{off+8} {kvflags}")
                else:
                    g(f"buffer_load_dwordx4 {vq(d)}, v{vo}, {srd(rs)}, s{so} offen offset:{off} {kvflags}")
                if paced is not None and (j + 1) % pgrp == 0:
                    g(f"s_waitcnt vmcnt({paced})")
            if brk:
                g(f"s_add_u32 s{sA}, s{sA}, 0x4000")
        if not brk:
            g(f"s_add_u32 s{sA}, s{sA}, 0x10000")

    issue(SLOT[0], True, pace)
    g.srd_load(SV, 16)
    g.srd_load(SWO, 32)
    g.srd_consts(SV, 0x8000000)
    g.srd_consts(SWO, 4096 * 512 * 2)
    g(f"v_lshlrev_b32 v{vV}, 4, v0")
    g(f"s_mov_b32 s{sSELLO}, 0x05040100")
    g(f"s_mov_b32 s{sSELHI}, 0x07060302")
    g(f"s_mov_b32 s{sLOG2E}, {f32(LOG2E)}")
    g(f"s_mov_b32 s{sSCALE}, {f32(SCALE)}")
    g(f"s_mov_b32 s{sIT}, 0")
    g(f"s_mov_b32 s{sDR}, 0")
    for k in range(3):
        g(f"s_add_u32 s{sTI[k]}, s{sW}, {4*k}")
    g(f"s_mov_b32 s{sMASK}, 0x000f000f")
    g(f"s_mov_b32 s{sMASK+1}, 0x000f000f")
    g(f"v_and_b32 v{vH4}, 3, v0")
    g(f"v_lshlrev_b32 v{vT}, 8, v{vH4}")
    g(f"v_lshl_add_u32 v{vT}, v{vZ1}, 5, v{vT}")
    g(f"v_bfe_u32 v{vZ0}, v0, 2, 1")
    g(f"v_lshl_add_u32 v{vT}, v{vZ0}, 4, v{vT}")
    g(f"v_lshlrev_b32 v{vSC}, 6, v{vZ1}")
    g(f"v_lshl_add_u32 v{vSC}, v{vH4}, 4, v{vSC}")
    g(f"v_lshlrev_b32 v{vH4}, 2, v{vH4}")
    g(f"v_mov_b32 v{vZ0}, 0")
    g(f"v_mov_b32 v{vZ1}, 1")
    sD0 = 28
    g(f"s_lshl_b32 s{sD0}, s{sH}, 2")
    g(f"s_add_u32 s{sD0}, s{sD0}, s{sB}")
    g(f"s_lshl_b32 s{sD0}, s{sD0}, 6")
    g(f"s_add_u32 s{sD0}, s{sD0}, s{sW}")
    g(f"s_lshl_b32 s{sD0}, s{sD0}, 11")
    g(f"s_lshl_b32 s{sT0}, s{sS}, 7")
    g(f"s_add_u32 s{sD0}, s{sD0}, s{sT0}")
    if 'wo' in skip:
        g(f"s_mov_b32 s{sD0}, {hex(OOB)}")
    g(f"s_add_u32 s{sD0+1}, s{sD0}, {64*1024 - 2048}")
    sH1S, sH1G, sYS = 36, 37, 38
    g(f"s_lshl_b32 s{sT0}, s{sW}, 12")
    g(f"s_add_u32 m0, s{sT0}, {L_WO}")
    g(f"s_lshl_b32 s{sH1S}, s2, 2")
    g(f"s_add_u32 s{sH1S}, s{sH1S}, s{sW}")
    g(f"s_lshl_b32 s{sYS}, s{sH1S}, 8")
    g(f"s_add_u32 s{sYS}, s{sYS}, {hex(A_Y)}")
    g(f"s_lshl_b32 s{sH1S}, s{sH1S}, 9")
    g(f"s_add_u32 s{sH1S}, s{sH1S}, {hex(A_P)}")
    g(f"s_lshl_b32 s{sH1G}, s{sW}, 6")
    g(f"s_add_u32 s{sH1G}, s{sH1G}, s{sH}")
    g(f"s_lshl_b32 s{sH1G}, s{sH1G}, 2")
    g(f"s_add_u32 s{sH1G}, s{sH1G}, s{sB}")
    g(f"s_lshl_b32 s{sH1G}, s{sH1G}, 9")
    g(f"s_add_u32 s{sH1G}, s{sH1G}, {hex(A_P)}")
    issue(SLOT[1], True, pace)
    issue(SLOT[2], True, pace3)
    g.stamp(1)
    g(f"s_mov_b32 s{sSPIN}, 0")
    g.label("L_wq")
    g(f"ds_read_b64 {vq(vT+2,2)}, v{vZ0} offset:{L_TAG}")
    g(f"s_add_u32 s{sSPIN}, s{sSPIN}, 1")
    g("s_waitcnt lgkmcnt(0)")
    g(f"v_cmp_ne_u32 vcc, 0, v{vT+3}")
    g("s_cbranch_vccnz L_wq_ok")
    g("s_sleep 2")
    g(f"s_cmp_lt_u32 s{sSPIN}, {hex(spin_max*16)}")
    g("s_cbranch_scc1 L_wq")
    g.label("L_wq_ok")
    for j in range(2):
        g(f"ds_read_b128 {vq(vQ+4*j)}, v{vT} offset:{L_Q + 128*j}")
    g.stamp(2)
    g(f"v_readfirstlane_b32 s{sTAG}, v{vT+2}")
    g(f"v_readfirstlane_b32 s{sSLOW}, v{vT+3}")
    g("s_waitcnt lgkmcnt(0)")

    def take(k):
        g("s_mov_b64 exec, 1")
        g(f"ds_add_rtn_u32 v{vT}, v{vZ0}, v{vZ1} offset:{L_CNT}")
        g("s_mov_b64 exec, -1")
        if g.diag:
            g(f"s_add_u32 s{sIT}, s{sIT}, 1")
        g("s_waitcnt lgkmcnt(0)")
        g(f"v_readfirstlane_b32 s{sTI[k]}, v{vT}")
        g(f"s_bfe_u32 s{sA}, s{sTI[k]}, 0x30002")
        g(f"s_lshl_b32 s{sA}, s{sA}, 16")
        g(f"s_and_b32 s{sT1}, s{sTI[k]}, 3")
        g(f"s_lshl_b32 s{sT1}, s{sT1}, 12")
        g(f"s_add_u32 s{sA}, s{sA}, s{sT1}")
        g(f"s_add_u32 s{sA}, s{sA}, s{sWGB}")

    def ktile(k):
        X = SLOT[k]
        for G_ in range(8):
            if G_ % 2 == 0:
                g(f"s_waitcnt vmcnt({min(63, 8*nM + (3 - G_//2)*nK)})")
            for j in range(2):
                c = "0" if j == 0 else vq(vO + 4 * G_)
                g(f"v_mfma_f32_16x16x32_bf16 {vq(vO+4*G_)}, {vq(X+8*G_+4*j)}, {vq(vQ+4*j)}, {c}")
        for i in range(16):
            g(f"v_add_f32_dpp v{vT+i}, v{vO+2*i+1}, v{vO+2*i} row_shl:4 row_mask:0xf bank_mask:0xf bound_ctrl:0")
        for i in range(8):
            g(f"v_cvt_pk_bf16_f32 v{vO+i}, v{vT+2*i}, v{vT+2*i+1}")
        for i in range(8):
            g(f"v_lshlrev_b32 v{vT+2*i}, 16, v{vO+i}")
            g(f"v_and_b32 v{vT+2*i+1}, s{sHI}, v{vO+i}")
        for i in range(16):
            g(f"v_mul_f32 v{vT+i}, s{sSCALE}, v{vT+i}")
        for i in range(8):
            g(f"v_cvt_pk_bf16_f32 v{vO+8+i}, v{vT+2*i}, v{vT+2*i+1}")
        g(f"s_lshl_b32 s{sT0}, s{sTI[k]}, 9")
        g(f"v_add_u32 v{vO+16}, s{sT0}, v{vSC}")
        g(f"v_max3_f32 v{vO+17}, v{vT}, v{vT+1}, v{vT+2}")
        g(f"v_max3_f32 v{vO+18}, v{vT+3}, v{vT+4}, v{vT+5}")
        g(f"v_max3_f32 v{vO+17}, v{vO+17}, v{vT+6}, v{vT+7}")
        g(f"v_max3_f32 v{vO+18}, v{vO+18}, v{vT+8}, v{vT+9}")
        g(f"v_max3_f32 v{vO+17}, v{vO+17}, v{vT+10}, v{vT+11}")
        g(f"v_max3_f32 v{vO+18}, v{vO+18}, v{vT+12}, v{vT+13}")
        g(f"v_max3_f32 v{vO+17}, v{vO+17}, v{vT+14}, v{vT+15}")
        g(f"v_max_f32 v{vO+17}, v{vO+17}, v{vO+18}")
        g(f"s_mov_b64 exec, s[{sMASK}:{sMASK+1}]")
        g(f"ds_write_b128 v{vO+16}, {vq(vO+8)} offset:{L_SC}")
        g(f"ds_write_b128 v{vO+16}, {vq(vO+12)} offset:{L_SC+256}")
        g(f"ds_max_f32 v{vH4}, v{vO+17} offset:{L_MAX}")
        g(f"ds_add_u32 v{vZ0}, v{vZ1} offset:{L_KD}")

    def vtile(k):
        X = SLOT[k]
        P = vQ
        cnt = [0]
        def wait(n):
            g(f"s_waitcnt vmcnt({min(63, n + 8*nV)})")
            g(f"s_cbranch_scc0 L_w{k}{cnt[0]}")
            g(f"s_waitcnt vmcnt({n + 4})")
            g.label(f"L_w{k}{cnt[0]}")
            cnt[0] += 1
        g(f"s_lshl_b32 s{sT0}, s{sTI[k]}, 9")
        g(f"s_sub_u32 s{sT0}, s{sT0}, {32*512 - L_SC}")
        g(f"v_add_u32 v{vT}, s{sT0}, v{vSC}")
        g(f"ds_read_b128 {vq(P)}, v{vT}")
        g(f"ds_read_b128 {vq(P+4)}, v{vT} offset:256")
        g(f"s_cmp_eq_u32 s{sDR}, 2")
        g("s_waitcnt lgkmcnt(0)")
        for i in range(8):
            g(f"v_lshlrev_b32 v{vT+2*i}, 16, v{P+i}")
            g(f"v_and_b32 v{vT+2*i+1}, s{sHI}, v{P+i}")
        for i in range(16):
            g(f"v_fma_f32 v{vT+i}, v{vT+i}, s{sLOG2E}, -v{vMC}")
        for i in range(16):
            g(f"v_exp_f32 v{vT+i}, v{vT+i}")
        for i in range(8):
            g(f"v_cvt_pk_bf16_f32 v{P+i}, v{vT+2*i}, v{vT+2*i+1}")
        for hb in range(2):
            raw = [X + 32 * hb + 4 * t for t in range(8)]
            wait(2 * nV * (1 - hb))
            perms(g, raw, 0, vT)
            perms(g, raw, 1, vT + 4)
            for e in range(8):
                g(f"v_mfma_f32_16x16x32_bf16 {vq(vO+4*e)}, {vq(vT+4*(e%4))}, {vq(P+4*hb)}, {vq(vO+4*e)}")
                if e + 2 < 8:
                    perms(g, raw, e + 2, vT + 4 * ((e + 2) % 4))

    g.L.append(".p2align 3")
    for k in range(3):
        g.label(f"L_k{k}")
        g(f"s_cmp_ge_u32 s{sTI[k]}, 32")
        g(f"s_cbranch_scc1 L_tr{k}")
        ktile(k)
        take(k)
        g(f"s_cmp_ge_u32 s{sTI[k]}, 32")
        g(f"s_cbranch_scc1 L_kv{k}")
        issue(SLOT[k], True, lpace)
    g("s_branch L_k0")
    for k in range(3):
        g.label(f"L_kv{k}")
        issue(SLOT[k], False, lpace)
        g(f"s_branch L_k{(k+1)%3}")
    for k in range(3):
        g.label(f"L_tr{k}")
        g(f"s_mov_b32 s{sT4}, {k}")
        if k < 2:
            g("s_branch L_trans")
    g.label("L_trans")
    g.stamp(7)
    for i in range(32):
        g(f"v_mov_b32 v{vO+i}, 0")
    ldswait("kd", L_KD, 512, 1, vZ0, vT)
    g(f"ds_read_b32 v{vMC}, v{vH4} offset:{L_MAX}")
    g.stamp(8)
    g("s_waitcnt lgkmcnt(0)")
    rne(g, vMC, vMC)
    g(f"v_mul_f32 v{vMC}, s{sLOG2E}, v{vMC}")
    g(f"s_cmp_eq_u32 s{sT4}, 1")
    g("s_cbranch_scc1 L_v1")
    g(f"s_cmp_eq_u32 s{sT4}, 2")
    g("s_cbranch_scc1 L_v2")
    g.L.append(".p2align 3")
    for k in range(3):
        g.label(f"L_v{k}")
        vtile(k)
        g(f"s_cmp_lg_u32 s{sDR}, 0")
        g(f"s_cbranch_scc1 L_dr{k}")
        take(k)
        g(f"s_cmp_ge_u32 s{sTI[k]}, 64")
        g(f"s_cbranch_scc1 L_dr1{k}")
        issue(SLOT[k], False, lpace)
    g("s_branch L_v0")

    vPW = vK
    for k in range(3):
        nxt = f"L_v{(k+1)%3}"
        g.label(f"L_dr{k}")
        g(f"s_cmp_eq_u32 s{sDR}, 2")
        g(f"s_cbranch_scc1 L_tail")
        g(f"s_mov_b32 s{sDR}, 2")
        g(f"s_branch {nxt}")
        g.label(f"L_dr1{k}")
        g(f"s_mov_b32 s{sT4}, {(k+1)%3}")
        if k < 2:
            g("s_branch L_drain")
    g.label("L_drain")
    va = vT
    g(f"v_lshrrev_b32 v{va}, 3, v0")
    g(f"v_lshlrev_b32 v{va}, 13, v{va}")
    g(f"v_and_b32 v{va+1}, 7, v0")
    g(f"v_lshl_add_u32 v{va}, v{va+1}, 4, v{va}")
    g(f"v_and_b32 v{va+1}, 16, v0")
    g(f"v_lshlrev_b32 v{va+1}, 1, v{va+1}")
    g(f"s_and_b32 s{sT0}, s{sW}, 1")
    g(f"s_lshl_b32 s{sT0}, s{sT0}, 6")
    g(f"v_bitop3_b32 v{va}, v{va}, v{va+1}, s{sT0} bitop3:0x96")
    for i in range(4):
        g(f"buffer_load_dwordx4 v{va}, {srd(SWO)}, s{sD0 + (i>>1)} offen offset:{1024*i} {wflags} lds")
    g(f"v_lshrrev_b32 v{vPW}, 4, v0")
    g(f"v_lshlrev_b32 v{vPW}, 4, v{vPW}")
    g(f"v_mul_u32_u24 v{va+1}, {HS//4}, v{vH4}")
    g(f"s_mul_i32 s{sT0}, s{sW}, {WSP}")
    g(f"v_add3_u32 v{vPW}, v{vPW}, v{va+1}, s{sT0}")
    g(f"s_mov_b32 s{sDR}, 1")
    g(f"s_waitcnt vmcnt({4*nV + 4})")
    g(f"s_cmp_eq_u32 s{sT4}, 1")
    g("s_cbranch_scc1 L_v1")
    g(f"s_cmp_eq_u32 s{sT4}, 2")
    g("s_cbranch_scc1 L_v2")
    g("s_branch L_v0")

    X = 64
    WT = 128
    g.label("L_tail")
    g.stamp(3)
    if notail:
        g("s_branch L_fin")
    RA, RF, vJ, vFF, vP1, vG, TM = 8, 9, 10, 11, 12, 13, 14
    TRA = (16, 17, 18, 19)
    g(f"s_lshl_b32 s{sT0}, s{sW}, 2")
    g(f"v_mov_b32 v{vJ}, s{sT0}")
    g(f"v_and_b32 v{RA}, 31, v0")
    g(f"s_mul_i32 s{sT1}, s{sW}, {HS}")
    g(f"v_lshl_add_u32 v{RA}, v{RA}, 4, s{sT1}")
    g(f"v_lshlrev_b32 v{RF}, 1, v{vJ}")
    g(f"s_mov_b64 exec, s[{sMASK}:{sMASK+1}]")
    for e in range(8):
        g(f"ds_write_b128 v{vPW}, {vq(vO+4*e)} offset:{L_PART + 64*e}")
    g("s_waitcnt vmcnt(0)")
    g(f"ds_write_b32 v{vJ}, v{vZ1} offset:{L_JN}")
    g("s_mov_b64 exec, -1")
    PR = X
    JN, FF_ = X + 16, X + 20
    def joinreads():
        g(f"ds_read_b128 {vq(JN)}, v{vZ0} offset:{L_JN}")
        g(f"ds_read_b64 {vq(FF_,2)}, v{RF} offset:{L_F}")
        for w in range(4):
            g(f"ds_read_b128 {vq(PR+4*w)}, v{RA} offset:{L_PART + WSP*w}")
    joinreads()
    g(f"v_mov_b32 v{vFF}, 0xff")
    g(f"v_lshrrev_b32 v{vP1}, 3, v0")
    g(f"v_lshlrev_b32 v{vP1}, 14, v{vP1}")
    g(f"v_and_b32 v{TM}, 7, v0")
    g(f"v_lshl_add_u32 v{vP1}, v{TM}, 4, v{vP1}")
    g(f"v_lshrrev_b32 v{vG}, 4, v0")
    g(f"v_bfe_u32 v{TRA[0]}, v0, 2, 2")
    g(f"v_lshlrev_b32 v{TRA[0]}, 7, v{TRA[0]}")
    g(f"v_lshl_add_u32 v{TRA[0]}, v{vH4}, 1, v{TRA[0]}")
    g(f"v_lshl_add_u32 v{TRA[0]}, v{vG}, 12, v{TRA[0]}")
    g(f"v_bfe_u32 v{TM}, v0, 3, 2")
    g(f"v_lshl_add_u32 v{TRA[0]}, v{TM}, 5, v{TRA[0]}")
    for j in range(1, 4):
        g(f"v_xor_b32 v{TRA[j]}, {32*j}, v{TRA[0]}")
    g(f"s_mov_b32 s{sMASK}, -1")
    g(f"s_mov_b32 s{sMASK+1}, 0")
    g(f"s_mov_b32 s{sSPIN}, 0")
    g.label("L_join")
    g("s_waitcnt lgkmcnt(0)" if g.diag else "s_waitcnt lgkmcnt(4)")
    g(f"v_min3_u32 v{TM}, v{JN}, v{JN+1}, v{JN+2}")
    g(f"v_min3_u32 v{TM}, v{TM}, v{JN+3}, v{FF_+1}")
    g(f"v_cmp_eq_u32 vcc, 0, v{TM}")
    g("s_waitcnt lgkmcnt(0)")
    g("s_cbranch_vccz L_joined")
    joinreads()
    g(f"s_add_u32 s{sSPIN}, s{sSPIN}, 1")
    g(f"s_cmp_lt_u32 s{sSPIN}, {hex(spin_max*16)}")
    g("s_cbranch_scc1 L_join")
    g("s_waitcnt lgkmcnt(0)")
    g.label("L_joined")
    g.stamp(4)
    for i in range(4):
        g(f"v_add_f32 v{PR+i}, v{PR+i}, v{PR+4+i}")
        g(f"v_add_f32 v{PR+8+i}, v{PR+8+i}, v{PR+12+i}")
    for i in range(4):
        g(f"v_add_f32 v{PR+i}, v{PR+i}, v{PR+8+i}")
    for i in range(4):
        g(f"v_mul_f32 v{PR+i}, v{FF_}, v{PR+i}")
    for i in range(4):
        g(f"v_bfi_b32 v{PR+i}, v{vFF}, s{sTAG}, v{PR+i}")
    g(f"s_mov_b64 exec, s[{sMASK}:{sMASK+1}]")
    store_mode("p", f"buffer_store_dwordx4 {vq(PR)}, v{vV}, {srd(SWS)}, s{sH1S} offen", sSLOW)
    g("s_mov_b64 exec, -1")
    D = X + 24
    C1 = X + 40
    def wofrag():
        for step in range(4):
            for j in range(4):
                for half in range(2):
                    g(f"ds_read_b64_tr_b16 {vq(WT+16*step+4*j+2*half,2)}, v{TRA[j]} offset:{L_WO + 1024*((step>>1) + 2*(step&1)) + 512*half}")
    g.stamp(9)
    poll("1", [f"buffer_load_dwordx4 {vq(D+4*i)}, v{vP1}, {srd(SWS)}, s{sH1G} offen offset:{128*i} sc1" for i in range(4)],
         [D + i for i in range(16)], C1, 0, wofrag)
    g.stamp(5)
    for i in range(8):
        g(f"v_permlane32_swap_b32 v{D+i}, v{D+8+i}")
    for i in range(8):
        g(f"v_add_f32 v{D+i}, v{D+i}, v{D+8+i}")
    for i in range(4):
        g(f"v_permlane16_swap_b32 v{D+i}, v{D+4+i}")
    for i in range(4):
        g(f"v_add_f32 v{D+i}, v{D+i}, v{D+4+i}")
    for i in range(4):
        g(f"v_add_f32_dpp v{D+i}, v{D+i}, v{D+i} row_ror:8 row_mask:0xf bank_mask:0xf")
    B0 = X + 44
    g(f"v_cvt_pk_bf16_f32 v{B0}, v{D}, v{D+1}")
    g(f"v_cvt_pk_bf16_f32 v{B0+1}, v{D+2}, v{D+3}")
    g("s_waitcnt lgkmcnt(0)")
    def mv(c):
        for i in range(2):
            g(f"v_mov_b32_dpp v{B0+2*c+i}, v{B0+i} row_shl:{c} row_mask:0xf bank_mask:0xf bound_ctrl:0")
    mv(1)
    mv(2)
    for step in range(4):
        for j in range(4):
            c = "0" if step == 0 else vq(vO + 4 * j)
            g(f"v_mfma_f32_16x16x32_bf16 {vq(vO+4*j)}, {vq(B0+4*step)}, {vq(WT+16*step+4*j)}, {c}")
            if step * 4 + j < 5:
                mv(3 + step * 4 + j)
    g("s_mov_b64 exec, 1")
    g(f"ds_add_u32 v{vZ0}, v{vZ1} offset:{L_CNT}")
    g("s_mov_b64 exec, 0xffff")
    g("s_nop 1")
    YO = 20
    for j in range(4):
        g(f"v_bfi_b32 v{YO+j}, v{vFF}, s{sTAG}, v{vO+4*j}")
    g(f"buffer_store_dwordx4 {vq(YO)}, v{vV}, {srd(SWS)}, s{sYS} offen sc1")
    g("s_mov_b64 exec, -1")
    g.stamp(6)
    g("s_branch L_fin")

    g.label("L_helper")
    g(f"v_mov_b32 v7, 0")
    g(f"v_lshlrev_b32 v8, 2, v0")
    g(f"ds_write_b32 v8, v7 offset:{L_TAG}")
    g(f"v_mov_b32 v9, 12")
    g(f"ds_write_b32 v7, v9 offset:{L_CNT}")
    g(f"v_and_b32 v8, 12, v8")
    g(f"v_mov_b32 v9, 0xff800000")
    g(f"ds_write_b32 v8, v9 offset:{L_MAX}")
    if bar0 == 0:
        g("s_waitcnt lgkmcnt(0)")
        g("s_barrier")
    g("s_setprio 3")
    g.srd_consts(SX, 4096)
    g.srd_consts(SWQ, 512 * 4096 * 2)
    hT = 20
    hACC = 32
    R = 48
    XR = 64
    XF = 80
    WF = 128
    vX, vTAG, vTR, vFFh, vH4h = 2, 6, 9, 11, 8
    sU, sC1 = 52, 54
    g(f"s_and_b32 s{sU}, s{sS}, 1")
    g(f"v_and_b32 v3, 3, v0")
    g(f"v_lshlrev_b32 v{vX}, 10, v3")
    g(f"v_bfe_u32 v4, v0, 2, 2")
    g(f"s_lshl_b32 s{sT0}, s{sU}, 1")
    g(f"v_xor_b32 v5, s{sT0}, v4")
    g(f"v_lshl_add_u32 v{vX}, v5, 6, v{vX}")
    g(f"v_lshrrev_b32 v5, 4, v0")
    g(f"v_lshl_add_u32 v{vX}, v5, 4, v{vX}")
    SXO = (56, 57, 58, 59)
    for j in range(4):
        g(f"s_xor_b32 s{SXO[j]}, s{sB}, {j}")
        g(f"s_lshl_b32 s{SXO[j]}, s{SXO[j]}, 8")
    g(f"v_lshrrev_b32 v10, 3, v0")
    g(f"v_and_b32 v11, 7, v0")
    g(f"v_lshlrev_b32 v11, 4, v11")
    VQ, V1, V2 = 112, 116, 120
    g(f"v_lshl_add_u32 v{VQ}, v10, 13, v11")
    for i in range(1, 4):
        g(f"v_add_u32 v{VQ+i}, {hex(i*(8*8192 - 1024))}, v{VQ}")
    SQO = (sA, sBo, sIT, sT0)
    g(f"s_lshl_b32 s{sT1}, s{sH}, 3")
    g(f"s_add_u32 s{sT1}, s{sT1}, s{sS}")
    g(f"s_lshl_b32 s{sT1}, s{sT1}, 7")
    g(f"s_lshl_b32 s{sT2}, s{sB}, 20")
    g(f"s_add_u32 s{sT1}, s{sT1}, s{sT2}")
    if 'wq' in skip:
        g(f"s_mov_b32 s{sT1}, {hex(OOB)}")
    g(f"s_lshl_b32 s{sT2}, s{sU}, 19")
    g(f"s_add_u32 s{SQO[0]}, s{sT1}, s{sT2}")
    g(f"s_add_u32 s{SQO[1]}, s{SQO[0]}, {hex(32*8192)}")
    g(f"s_xor_b32 s{sT2}, s{sT2}, {hex(64*8192)}")
    g(f"s_add_u32 s{SQO[2]}, s{sT1}, s{sT2}")
    g(f"s_add_u32 s{SQO[3]}, s{SQO[2]}, {hex(32*8192)}")
    g(f"s_mov_b32 s{sSPIN}, {hex(W_EP)}")
    g(f"s_mov_b32 m0, {L_WQ}")
    g("s_waitcnt lgkmcnt(0)")
    for j in range(4):
        g(f"buffer_load_dwordx4 {vq(XR+4*j)}, v{vX}, {srd(SX)}, s{SXO[j]} offen")
    g(f"buffer_load_dword v{vTAG}, v7, {srd(SWS)}, s{sSPIN} offen sc1")
    for n, so in enumerate(SQO):
        for i in range(4):
            g(f"buffer_load_dwordx4 v{VQ+i}, {srd(SWQ)}, s{so} offen offset:{1024*i} {wflags} lds")
        if n + 1 == bar0:
            g("s_barrier")
        if n < 3:
            g(f"s_add_u32 m0, m0, 4096")
            g("s_nop 0")
    for (b_, off, nb) in ((SB1, 56, 1792 * 2), (SB2, 72, 1024), (SW1, 48, 512 * 1792 * 2), (SW2, 64, 1792 * 512 * 2), (SOUT, 80, 4096)):
        g.srd_load(b_, off)
        g.srd_consts(b_, nb)
    g(f"s_lshr_b32 s{sC1}, s{sS}, 1")
    g(f"s_lshl_b32 s{sC1}, s{sC1}, 3")
    g(f"s_add_u32 s{sC1}, s{sC1}, s{sH}")
    vQS = 10
    g(f"v_lshlrev_b32 v{vQS}, 8, v3")
    g(f"v_lshl_add_u32 v{vQS}, v4, 6, v{vQS}")
    g(f"v_lshl_add_u32 v{vQS}, v5, 4, v{vQS}")
    sOWN, sOWNH, sOWNZ = sA, sBo, sIT
    g(f"s_lshl_b32 s{sOWN}, s2, 10")
    g(f"s_add_u32 s{sOWNH}, s{sOWN}, {hex(A_H)}")
    g(f"s_add_u32 s{sOWNZ}, s{sOWN}, {hex(A_Z)}")
    g(f"v_lshlrev_b32 v{vTR}, 10, v5")
    g(f"v_lshl_add_u32 v{vTR}, v4, 7, v{vTR}")
    g(f"v_lshl_add_u32 v{vTR}, v3, 3, v{vTR}")
    g(f"v_mov_b32 v{vFFh}, 0xff")
    SM1, SM2, SM3 = 12, 14, 68
    for (sm, c) in ((SM1, 1), (SM2, 2), (SM3, 3)):
        g(f"s_mov_b32 s{sm}, {hex(0x000f000f << (4*c))}")
        g(f"s_mov_b32 s{sm+1}, {hex(0x000f000f << (4*c))}")
    def red4(v, t):
        for r in (4, 8):
            g("s_nop 1")
            g(f"v_add_f32_dpp v{v}, v{v}, v{v} row_ror:{r} row_mask:0xf bank_mask:0xf")
        for sw in ("v_permlane16_swap_b32", "v_permlane32_swap_b32"):
            g(f"v_mov_b32 v{t}, v{v}")
            g("s_nop 1")
            g(f"{sw} v{v}, v{t}")
            g(f"v_add_f32 v{v}, v{v}, v{t}")
    NY = 16
    g(f"s_waitcnt vmcnt({NY + 1})")
    for i in range(16):
        g(f"v_lshlrev_b32 v{XF+2*i}, 16, v{XR+i}")
        g(f"v_and_b32 v{XF+2*i+1}, s{sHI}, v{XR+i}")
    g(f"v_pk_add_f32 {vq(hT,2)}, {vq(XF,2)}, {vq(XF+2,2)}")
    g(f"v_pk_add_f32 {vq(hT+2,2)}, {vq(XF+4,2)}, {vq(XF+6,2)}")
    for i in range(4, 16):
        d = hT + 2 * (i & 1)
        g(f"v_pk_add_f32 {vq(d,2)}, {vq(d,2)}, {vq(XF+2*i,2)}")
    g(f"v_pk_add_f32 {vq(hT,2)}, {vq(hT,2)}, {vq(hT+2,2)}")
    g(f"v_add_f32 v{hT}, v{hT}, v{hT+1}")
    red4(hT, hT + 1)
    g(f"v_mul_f32 v{hT}, {f32(-1.0/512)}, v{hT}")
    g(f"v_mov_b32 v{hT+1}, v{hT}")
    for i in range(16):
        t = hT + 6 + 2 * (i & 1)
        d = hT + 2 + 2 * (i & 1)
        g(f"v_pk_add_f32 {vq(t,2)}, {vq(XF+2*i,2)}, {vq(hT,2)}")
        if i < 2:
            g(f"v_pk_mul_f32 {vq(d,2)}, {vq(t,2)}, {vq(t,2)}")
        else:
            g(f"v_pk_fma_f32 {vq(d,2)}, {vq(t,2)}, {vq(t,2)}, {vq(d,2)}")
    g(f"v_pk_add_f32 {vq(hT+2,2)}, {vq(hT+2,2)}, {vq(hT+4,2)}")
    g(f"v_add_f32 v{hT+2}, v{hT+2}, v{hT+3}")
    rne(g, hT, hT)
    red4(hT + 2, hT + 3)
    g(f"v_mul_f32 v{hT+2}, {f32(1.0/512)}, v{hT+2}")
    rne(g, hT + 2, hT + 2)
    g(f"v_add_f32 v{hT+2}, {f32(1e-5)}, v{hT+2}")
    rne(g, hT + 2, hT + 2)
    g(f"v_sqrt_f32 v{hT+2}, v{hT+2}")
    for i in range(8):
        g(f"v_add_f32 v{XF+i}, v{XF+i}, v{hT}")
    rne(g, hT + 2, hT + 2)
    g(f"v_rcp_f32 v{hT+4}, v{hT+2}")
    def round8(F, T):
        for i in range(4):
            g(f"v_cvt_pk_bf16_f32 v{T+i}, v{F+2*i}, v{F+2*i+1}")
        for i in range(4):
            g(f"v_lshlrev_b32 v{F+2*i}, 16, v{T+i}")
            g(f"v_and_b32 v{F+2*i+1}, s{sHI}, v{T+i}")
    round8(XF, R)
    for i in range(8):
        g(f"v_mul_f32 v{XF+8+i}, v{XF+i}, v{hT+4}")
    for i in range(8):
        g(f"v_fma_f32 v{XF+i}, -v{XF+8+i}, v{hT+2}, v{XF+i}")
    for i in range(8):
        g(f"v_fma_f32 v{XF+i}, v{XF+i}, v{hT+4}, v{XF+8+i}")
    for i in range(4):
        g(f"v_cvt_pk_bf16_f32 v{R+i}, v{XF+2*i}, v{XF+2*i+1}")
    g.stamp(1)
    g(f"s_waitcnt vmcnt({NY})")
    g(f"v_add_u32 v{vTAG}, 1, v{vTAG}")
    for t in range(1, 4):
        for i in range(4):
            g(f"v_mov_b32_dpp v{R+4*t+i}, v{R+i} row_ror:{4*t} row_mask:0xf bank_mask:0xf")
    g(f"v_readfirstlane_b32 s{sTAG}, v{vTAG}")
    sTAGQ, sRP = 70, 71
    g(f"s_getreg_b32 s{sTAGQ}, hwreg(HW_REG_XCC_ID)")
    g(f"s_and_b32 s{sTAGQ}, s{sTAGQ}, 7")
    g(f"s_lshl_b32 s{sTAGQ}, s{sTAGQ}, 5")
    g(f"s_and_b32 s{sRP}, s{sTAG}, 31")
    g(f"s_or_b32 s{sTAGQ}, s{sTAGQ}, s{sRP}")

    def gemm1(base, nstep, vm, off, tg):
        for s_ in range(nstep):
            g(f"s_waitcnt vmcnt({vm - 4*(s_+1)})")
            for c in range(4):
                for half in range(2):
                    g(f"ds_read_b64_tr_b16 {vq(WF+16*s_+4*c+2*half,2)}, v{vTR} offset:{base + 4096*s_ + 512*half + 32*c}")
            g("s_waitcnt lgkmcnt(0)")
            for c in range(4):
                cc = "0" if s_ == 0 else vq(hACC + 4 * c)
                g(f"v_mfma_f32_16x16x32_bf16 {vq(hACC+4*c)}, {vq(WF+16*s_+4*c)}, {vq(R+4*((c-s_)&3))}, {cc}")
        g("s_nop 5")
        for (sm, c) in ((SM1, 1), (SM2, 2), (SM3, 3)):
            for r in range(4):
                g(f"v_cndmask_b32 v{hACC+r}, v{hACC+r}, v{hACC+4*c+r}, s[{sm}:{sm+1}]")
        for r in range(4):
            g(f"v_bfi_b32 v{hT+off+r}, v{vFFh}, s{tg}, v{hACC+r}")

    gemm1(L_WQ, 4, 16, 0, sTAGQ)
    g(f"buffer_store_dwordx4 {vq(hT)}, v{vQS}, {srd(SWS)}, s{sOWN} offen {'' if fast else 'sc1'}")
    g.stamp(2)
    g(f"v_mov_b32 v12, s{sTAG}")
    g(f"ds_write_b32 v7, v12 offset:{L_TAG}")
    g(f"v_lshrrev_b32 v14, 3, v0")
    g(f"v_lshlrev_b32 v14, 13, v14")
    g(f"v_and_b32 v13, 7, v0")
    g(f"v_lshl_add_u32 v14, v13, 5, v14")
    g(f"s_lshl_b32 s{SXO[0]}, s{sH}, 10")
    g(f"s_lshl_b32 s{sT0}, s{sB}, 8")
    g(f"s_add_u32 s{SXO[0]}, s{SXO[0]}, s{sT0}")
    for j in range(1, 4):
        g(f"s_add_u32 s{SXO[j]}, s{SXO[0]}, {hex(j << 16)}")
    g(f"v_lshlrev_b32 v13, 4, v0")
    if qwait:
        g(f"s_sleep {qwait}")
    QG = 64
    def republish():
        g(f"buffer_store_dwordx4 {vq(hT)}, v{vQS}, {srd(SWS)}, s{sOWN} offen sc1")
    g(f"s_mov_b32 s{sSPIN}, 0")
    g.label("L_pollq")
    for j in range(4):
        for i in range(2):
            g(f"buffer_load_dwordx4 {vq(QG+8*j+4*i)}, v14, {srd(SWS)}, s{SXO[j]} offen offset:{16*i} sc1")
    g("s_waitcnt vmcnt(0)")
    tagcheck(g, [QG + i for i in range(32)], 30, 31, sTAGQ, 0x1f)
    g("s_cbranch_vccz L_gotq")
    g(f"s_add_u32 s{sSPIN}, s{sSPIN}, 1")
    g(f"s_cmp_lg_u32 s{sSPIN}, {repub}")
    g("s_cbranch_scc1 L_norp")
    g("s_mov_b64 exec, -1")
    republish()
    g.label("L_norp")
    g("s_mov_b64 exec, vcc")
    g(f"s_cmp_lt_u32 s{sSPIN}, {hex(spin_max)}")
    g("s_cbranch_scc1 L_pollq")
    g.label("L_gotq")
    g("s_mov_b64 exec, -1")
    g(f"v_and_b32 v30, 0xe0, v30")
    g(f"v_cmp_ne_u32 vcc, 0, v30")
    g(f"v_mov_b32 v31, 1")
    g("s_cbranch_vccz L_same")
    g(f"v_mov_b32 v31, 2")
    republish()
    g.label("L_same")
    g.stamp(4)
    def sum4():
        for i in range(4):
            g(f"v_pk_add_f32 {vq(QG+2*i,2)}, {vq(QG+2*i,2)}, {vq(QG+8+2*i,2)}")
            g(f"v_pk_add_f32 {vq(QG+16+2*i,2)}, {vq(QG+16+2*i,2)}, {vq(QG+24+2*i,2)}")
        for i in range(4):
            g(f"v_pk_add_f32 {vq(QG+2*i,2)}, {vq(QG+2*i,2)}, {vq(QG+16+2*i,2)}")
    sum4()
    for i in range(4):
        g(f"v_cvt_pk_bf16_f32 v{hACC+i}, v{QG+2*i}, v{QG+2*i+1}")
    g(f"ds_write_b128 v13, {vq(hACC)} offset:{L_Q}")
    g(f"ds_write_b32 v7, v31 offset:{L_TAG+4}")
    if diag and probe is None:
        g(f"s_mov_b32 s{sSTAMP+6}, s{sSPIN}")
    g.stamp(5)
    g("s_setprio 0")
    sSLOWH, sOO = 55, 53
    g(f"v_readfirstlane_b32 s{sSLOWH}, v31")
    g(f"v_and_b32 v14, 1, v4")
    g(f"v_lshlrev_b32 v14, 6, v14")
    g(f"v_lshl_add_u32 v14, v5, 4, v14")
    g(f"s_lshl_b32 s8, s{sC1}, 7")
    g(f"v_and_b32 v15, 1, v0")
    g(f"v_lshlrev_b32 v15, 1, v15")
    g(f"v_lshl_add_u32 v15, v5, 5, v15")
    g(f"s_lshl_b32 s9, s{sS}, 7")
    g(f"s_lshl_b32 s{sT3}, s{sH}, 2")
    g(f"s_add_u32 s9, s9, s{sT3}")
    g(f"s_lshl_b32 s{sOO}, s{sB}, 10")
    g(f"s_add_u32 s{sOO}, s{sOO}, s9")
    g(f"v_lshrrev_b32 v12, 1, v4")
    g(f"v_lshlrev_b32 v12, 17, v12")
    g(f"v_lshl_add_u32 v12, v3, 8, v12")
    g(f"v_lshl_add_u32 v12, v14, 1, v12")
    g(f"s_and_b32 s{SXO[0]}, s2, 0x37")
    g(f"s_lshl_b32 s{SXO[0]}, s{SXO[0]}, 10")
    g(f"s_add_u32 s{SXO[0]}, s{SXO[0]}, {hex(A_H)}")
    g(f"s_add_u32 s{SXO[1]}, s{SXO[0]}, {hex(8 << 10)}")
    g(f"s_add_u32 s{SXO[2]}, s{SXO[0]}, {hex(64 << 10)}")
    g(f"s_add_u32 s{SXO[3]}, s{SXO[0]}, {hex(72 << 10)}")
    g(f"v_lshrrev_b32 v30, 3, v0")
    g(f"v_and_b32 v1, 7, v0")
    g(f"v_lshlrev_b32 v1, 4, v1")
    g(f"v_mul_u32_u24 v{V1}, 3584, v30")
    g(f"v_add_u32 v{V1}, v{V1}, v1")
    g(f"v_lshl_add_u32 v{V2}, v30, 10, v1")
    for (V, rs) in ((V1, 3584), (V2, 1024)):
        for i in range(1, 4):
            g(f"v_add_u32 v{V+i}, {hex(i*(8*rs - 1024))}, v{V}")
    g(f"v_lshlrev_b32 v1, 10, v30")
    g(f"v_lshl_add_u32 v1, v3, 4, v1")
    g(f"s_lshl_b32 s{sT4}, s{sB}, 1")
    g(f"s_add_u32 s{sT4}, s{sT4}, s{sU}")
    g(f"s_mul_i32 s{sT1}, s{sT4}, {64*3584}")
    g(f"s_add_u32 s{sT1}, s{sT1}, s8")
    g(f"s_lshl_b32 s{sT3}, s{sC1}, 16")
    g(f"s_lshl_b32 s{sT4}, s{sT4}, 7")
    g(f"s_add_u32 s{sT3}, s{sT3}, s{sT4}")
    g(f"s_add_u32 s{sT2}, s{sT1}, {32*3584}")
    g(f"s_add_u32 s{sT4}, s{sT3}, {32*1024}")
    g(f"s_mov_b32 m0, {L_W1}")
    g(f"buffer_load_ushort v28, v15, {srd(SX)}, s{sOO} offen")
    g(f"buffer_load_ushort v29, v15, {srd(SB2)}, s9 offen")
    g(f"s_cmp_ge_u32 s{sC1}, 28")
    g("s_cbranch_scc1 L_noffn1")
    g(f"buffer_load_dwordx4 {vq(16)}, v14, {srd(SB1)}, s8 offen")
    for so in (sT1, sT2):
        for i in range(4):
            g(f"buffer_load_dwordx4 v{V1+i}, {srd(SW1)}, s{so} offen offset:{1024*i} {wflags} lds")
        g(f"s_add_u32 m0, m0, 4096")
        g("s_nop 0")
    gemm1(L_W1, 2, 8, 4, sTAG)
    store_mode("h", f"buffer_store_dwordx4 {vq(hT+4)}, v{vQS}, {srd(SWS)}, s{sOWNH} offen", sSLOWH)
    g.label("L_noffn1")
    ldswait("kdh", L_KD, 512, 8, 7, 30)
    MX, MC, LS = 32, 33, 34
    g(f"ds_read_b32 v{MX}, v{vH4h} offset:{L_MAX}")
    SCR = 128
    for i in range(16):
        g(f"ds_read_b128 {vq(SCR+4*i)}, v13 offset:{L_SC + 1024*i}")
    g(f"s_mov_b32 s10, {f32(LOG2E)}")
    g("s_waitcnt lgkmcnt(0)")
    rne(g, MX, MX)
    g(f"v_mul_f32 v{MC}, s10, v{MX}")
    for i in range(4):
        g(f"v_mov_b32 v{LS+i}, 0")
    g(f"s_mov_b32 s11, 0")
    EX = 64
    for blk in range(4):
        for i in range(16):
            g(f"v_lshlrev_b32 v{EX+2*i}, 16, v{SCR+16*blk+i}")
            g(f"v_and_b32 v{EX+2*i+1}, s{sHI}, v{SCR+16*blk+i}")
        for i in range(32):
            g(f"v_fma_f32 v{EX+i}, v{EX+i}, s10, -v{MC}")
        for i in range(32):
            g(f"v_exp_f32 v{EX+i}, v{EX+i}")
        for i in range(32):
            g(f"v_add_f32 v{LS+(i&3)}, v{LS+(i&3)}, v{EX+i}")
    g(f"v_add_f32 v{LS}, v{LS}, v{LS+1}")
    g(f"v_add_f32 v{LS+2}, v{LS+2}, v{LS+3}")
    g(f"v_add_f32 v{LS}, v{LS}, v{LS+2}")
    red4(LS, LS + 1)
    for i in range(4):
        g(f"v_bfi_b32 v{40+i}, v{vFFh}, s{sTAG}, v{MX if i % 2 == 0 else LS}")
    g(f"s_lshl_b32 s{sT0}, s2, 7")
    g(f"s_add_u32 s{sT0}, s{sT0}, {hex(A_S)}")
    g("s_mov_b64 exec, 0xff")
    store_mode("s", f"buffer_store_dwordx4 {vq(40)}, v13, {srd(SWS)}, s{sT0} offen", sSLOWH)
    g("s_mov_b64 exec, -1")
    g(f"s_and_b32 s{sT0}, s2, 0xc7")
    g(f"s_lshl_b32 s{sT0}, s{sT0}, 7")
    g(f"s_add_u32 s{sT0}, s{sT0}, {hex(A_S)}")
    g("s_sleep 64")
    ST = 44
    poll("s", [f"buffer_load_dwordx2 {vq(ST,2)}, v1, {srd(SWS)}, s{sT0} offen sc1"], [ST, ST + 1, ST], 30, 32)
    C1h, C2h, C3h = 46, 47, 36
    g(f"v_and_b32 v{ST}, s{sHI}, v{ST}")
    g("s_nop 1")
    g(f"v_max_f32_dpp v{C1h}, v{ST}, v{ST} row_ror:8 row_mask:0xf bank_mask:0xf")
    for sw in ("v_permlane16_swap_b32", "v_permlane32_swap_b32"):
        g(f"v_mov_b32 v{C3h}, v{C1h}")
        g("s_nop 1")
        g(f"{sw} v{C1h}, v{C3h}")
        g(f"v_max_f32 v{C1h}, v{C1h}, v{C3h}")
    g(f"v_sub_f32 v{C2h}, v{ST}, v{C1h}")
    g(f"v_sub_f32 v{MX}, v{MX}, v{C1h}")
    g(f"v_mul_f32 v{C2h}, s10, v{C2h}")
    g(f"v_mul_f32 v{MX}, s10, v{MX}")
    g(f"v_exp_f32 v{C2h}, v{C2h}")
    g(f"v_exp_f32 v{MX}, v{MX}")
    g(f"v_mul_f32 v{C2h}, v{C2h}, v{ST+1}")
    g("s_nop 1")
    g(f"v_add_f32_dpp v{C2h}, v{C2h}, v{C2h} row_ror:8 row_mask:0xf bank_mask:0xf")
    for sw in ("v_permlane16_swap_b32", "v_permlane32_swap_b32"):
        g(f"v_mov_b32 v{C3h}, v{C2h}")
        g("s_nop 1")
        g(f"{sw} v{C2h}, v{C3h}")
        g(f"v_add_f32 v{C2h}, v{C2h}, v{C3h}")
    g(f"v_rcp_f32 v{C2h}, v{C2h}")
    g(f"v_mov_b32 v{MX+1}, 1")
    g(f"v_lshlrev_b32 v30, 1, v{vH4h}")
    g(f"v_mul_f32 v{MX}, v{MX}, v{C2h}")
    g(f"ds_write_b64 v30, {vq(MX,2)} offset:{L_F}")
    g.stamp(1)
    g(f"s_cmp_ge_u32 s{sC1}, 28")
    g("s_cbranch_scc1 L_noffn")
    ldswait("trig", L_CNT, 64 + trig, 4, 7, 30)
    g.stamp(10)
    for n, so in enumerate((sT3, sT4)):
        for i in range(4):
            g(f"buffer_load_dwordx4 v{V2+i}, {srd(SW2)}, s{so} offen offset:{1024*i} {wflags} lds")
        if n < 1:
            g(f"s_add_u32 m0, m0, 4096")
            g("s_nop 0")
    poll("h", [f"buffer_load_dwordx4 {vq(QG+8*j+4*i)}, v12, {srd(SWS)}, s{SXO[j]} offen offset:{16*i} sc1"
               for j in range(4) for i in range(2)], [QG + i for i in range(32)], 30, 2)
    for s_ in range(2):
        for j in range(4):
            for half in range(2):
                g(f"ds_read_b64_tr_b16 {vq(WF+16*s_+4*j+2*half,2)}, v{vTR} offset:{L_W2 + 4096*s_ + 512*half + 32*j}")
    sum4()
    g("s_nop 1")
    for i in range(8):
        g(f"v_add_f32_dpp v{QG+i}, v{QG+i}, v{QG+i} row_ror:8 row_mask:0xf bank_mask:0xf")
    round8(QG, hT)
    for i in range(4):
        g(f"v_lshlrev_b32 v{hT+4}, 16, v{16+i}")
        g(f"v_and_b32 v{hT+5}, s{sHI}, v{16+i}")
        g(f"v_add_f32 v{QG+2*i}, v{QG+2*i}, v{hT+4}")
        g(f"v_add_f32 v{QG+2*i+1}, v{QG+2*i+1}, v{hT+5}")
    round8(QG, hT)
    for i in range(8):
        g(f"v_max_f32 v{QG+i}, 0, v{QG+i}")
    for i in range(8):
        g(f"v_mul_f32 v{QG+i}, v{QG+i}, v{QG+i}")
    for i in range(4):
        g(f"v_cvt_pk_bf16_f32 v{R+i}, v{QG+2*i}, v{QG+2*i+1}")
    g("s_nop 0")
    for i in range(4):
        g(f"v_mov_b32_dpp v{R+4+i}, v{R+i} row_ror:4 row_mask:0xf bank_mask:0xf")
    g.stamp(6)
    g("s_waitcnt lgkmcnt(0)")
    g("s_nop 0")
    for s_ in range(2):
        for j in range(4):
            cc = "0" if s_ == 0 else vq(hACC + 4 * j)
            g(f"v_mfma_f32_16x16x32_bf16 {vq(hACC+4*j)}, {vq(R+4*s_)}, {vq(WF+16*s_+4*j)}, {cc}")
    g("s_nop 7")
    for b_ in range(4):
        for j in range(4):
            g(f"v_bfi_b32 v{QG+4*b_+j}, v{vFFh}, s{sTAG}, v{hACC+4*j+b_}")
    g("s_mov_b64 exec, 0xffff")
    for b_ in range(4):
        g(f"buffer_store_dwordx4 {vq(QG+4*b_)}, v13, {srd(SWS)}, s{sOWNZ} offen offset:{256*b_} sc1")
    g("s_mov_b64 exec, -1")
    g.label("L_noffn")
    g.stamp(7)
    g(f"v_bfe_u32 v14, v0, 1, 3")
    g(f"v_lshlrev_b32 v14, 10, v14")
    g(f"v_and_b32 v12, 1, v0")
    g(f"v_lshl_add_u32 v14, v12, 4, v14")
    g(f"v_lshl_add_u32 v12, v5, 14, v14")
    g(f"v_lshl_add_u32 v14, v5, 16, v14")
    g(f"s_lshl_b32 s{sT2}, s{sB}, 8")
    g(f"s_lshl_b32 s{sT1}, s{sH}, 5")
    g(f"s_add_u32 s{sT2}, s{sT2}, s{sT1}")
    g(f"s_lshr_b32 s{sT0}, s{sS}, 1")
    g(f"s_lshl_b32 s{sT0}, s{sT0}, 16")
    g(f"s_lshl_b32 s{sT1}, s{sU}, 13")
    g(f"s_add_u32 s{sT0}, s{sT0}, s{sT1}")
    g(f"s_add_u32 s{sT0}, s{sT0}, s{sT2}")
    g(f"s_add_u32 s{sT0}, s{sT0}, {hex(A_Z)}")
    g(f"s_lshl_b32 s{sT1}, s{sS}, 13")
    g(f"s_add_u32 s{sT1}, s{sT1}, s{sT2}")
    g(f"s_add_u32 s{sT1}, s{sT1}, {hex(A_Y)}")
    Z, Y = 32, 36
    for i in range(4):
        g(f"v_mov_b32 v{Z+i}, 0")
    ldswait("y", L_CNT, 68 + ysig, 1, 7, 30)
    g(f"s_mov_b32 s{sMASK2}, -1")
    g(f"s_mov_b32 s{sMASK2+1}, 0x00ffffff")
    g(f"s_mov_b64 exec, s[{sMASK2}:{sMASK2+1}]")
    poll("z", [f"buffer_load_dwordx4 {vq(Z)}, v12, {srd(SWS)}, s{sT0} offen sc1"], [Z + i for i in range(4)], 30, 0)
    g.stamp(8)
    def gate():
        reduce32x4(g, Z)
        rne(g, Z, Z)
        g(f"v_lshlrev_b32 v29, 16, v29")
        g(f"v_add_f32 v{Z}, v{Z}, v29")
        rne(g, Z, Z)
        g(f"v_mul_f32 v30, {f32(-LOG2E)}, v{Z}")
        g(f"v_exp_f32 v30, v30")
        g("s_nop 0")
        g(f"v_add_f32 v30, 1.0, v30")
        g(f"v_rcp_f32 v30, v30")
        g("s_nop 0")
        g(f"v_mul_f32 v{Z}, v{Z}, v30")
        rne(g, Z, Z)
        g(f"v_lshlrev_b32 v{Z+1}, 16, v28")
        g(f"s_mov_b32 s{sMASK2}, 0x00030003")
        g(f"s_mov_b32 s{sMASK2+1}, 0x00030003")
    poll("y", [f"buffer_load_dwordx4 {vq(Y)}, v14, {srd(SWS)}, s{sT1} offen sc1"], [Y + i for i in range(4)], 30, 0, gate)
    g.stamp(9)
    reduce32x4(g, Y)
    rne(g, Y, Y)
    g(f"v_mul_f32 v{Y}, v{Y}, v{Z}")
    rne(g, Y, Y)
    g(f"v_add_f32 v{Y}, v{Y}, v{Z+1}")
    g(f"v_cvt_pk_bf16_f32 v{Y}, v{Y}, v{Y}")
    g(f"s_mov_b64 exec, s[{sMASK2}:{sMASK2+1}]")
    g(f"buffer_store_short v{Y}, v15, {srd(SOUT)}, s{sOO} offen")
    g(f"s_cmp_lg_u32 s2, 0")
    g("s_cbranch_scc1 L_noep")
    g(f"s_mov_b32 s{sT0}, {hex(W_EP)}")
    g("s_mov_b64 exec, 1")
    g(f"v_mov_b32 v30, s{sTAG}")
    g(f"buffer_store_dword v30, v7, {srd(SWS)}, s{sT0} offen sc1")
    g.label("L_noep")
    g("s_mov_b64 exec, -1")

    g.label("L_fin")
    if probe is not None:
        role, idx = probe
        g("s_waitcnt vmcnt(0)")
        g.stamp(11)
        g("s_waitcnt lgkmcnt(0)")
        g(f"s_mov_b32 s{sT0}, s{sSTAMP}")
        if role == 'wg':
            g(f"s_cmp_lg_u32 s2, {idx}")
            g("s_cbranch_scc1 L_end")
            g(f"s_cmp_lg_u32 s{sWAVE}, 0")
            g("s_cbranch_scc1 L_end")
        g(f"s_cmp_eq_u32 s{sWAVE}, 0")
        if role == 'h':
            g(f"s_cselect_b32 s{sT0}, s{sSTAMP+2*idx}, s{sT0}")
        elif role == 's':
            g(f"s_cselect_b32 s{sT0}, s{sT0}, s{sSTAMP+2*idx}")
        g(f"s_add_u32 s{sT0}, s{sT0}, 10000")
        g.label("L_probe")
        g(f"s_memrealtime s[{sSTAMP+2}:{sSTAMP+3}]")
        g("s_waitcnt lgkmcnt(0)")
        g(f"s_sub_u32 s{sT1}, s{sSTAMP+2}, s{sT0}")
        g(f"s_cmp_lt_i32 s{sT1}, 0")
        g("s_cbranch_scc1 L_probe")
    if diag:
        g("s_waitcnt vmcnt(0)")
        g.stamp(11)
        g("s_waitcnt lgkmcnt(0)")
        g(f"s_mul_i32 s{sT0}, s2, 5")
        g(f"s_add_u32 s{sT0}, s{sT0}, s{sWAVE}")
        g(f"s_lshl_b32 s{sT0}, s{sT0}, 6")
        g(f"s_add_u32 s{sT0}, s{sT0}, {hex(W_DIAG)}")
        for i in range(12):
            g(f"v_mov_b32 v{8+i}, s{sSTAMP+2*i}")
        g(f"v_mov_b32 v20, s{sSPIN}")
        g(f"v_mov_b32 v22, s{sIT}")
        g("s_getreg_b32 s3, hwreg(HW_REG_XCC_ID)")
        g("v_mov_b32 v21, s3")
        g("v_mov_b32 v23, 0")
        g("v_mov_b32 v1, 0")
        g("s_mov_b64 exec, 1")
        for i in range(4):
            g(f"buffer_store_dwordx4 {vq(8+4*i)}, v1, {srd(SWS)}, s{sT0} offen offset:{16*i}")
    g.label("L_end")
    g("s_endpgm")
    out += g.L
    out += ['.section .rodata,"a"', ".p2align 6", f".amdhsa_kernel {NAME}_kernel",
            "  .amdhsa_next_free_vgpr 256", "  .amdhsa_next_free_sgpr 102", "  .amdhsa_accum_offset 256",
            "  .amdhsa_group_segment_fixed_size 0", "  .amdhsa_kernarg_size 104", "  .amdhsa_user_sgpr_count 2",
            "  .amdhsa_user_sgpr_kernarg_segment_ptr 1", "  .amdhsa_system_sgpr_workgroup_id_x 1",
            "  .amdhsa_float_denorm_mode_32 3",
            ".end_amdhsa_kernel"]
    return "\n".join(out) + "\n"


if __name__ == "__main__":
    kw = eval("dict(%s)" % (sys.argv[2] if len(sys.argv) > 2 else ""))
    open(sys.argv[1], "w").write(gen(**kw))
```

```python
import sys, struct

NAME = "recurrent_scan__gqa_block_cached__dense_activation_squared_relu__decode"

HEADER = """; Kernarg layout for this problem (104 bytes, ptrs only, base s[0:1]):
;   offset  24: d_in[3] A_wq  shape=(512, 4096) dtype=bfloat16
;   offset  32: d_in[4] A_wo  shape=(4096, 512) dtype=bfloat16
;   offset  96: d_ws      workspace (tagged hand-offs between workgroups)
; One workgroup per (batch b, kv head h, key split s of 2048 keys). Waves 1..4 stream first all K, then all V of
; Wave 0 does the small work: layernorm, a slice of the q projection, softmax statistics across the 8 splits,
; a slice of the FFN and the final reduction. Every word handed between workgroups carries a launch tag
; (epoch word of d_ws + 1) in its low bits; readers poll until the tag is there.
"""

def f32(x):
    return "0x%08x" % struct.unpack("<I", struct.pack("<f", x))[0]

LOG2E = 1.4426950408889634
SCALE = 128 ** -0.5

L_Q = 0
L_TAG, L_CNT, L_KD, L_MAX, L_JN, L_F, L_TH = 2048, 2056, 2060, 2064, 2080, 2096, 2128
L_PART, HS, WSP = 3072, 528, 2112
L_WQ, L_W1, L_W2, L_WO, L_SIZE = 12288, 28672, 36864, 45056, 61440
L_SC = L_WQ
A_Q, A_H, A_Z, A_Y, A_P, A_S = 0, 0x40000, 0x80000, 0xc0000, 0x100000, 0x180000
A_C = 0x1a0000
W_EP = 0x1c0000
W_DIAG = 0x280000
W_SIZE = 0x400000
OOB = 0x10000000

SK, SV, SWS, SWO, SW2, SX, SWQ, SW1, SB1, SB2, SOUT = 8, 12, 16, 20, 24, 28, 32, 36, 40, 44, 48
sWAVE, sB, sH, sS = 3, 4, 5, 6
sDR = 55
sSELLO, sSELHI, sSCALE, sLOG2E, sA, sBo, sIT = 56, 57, 58, 59, 60, 61, 62
sT0, sT1, sT2, sT3, sT4 = 63, 64, 65, 66, 67
sMASK = 68
sMASK2 = 70
sSPIN = 72
sHI = 73
sW = 74
sTAG = 75
sSTAMP = 76


class G:
    def __init__(self, diag=False):
        self.L = []
        self.diag = diag
        self.nstamp = {}

    def __call__(self, s):
        self.L.append("  " + s)

    def label(self, s):
        self.L.append(s + ":")

    def comment(self, s):
        self.L.append("  ; " + s)

    def stamp(self, i):
        if self.diag:
            self(f"s_memrealtime s[{sSTAMP+2*i}:{sSTAMP+2*i+1}]")

    def srd_consts(self, base, nbytes):
        self(f"s_mov_b32 s{base+2}, {hex(nbytes)}")
        self(f"s_mov_b32 s{base+3}, 0x20000")

    def srd_load(self, base, off):
        self(f"s_load_dwordx2 s[{base}:{base+1}], s[0:1], {off}")


def srd(b):
    return f"s[{b}:{b+3}]"


def vq(r, n=4):
    return f"v[{r}:{r+n-1}]"


def perms(g, raw, e, dst):
    sel = sSELHI if (e & 1) else sSELLO
    for j in range(4):
        g(f"v_perm_b32 v{dst+j}, v{raw[2*j+1] + (e >> 1)}, v{raw[2*j] + (e >> 1)}, s{sel}")


def rne(g, dst, src):
    g(f"v_cvt_pk_bf16_f32 v{dst}, v{src}, v{src}")
    g(f"v_lshlrev_b32 v{dst}, 16, v{dst}")


def tagcheck(g, regs, c1, c2, tag=None, mask=0xff):
    def tree(op3, op2, dst):
        r = list(regs)
        g(f"{op3} v{dst}, v{r[0]}, v{r[1]}, v{r[2]}" + (" bitop3:0x80" if "bitop" in op3 else ""))
        r = r[3:]
        while len(r) >= 2:
            g(f"{op3} v{dst}, v{dst}, v{r[0]}, v{r[1]}" + (" bitop3:0x80" if "bitop" in op3 else ""))
            r = r[2:]
        if r:
            g(f"{op2} v{dst}, v{dst}, v{r[0]}")
    tree("v_bitop3_b32", "v_and_b32", c1)
    tree("v_or3_b32", "v_or_b32", c2)
    g(f"v_bitop3_b32 v{c1}, v{c1}, v{c2}, s{sTAG if tag is None else tag} bitop3:0x7e")
    g(f"v_and_b32 v{c2}, {hex(mask)}, v{c1}")
    g(f"v_cmp_ne_u32 vcc, 0, v{c2}")


def reduce32x4(g, a):
    g(f"v_permlane32_swap_b32 v{a}, v{a+2}")
    g(f"v_permlane32_swap_b32 v{a+1}, v{a+3}")
    g(f"v_add_f32 v{a}, v{a}, v{a+2}")
    g(f"v_add_f32 v{a+1}, v{a+1}, v{a+3}")
    g("s_nop 1")
    g(f"v_permlane16_swap_b32 v{a}, v{a+1}")
    g(f"v_add_f32 v{a}, v{a}, v{a+1}")
    for r in (8, 4, 2):
        g("s_nop 1")
        g(f"v_add_f32_dpp v{a}, v{a}, v{a} row_ror:{r} row_mask:0xf bank_mask:0xf")


def gen(diag=False, kvflags="nt", wflags="nt", pace=11, pace3=None, spin_max=1 << 20, skip=(), probe=None, qwait=20,
        remap=False, fast=True, repub=3, bar0=4, pf=False, trig=4, ysig=4, brk=True, hstop=None, notail=False, lpace=None, pgrp=4, ks=(2, 1, 2, 1), vs=(2, 1, 2, 1), ps=None, es=0, eth=52, ctl=(18, 6, 48, 22), bs=0, gsh=None, pairs=((17, 3), (18, 7), (16, 0)), sigearly=True, ypipe=2):
    tup = lambda x: (x,) * 4 if isinstance(x, int) else tuple(x)
    ps = tup(ks if ps is None else ps)
    ks, vs, es = tup(ks), tup(vs), tup(es)
    bs = tup(bs)
    lv = [ps, ks, vs, es, bs]
    nM = 4 + min(min(x) for x in lv)
    nK = nV = nM
    g = G(diag or probe is not None)
    out = [HEADER + f"; @launch grid=(256,1,1) block=(320,1,1) lds={L_SIZE}",
           '.amdgcn_target "amdgcn-amd-amdhsa--gfx950"', ".text", f".globl {NAME}_kernel", ".p2align 8",
           f".type {NAME}_kernel,@function", f"{NAME}_kernel:"]

    def poll(tag, loads, regs, t, sleep, first=None):
        g(f"s_mov_b32 s{sSPIN}, 0")
        if first is not None:
            for l in loads:
                g(l)
            first()
            g(f"s_branch L_pw{tag}")
        g.label(f"L_poll{tag}")
        for l in loads:
            g(l)
        g.label(f"L_pw{tag}")
        g("s_waitcnt vmcnt(0)")
        if tag == "1" and g.diag:
            g(f"s_cmp_lg_u32 s{sSPIN}, 0")
            g("s_cbranch_scc1 L_nost")
            g.stamp(10)
            g.label("L_nost")
        tagcheck(g, regs, t, t + 1)
        g(f"s_cbranch_vccz L_got{tag}")
        g("s_mov_b64 exec, vcc")
        if sleep:
            g(f"s_sleep {sleep}")
        g(f"s_add_u32 s{sSPIN}, s{sSPIN}, 1")
        g(f"s_cmp_lt_u32 s{sSPIN}, {hex(spin_max)}")
        g(f"s_cbranch_scc1 L_poll{tag}")
        g.label(f"L_got{tag}")
        g("s_mov_b64 exec, -1")

    def ldswait(tag, off, thr, sleep, vz, vt):
        g(f"s_mov_b32 s{sSPIN}, 0")
        g.label(f"L_w{tag}")
        g(f"ds_read_b32 v{vt}, v{vz} offset:{off}")
        g(f"s_add_u32 s{sSPIN}, s{sSPIN}, 1")
        g("s_waitcnt lgkmcnt(0)")
        g(f"v_cmp_le_u32 vcc, {thr}, v{vt}")
        g(f"s_cbranch_vccnz L_g{tag}")
        g(f"s_sleep {sleep}")
        g(f"s_cmp_lt_u32 s{sSPIN}, {hex(spin_max*16)}")
        g(f"s_cbranch_scc1 L_w{tag}")
        g.label(f"L_g{tag}")

    def store_mode(tag, instr, smode):
        if fast:
            g(f"s_cmp_eq_u32 s{smode}, 1")
            g(f"s_cbranch_scc0 L_sl{tag}")
            g(instr)
            g(f"s_branch L_sd{tag}")
            g.label(f"L_sl{tag}")
        g(instr + " sc1")
        g.label(f"L_sd{tag}")

    g("s_cmp_ge_u32 s2, 256")
    g("s_cbranch_scc1 L_end")
    g.srd_load(SX, 0)
    g.srd_load(SWQ, 24)
    g.srd_load(SWS, 96)
    g.srd_load(SK, 8)
    g.srd_consts(SWS, W_SIZE)
    g.stamp(0)
    if pf:
        g("s_getpc_b64 s[44:45]")
        g.label("L_pc0")
        g("s_lshr_b32 s46, s2, 3")
        g("s_lshl_b32 s46, s46, 9")
        g("v_and_b32 v2, 3, v0")
        g("v_lshl_add_u32 v2, v2, 7, s46")
        g("v_min_u32 v2, L_end - L_pc0, v2")
        g("global_load_dword v64, v2, s[44:45]")
    g("v_lshrrev_b32 v1, 6, v0")
    g("v_and_b32 v0, 63, v0")
    g(f"s_lshr_b32 s{sB}, s2, 6")
    g(f"v_readfirstlane_b32 s{sWAVE}, v1")
    if remap:
        g(f"s_and_b32 s{sS}, s2, 7")
        g(f"s_bfe_u32 s{sH}, s2, 0x30003")
        g(f"s_lshl_b32 s2, s{sB}, 3")
        g(f"s_add_u32 s2, s2, s{sS}")
        g(f"s_lshl_b32 s2, s2, 3")
        g(f"s_add_u32 s2, s2, s{sH}")
    else:
        g(f"s_and_b32 s{sH}, s2, 7")
        g(f"s_bfe_u32 s{sS}, s2, 0x30003")
    g(f"s_mov_b32 s{sHI}, 0xffff0000")
    g(f"s_cmp_eq_u32 s{sWAVE}, 0")
    g("s_cbranch_scc1 L_helper")

    vK, vV, vSC, vH4, vMC, vZ0, vZ1 = 1, 2, 3, 4, 5, 6, 7
    vQ, vT, vO = 8, 16, 32
    SLOT = [64, 128, 192]
    sWGB, sSLOW, sTH = 52, 53, 54
    sTI = (33, 34, 35)
    g.srd_consts(SK, 0x80000)
    g(f"s_sub_u32 s{sW}, s{sWAVE}, 1")
    g(f"s_lshl_b32 s{sWGB}, s{sB}, 3")
    g(f"s_add_u32 s{sWGB}, s{sWGB}, s{sH}")
    g(f"s_lshl_b32 s{sWGB}, s{sWGB}, 3")
    g(f"s_add_u32 s{sWGB}, s{sWGB}, s{sS}")
    g(f"s_lshl_b32 s{sWGB}, s{sWGB}, 19")
    sROT = 39
    g(f"s_mov_b32 s{sROT}, 0")
    for (i, j) in pairs:
        g(f"s_bfe_u32 s{sT0}, s2, {hex(0x10000 + j)}")
        g(f"s_lshl_b32 s{sT0}, s{sT0}, {i}")
        g(f"s_xor_b32 s{sROT}, s{sROT}, s{sT0}")
    g(f"s_lshl_b32 s{sA}, s{sW}, 12")
    g(f"s_add_u32 s{sA}, s{sA}, s{sROT}")
    g(f"v_bfe_u32 v{vK}, v0, 1, 1")
    g(f"v_lshlrev_b32 v{vK}, 10, v{vK}")
    g(f"v_bfe_u32 v{vZ0}, v0, 2, 2")
    g(f"v_lshl_add_u32 v{vK}, v{vZ0}, 8, v{vK}")
    g(f"v_lshrrev_b32 v{vZ1}, 4, v0")
    g(f"v_lshl_add_u32 v{vK}, v{vZ1}, 5, v{vK}")
    g(f"v_and_b32 v{vZ0}, 1, v0")
    g(f"v_lshl_add_u32 v{vK}, v{vZ0}, 4, v{vK}")
    g("s_waitcnt lgkmcnt(0)")
    g(f"s_add_u32 s{SK}, s{SK}, s{sWGB}")
    g(f"s_addc_u32 s{SK+1}, s{SK+1}, 0")
    g("s_barrier")

    def issue(X, isk, paced=None, sp=None):
        if sp is None:
            sp = ks if isk else vs
        for u in range(4):
            so = sA
            for j in range(4):
                vo, rs, off = (vK, SK, (j & 1) * 128 + (j >> 1) * 2048) if isk else (vV, SV, j * 1024)
                d = X + 16 * u + 4 * j
                if j < sp[u]:
                    g(f"buffer_load_dwordx2 {vq(d,2)}, v{vo}, {srd(rs)}, s{so} offen offset:{off} {kvflags}")
                    g(f"buffer_load_dwordx2 {vq(d+2,2)}, v{vo}, {srd(rs)}, s{so} offen offset:{off+8} {kvflags}")
                else:
                    g(f"buffer_load_dwordx4 {vq(d)}, v{vo}, {srd(rs)}, s{so} offen offset:{off} {kvflags}")
                if paced is not None and (j + 1) % pgrp == 0:
                    g(f"s_waitcnt vmcnt({paced})")
            g(f"s_add_u32 s{sA}, s{sA}, 0x4000")
            g(f"s_and_b32 s{sA}, s{sA}, 0x7ffff")

    issue(SLOT[0], True, pace, ps)
    g.srd_load(SV, 16)
    g.srd_load(SWO, 32)
    g.srd_consts(SV, 0x80000)
    g.srd_consts(SWO, 4096 * 512 * 2)
    g(f"v_lshlrev_b32 v{vV}, 4, v0")
    g(f"s_mov_b32 s{sSELLO}, 0x05040100")
    g(f"s_mov_b32 s{sSELHI}, 0x07060302")
    g(f"s_mov_b32 s{sLOG2E}, {f32(LOG2E)}")
    g(f"s_mov_b32 s{sSCALE}, {f32(SCALE)}")
    g(f"s_mov_b32 s{sIT}, 0")
    g(f"s_mov_b32 s{sDR}, 0")
    for k in range(3):
        g(f"s_add_u32 s{sTI[k]}, s{sW}, {4*k}")
    g(f"s_mov_b32 s{sMASK}, 0x000f000f")
    g(f"s_mov_b32 s{sMASK+1}, 0x000f000f")
    g(f"v_and_b32 v{vH4}, 3, v0")
    g(f"v_lshlrev_b32 v{vT}, 8, v{vH4}")
    g(f"v_lshl_add_u32 v{vT}, v{vZ1}, 5, v{vT}")
    g(f"v_bfe_u32 v{vZ0}, v0, 2, 1")
    g(f"v_lshl_add_u32 v{vT}, v{vZ0}, 4, v{vT}")
    g(f"v_lshlrev_b32 v{vSC}, 6, v{vZ1}")
    g(f"v_lshl_add_u32 v{vSC}, v{vH4}, 4, v{vSC}")
    g(f"v_lshlrev_b32 v{vH4}, 2, v{vH4}")
    g(f"v_mov_b32 v{vZ0}, 0")
    g(f"v_mov_b32 v{vZ1}, 1")
    sD0 = 28
    g(f"s_lshl_b32 s{sD0}, s{sH}, 2")
    g(f"s_add_u32 s{sD0}, s{sD0}, s{sB}")
    g(f"s_lshl_b32 s{sD0}, s{sD0}, 6")
    g(f"s_add_u32 s{sD0}, s{sD0}, s{sW}")
    g(f"s_lshl_b32 s{sD0}, s{sD0}, 11")
    g(f"s_lshl_b32 s{sT0}, s{sS}, 7")
    g(f"s_add_u32 s{sD0}, s{sD0}, s{sT0}")
    if 'wo' in skip:
        g(f"s_mov_b32 s{sD0}, {hex(OOB)}")
    g(f"s_add_u32 s{sD0+1}, s{sD0}, {64*1024 - 2048}")
    sH1S, sH1G, sYS = 36, 37, 38
    g(f"s_lshl_b32 s{sT0}, s{sW}, 12")
    g(f"s_add_u32 m0, s{sT0}, {L_WO}")
    g(f"s_lshl_b32 s{sH1S}, s2, 2")
    g(f"s_add_u32 s{sH1S}, s{sH1S}, s{sW}")
    g(f"s_lshl_b32 s{sYS}, s{sH1S}, 8")
    g(f"s_add_u32 s{sYS}, s{sYS}, {hex(A_Y)}")
    g(f"s_lshl_b32 s{sH1S}, s{sH1S}, 9")
    g(f"s_add_u32 s{sH1S}, s{sH1S}, {hex(A_P)}")
    g(f"s_lshl_b32 s{sH1G}, s{sW}, 6")
    g(f"s_add_u32 s{sH1G}, s{sH1G}, s{sH}")
    g(f"s_lshl_b32 s{sH1G}, s{sH1G}, 2")
    g(f"s_add_u32 s{sH1G}, s{sH1G}, s{sB}")
    g(f"s_lshl_b32 s{sH1G}, s{sH1G}, 9")
    g(f"s_add_u32 s{sH1G}, s{sH1G}, {hex(A_P)}")
    issue(SLOT[1], True, pace, ps)
    issue(SLOT[2], True, pace3, ps)
    g.stamp(1)
    g(f"s_mov_b32 s{sSPIN}, 0")
    g.label("L_wq")
    g(f"ds_read_b64 {vq(vT+2,2)}, v{vZ0} offset:{L_TAG}")
    g(f"s_add_u32 s{sSPIN}, s{sSPIN}, 1")
    g("s_waitcnt lgkmcnt(0)")
    g(f"v_cmp_ne_u32 vcc, 0, v{vT+3}")
    g("s_cbranch_vccnz L_wq_ok")
    g("s_sleep 2")
    g(f"s_cmp_lt_u32 s{sSPIN}, {hex(spin_max*16)}")
    g("s_cbranch_scc1 L_wq")
    g.label("L_wq_ok")
    g(f"s_add_u32 s{SV}, s{SV}, s{sWGB}")
    g(f"s_addc_u32 s{SV+1}, s{SV+1}, 0")
    for j in range(2):
        g(f"ds_read_b128 {vq(vQ+4*j)}, v{vT} offset:{L_Q + 128*j}")
    g.stamp(2)
    g(f"v_readfirstlane_b32 s{sTAG}, v{vT+2}")
    g(f"v_readfirstlane_b32 s{sSLOW}, v{vT+3}")
    g("s_waitcnt lgkmcnt(0)")

    def take(k):
        g("s_mov_b64 exec, 1")
        g(f"ds_add_rtn_u32 v{vT}, v{vZ0}, v{vZ1} offset:{L_CNT}")
        g(f"ds_read_b32 v{vT+1}, v{vZ0} offset:{L_TH}")
        g("s_mov_b64 exec, -1")
        g("s_waitcnt lgkmcnt(0)")
        g(f"v_readfirstlane_b32 s{sTI[k]}, v{vT}")
        g(f"v_readfirstlane_b32 s{sTH}, v{vT+1}")
        g(f"s_bfe_u32 s{sA}, s{sTI[k]}, 0x30002")
        g(f"s_lshl_b32 s{sA}, s{sA}, 16")
        g(f"s_and_b32 s{sT1}, s{sTI[k]}, 3")
        g(f"s_lshl_b32 s{sT1}, s{sT1}, 12")
        g(f"s_add_u32 s{sA}, s{sA}, s{sT1}")
        g(f"s_add_u32 s{sA}, s{sA}, s{sROT}")
        g(f"s_and_b32 s{sA}, s{sA}, 0x7ffff")

    def ktile(k):
        X = SLOT[k]
        for G_ in range(8):
            if G_ % 2 == 0:
                g(f"s_waitcnt vmcnt({min(63, 8*nM + (3 - G_//2)*nK)})")
            for j in range(2):
                c = "0" if j == 0 else vq(vO + 4 * G_)
                g(f"v_mfma_f32_16x16x32_bf16 {vq(vO+4*G_)}, {vq(X+8*G_+4*j)}, {vq(vQ+4*j)}, {c}")
        for i in range(16):
            g(f"v_add_f32_dpp v{vT+i}, v{vO+2*i+1}, v{vO+2*i} row_shl:4 row_mask:0xf bank_mask:0xf bound_ctrl:0")
        for i in range(8):
            g(f"v_cvt_pk_bf16_f32 v{vO+i}, v{vT+2*i}, v{vT+2*i+1}")
        for i in range(8):
            g(f"v_lshlrev_b32 v{vT+2*i}, 16, v{vO+i}")
            g(f"v_and_b32 v{vT+2*i+1}, s{sHI}, v{vO+i}")
        for i in range(16):
            g(f"v_mul_f32 v{vT+i}, s{sSCALE}, v{vT+i}")
        for i in range(8):
            g(f"v_cvt_pk_bf16_f32 v{vO+8+i}, v{vT+2*i}, v{vT+2*i+1}")
        g(f"s_lshl_b32 s{sT0}, s{sTI[k]}, 9")
        g(f"v_add_u32 v{vO+16}, s{sT0}, v{vSC}")
        g(f"v_max3_f32 v{vO+17}, v{vT}, v{vT+1}, v{vT+2}")
        g(f"v_max3_f32 v{vO+18}, v{vT+3}, v{vT+4}, v{vT+5}")
        g(f"v_max3_f32 v{vO+17}, v{vO+17}, v{vT+6}, v{vT+7}")
        g(f"v_max3_f32 v{vO+18}, v{vO+18}, v{vT+8}, v{vT+9}")
        g(f"v_max3_f32 v{vO+17}, v{vO+17}, v{vT+10}, v{vT+11}")
        g(f"v_max3_f32 v{vO+18}, v{vO+18}, v{vT+12}, v{vT+13}")
        g(f"v_max3_f32 v{vO+17}, v{vO+17}, v{vT+14}, v{vT+15}")
        g(f"v_max_f32 v{vO+17}, v{vO+17}, v{vO+18}")
        g(f"s_mov_b64 exec, s[{sMASK}:{sMASK+1}]")
        g(f"ds_write_b128 v{vO+16}, {vq(vO+8)} offset:{L_SC}")
        g(f"ds_write_b128 v{vO+16}, {vq(vO+12)} offset:{L_SC+256}")
        g(f"ds_max_f32 v{vH4}, v{vO+17} offset:{L_MAX}")
        g(f"ds_add_u32 v{vZ0}, v{vZ1} offset:{L_KD}")

    def vtile(k):
        X = SLOT[k]
        P = vQ
        cnt = [0]
        def wait(n):
            g(f"s_waitcnt vmcnt({min(63, n + 8*nV)})")
            g(f"s_cbranch_scc0 L_w{k}{cnt[0]}")
            g(f"s_waitcnt vmcnt({n + 4})")
            g.label(f"L_w{k}{cnt[0]}")
            cnt[0] += 1
        g(f"s_lshl_b32 s{sT0}, s{sTI[k]}, 9")
        g(f"s_sub_u32 s{sT0}, s{sT0}, {32*512 - L_SC}")
        g(f"v_add_u32 v{vT}, s{sT0}, v{vSC}")
        g(f"ds_read_b128 {vq(P)}, v{vT}")
        g(f"ds_read_b128 {vq(P+4)}, v{vT} offset:256")
        g(f"s_cmp_eq_u32 s{sDR}, 2")
        g("s_waitcnt lgkmcnt(0)")
        for i in range(8):
            g(f"v_lshlrev_b32 v{vT+2*i}, 16, v{P+i}")
            g(f"v_and_b32 v{vT+2*i+1}, s{sHI}, v{P+i}")
        for i in range(16):
            g(f"v_fma_f32 v{vT+i}, v{vT+i}, s{sLOG2E}, -v{vMC}")
        for i in range(16):
            g(f"v_exp_f32 v{vT+i}, v{vT+i}")
        for i in range(8):
            g(f"v_cvt_pk_bf16_f32 v{P+i}, v{vT+2*i}, v{vT+2*i+1}")
        for hb in range(2):
            raw = [X + 32 * hb + 4 * t for t in range(8)]
            wait(2 * nV * (1 - hb))
            perms(g, raw, 0, vT)
            perms(g, raw, 1, vT + 4)
            for e in range(8):
                g(f"v_mfma_f32_16x16x32_bf16 {vq(vO+4*e)}, {vq(vT+4*(e%4))}, {vq(P+4*hb)}, {vq(vO+4*e)}")
                if e + 2 < 8:
                    perms(g, raw, e + 2, vT + 4 * ((e + 2) % 4))

    g.L.append(".p2align 3")
    for k in range(3):
        g.label(f"L_k{k}")
        g(f"s_cmp_ge_u32 s{sTI[k]}, 32")
        g(f"s_cbranch_scc1 L_tr{k}")
        ktile(k)
        take(k)
        g(f"s_cmp_ge_u32 s{sTI[k]}, 32")
        g(f"s_cbranch_scc1 L_kv{k}")
        g(f"s_cmp_ge_u32 s{sTI[k]}, s{sTH}")
        g(f"s_cbranch_scc1 L_kb{k}")
        issue(SLOT[k], True, lpace)
    g("s_branch L_k0")
    for k in range(3):
        g.label(f"L_kb{k}")
        if g.diag:
            g(f"s_add_u32 s{sIT}, s{sIT}, 1")
        issue(SLOT[k], True, lpace, bs)
        g(f"s_branch L_k{(k+1)%3}")
        g.label(f"L_kv{k}")
        g(f"s_cmp_ge_u32 s{sTI[k]}, s{sTH}")
        g(f"s_cbranch_scc1 L_kvb{k}")
        issue(SLOT[k], False, lpace)
        g(f"s_branch L_k{(k+1)%3}")
        g.label(f"L_kvb{k}")
        if g.diag:
            g(f"s_add_u32 s{sIT}, s{sIT}, 1")
        issue(SLOT[k], False, lpace, es)
        g(f"s_branch L_k{(k+1)%3}")
    for k in range(3):
        g.label(f"L_tr{k}")
        g(f"s_mov_b32 s{sT4}, {k}")
        if k < 2:
            g("s_branch L_trans")
    g.label("L_trans")
    g.stamp(7)
    for i in range(32):
        g(f"v_mov_b32 v{vO+i}, 0")
    ldswait("kd", L_KD, 512, 1, vZ0, vT)
    g(f"ds_read_b32 v{vMC}, v{vH4} offset:{L_MAX}")
    g.stamp(8)
    g("s_waitcnt lgkmcnt(0)")
    rne(g, vMC, vMC)
    g(f"v_mul_f32 v{vMC}, s{sLOG2E}, v{vMC}")
    g(f"s_cmp_eq_u32 s{sT4}, 1")
    g("s_cbranch_scc1 L_v1")
    g(f"s_cmp_eq_u32 s{sT4}, 2")
    g("s_cbranch_scc1 L_v2")
    g.L.append(".p2align 3")
    for k in range(3):
        g.label(f"L_v{k}")
        vtile(k)
        g(f"s_cmp_lg_u32 s{sDR}, 0")
        g(f"s_cbranch_scc1 L_dr{k}")
        take(k)
        g(f"s_cmp_ge_u32 s{sTI[k]}, s{sTH}")
        g(f"s_cbranch_scc1 L_ve{k}")
        issue(SLOT[k], False, lpace)
    g("s_branch L_v0")
    for k in range(3):
        g.label(f"L_ve{k}")
        g(f"s_cmp_ge_u32 s{sTI[k]}, 64")
        g(f"s_cbranch_scc1 L_dr1{k}")
        if g.diag:
            g(f"s_add_u32 s{sIT}, s{sIT}, 1")
        issue(SLOT[k], False, lpace, es)
        g(f"s_branch L_v{(k+1)%3}")

    vPW = vK
    for k in range(3):
        nxt = f"L_v{(k+1)%3}"
        g.label(f"L_dr{k}")
        g(f"s_cmp_eq_u32 s{sDR}, 2")
        g(f"s_cbranch_scc1 L_tail")
        g(f"s_mov_b32 s{sDR}, 2")
        g(f"s_branch {nxt}")
        g.label(f"L_dr1{k}")
        g(f"s_mov_b32 s{sT4}, {(k+1)%3}")
        if k < 2:
            g("s_branch L_drain")
    g.label("L_drain")
    va = vT
    g(f"v_lshrrev_b32 v{va}, 3, v0")
    g(f"v_lshlrev_b32 v{va}, 13, v{va}")
    g(f"v_and_b32 v{va+1}, 7, v0")
    g(f"v_lshl_add_u32 v{va}, v{va+1}, 4, v{va}")
    g(f"v_and_b32 v{va+1}, 16, v0")
    g(f"v_lshlrev_b32 v{va+1}, 1, v{va+1}")
    g(f"s_and_b32 s{sT0}, s{sW}, 1")
    g(f"s_lshl_b32 s{sT0}, s{sT0}, 6")
    g(f"v_bitop3_b32 v{va}, v{va}, v{va+1}, s{sT0} bitop3:0x96")
    for i in range(4):
        g(f"buffer_load_dwordx4 v{va}, {srd(SWO)}, s{sD0 + (i>>1)} offen offset:{1024*i} {wflags} lds")
    g(f"v_lshrrev_b32 v{vPW}, 4, v0")
    g(f"v_lshlrev_b32 v{vPW}, 4, v{vPW}")
    g(f"v_mul_u32_u24 v{va+1}, {HS//4}, v{vH4}")
    g(f"s_mul_i32 s{sT0}, s{sW}, {WSP}")
    g(f"v_add3_u32 v{vPW}, v{vPW}, v{va+1}, s{sT0}")
    g(f"s_mov_b32 s{sDR}, 1")
    g(f"s_waitcnt vmcnt({4*nV + 4})")
    g(f"s_cmp_eq_u32 s{sT4}, 1")
    g("s_cbranch_scc1 L_v1")
    g(f"s_cmp_eq_u32 s{sT4}, 2")
    g("s_cbranch_scc1 L_v2")
    g("s_branch L_v0")

    X = 64
    WT = 128
    g.label("L_tail")
    g.stamp(3)
    if notail:
        g("s_branch L_fin")
    RA, RF, vJ, vFF, vP1, vG, TM = 8, 9, 10, 11, 12, 13, 14
    TRA = (16, 17, 18, 19)
    g(f"s_lshl_b32 s{sT0}, s{sW}, 2")
    g(f"v_mov_b32 v{vJ}, s{sT0}")
    g(f"v_and_b32 v{RA}, 31, v0")
    g(f"s_mul_i32 s{sT1}, s{sW}, {HS}")
    g(f"v_lshl_add_u32 v{RA}, v{RA}, 4, s{sT1}")
    g(f"v_lshlrev_b32 v{RF}, 1, v{vJ}")
    g(f"s_mov_b64 exec, s[{sMASK}:{sMASK+1}]")
    for e in range(8):
        g(f"ds_write_b128 v{vPW}, {vq(vO+4*e)} offset:{L_PART + 64*e}")
    g("s_waitcnt vmcnt(0)")
    g(f"ds_write_b32 v{vJ}, v{vZ1} offset:{L_JN}")
    g("s_mov_b64 exec, -1")
    PR = X
    JN, FF_ = X + 16, X + 20
    def joinreads():
        g(f"ds_read_b128 {vq(JN)}, v{vZ0} offset:{L_JN}")
        g(f"ds_read_b64 {vq(FF_,2)}, v{RF} offset:{L_F}")
        for w in range(4):
            g(f"ds_read_b128 {vq(PR+4*w)}, v{RA} offset:{L_PART + WSP*w}")
    joinreads()
    g(f"v_mov_b32 v{vFF}, 0xff")
    g(f"v_lshrrev_b32 v{vP1}, 3, v0")
    g(f"v_lshlrev_b32 v{vP1}, 14, v{vP1}")
    g(f"v_and_b32 v{TM}, 7, v0")
    g(f"v_lshl_add_u32 v{vP1}, v{TM}, 4, v{vP1}")
    g(f"v_lshrrev_b32 v{vG}, 4, v0")
    g(f"v_bfe_u32 v{TRA[0]}, v0, 2, 2")
    g(f"v_lshlrev_b32 v{TRA[0]}, 7, v{TRA[0]}")
    g(f"v_lshl_add_u32 v{TRA[0]}, v{vH4}, 1, v{TRA[0]}")
    g(f"v_lshl_add_u32 v{TRA[0]}, v{vG}, 12, v{TRA[0]}")
    g(f"v_bfe_u32 v{TM}, v0, 3, 2")
    g(f"v_lshl_add_u32 v{TRA[0]}, v{TM}, 5, v{TRA[0]}")
    for j in range(1, 4):
        g(f"v_xor_b32 v{TRA[j]}, {32*j}, v{TRA[0]}")
    g(f"s_mov_b32 s{sMASK}, -1")
    g(f"s_mov_b32 s{sMASK+1}, 0")
    g(f"s_mov_b32 s{sSPIN}, 0")
    g.label("L_join")
    g("s_waitcnt lgkmcnt(0)" if g.diag else "s_waitcnt lgkmcnt(4)")
    g(f"v_min3_u32 v{TM}, v{JN}, v{JN+1}, v{JN+2}")
    g(f"v_min3_u32 v{TM}, v{TM}, v{JN+3}, v{FF_+1}")
    g(f"v_cmp_eq_u32 vcc, 0, v{TM}")
    g("s_waitcnt lgkmcnt(0)")
    g("s_cbranch_vccz L_joined")
    joinreads()
    g(f"s_add_u32 s{sSPIN}, s{sSPIN}, 1")
    g(f"s_cmp_lt_u32 s{sSPIN}, {hex(spin_max*16)}")
    g("s_cbranch_scc1 L_join")
    g("s_waitcnt lgkmcnt(0)")
    g.label("L_joined")
    g.stamp(4)
    for i in range(4):
        g(f"v_add_f32 v{PR+i}, v{PR+i}, v{PR+4+i}")
        g(f"v_add_f32 v{PR+8+i}, v{PR+8+i}, v{PR+12+i}")
    for i in range(4):
        g(f"v_add_f32 v{PR+i}, v{PR+i}, v{PR+8+i}")
    for i in range(4):
        g(f"v_mul_f32 v{PR+i}, v{FF_}, v{PR+i}")
    for i in range(4):
        g(f"v_bfi_b32 v{PR+i}, v{vFF}, s{sTAG}, v{PR+i}")
    g(f"s_mov_b64 exec, s[{sMASK}:{sMASK+1}]")
    store_mode("p", f"buffer_store_dwordx4 {vq(PR)}, v{vV}, {srd(SWS)}, s{sH1S} offen", sSLOW)
    g("s_mov_b64 exec, -1")
    D = X + 24
    C1 = X + 40
    def wofrag():
        for step in range(4):
            for j in range(4):
                for half in range(2):
                    g(f"ds_read_b64_tr_b16 {vq(WT+16*step+4*j+2*half,2)}, v{TRA[j]} offset:{L_WO + 1024*((step>>1) + 2*(step&1)) + 512*half}")
    g.stamp(9)
    poll("1", [f"buffer_load_dwordx4 {vq(D+4*i)}, v{vP1}, {srd(SWS)}, s{sH1G} offen offset:{128*i} sc1" for i in range(4)],
         [D + i for i in range(16)], C1, 0, wofrag)
    g.stamp(5)
    if sigearly:
        g(f"ds_add_u32 v{vZ0}, v{vZ1} offset:{L_KD}")
    for i in range(8):
        g(f"v_permlane32_swap_b32 v{D+i}, v{D+8+i}")
    for i in range(8):
        g(f"v_add_f32 v{D+i}, v{D+i}, v{D+8+i}")
    for i in range(4):
        g(f"v_permlane16_swap_b32 v{D+i}, v{D+4+i}")
    for i in range(4):
        g(f"v_add_f32 v{D+i}, v{D+i}, v{D+4+i}")
    for i in range(4):
        g(f"v_add_f32_dpp v{D+i}, v{D+i}, v{D+i} row_ror:8 row_mask:0xf bank_mask:0xf")
    B0 = X + 44
    g(f"v_cvt_pk_bf16_f32 v{B0}, v{D}, v{D+1}")
    g(f"v_cvt_pk_bf16_f32 v{B0+1}, v{D+2}, v{D+3}")
    g("s_waitcnt lgkmcnt(0)")
    def mv(c):
        for i in range(2):
            g(f"v_mov_b32_dpp v{B0+2*c+i}, v{B0+i} row_shl:{c} row_mask:0xf bank_mask:0xf bound_ctrl:0")
    mv(1)
    mv(2)
    for step in range(4):
        for j in range(4):
            c = "0" if step == 0 else vq(vO + 4 * j)
            g(f"v_mfma_f32_16x16x32_bf16 {vq(vO+4*j)}, {vq(B0+4*step)}, {vq(WT+16*step+4*j)}, {c}")
            if step * 4 + j < 5:
                mv(3 + step * 4 + j)
    if not sigearly:
        g(f"ds_add_u32 v{vZ0}, v{vZ1} offset:{L_KD}")
    else:
        g("s_nop 0")
    g("s_mov_b64 exec, 0xffff")
    g("s_nop 2")
    YO = 20
    for j in range(4):
        g(f"v_bfi_b32 v{YO+j}, v{vFF}, s{sTAG}, v{vO+4*j}")
    g(f"buffer_store_dwordx4 {vq(YO)}, v{vV}, {srd(SWS)}, s{sYS} offen sc1")
    g("s_mov_b64 exec, -1")
    g.stamp(6)
    g("s_branch L_fin")

    g.label("L_helper")
    g(f"v_mov_b32 v7, 0")
    g(f"v_lshlrev_b32 v8, 2, v0")
    g(f"ds_write_b32 v8, v7 offset:{L_TAG}")
    g(f"v_mov_b32 v9, 12")
    g(f"ds_write_b32 v7, v9 offset:{L_CNT}")
    g(f"v_mov_b32 v9, {eth}")
    g(f"ds_write_b32 v7, v9 offset:{L_TH}")
    g(f"v_and_b32 v8, 12, v8")
    g(f"v_mov_b32 v9, 0xff800000")
    g(f"ds_write_b32 v8, v9 offset:{L_MAX}")
    if bar0 == 0:
        g("s_waitcnt lgkmcnt(0)")
        g("s_barrier")
    g("s_setprio 3")
    g.srd_consts(SX, 4096)
    g.srd_consts(SWQ, 512 * 4096 * 2)
    hT = 20
    hACC = 32
    R = 48
    XR = 64
    XF = 80
    WF = 128
    vX, vTAG, vTR, vFFh, vH4h = 2, 6, 9, 11, 8
    sU, sC1 = 52, 54
    g(f"s_and_b32 s{sU}, s{sS}, 1")
    g(f"v_and_b32 v3, 3, v0")
    g(f"v_lshlrev_b32 v{vX}, 10, v3")
    g(f"v_bfe_u32 v4, v0, 2, 2")
    g(f"s_lshl_b32 s{sT0}, s{sU}, 1")
    g(f"v_xor_b32 v5, s{sT0}, v4")
    g(f"v_lshl_add_u32 v{vX}, v5, 6, v{vX}")
    g(f"v_lshrrev_b32 v5, 4, v0")
    g(f"v_lshl_add_u32 v{vX}, v5, 4, v{vX}")
    SXO = (56, 57, 58, 59)
    for j in range(4):
        g(f"s_xor_b32 s{SXO[j]}, s{sB}, {j}")
        g(f"s_lshl_b32 s{SXO[j]}, s{SXO[j]}, 8")
    g(f"v_lshrrev_b32 v10, 3, v0")
    g(f"v_and_b32 v11, 7, v0")
    g(f"v_lshlrev_b32 v11, 4, v11")
    VQ, V1, V2 = 112, 116, 120
    g(f"v_lshl_add_u32 v{VQ}, v10, 13, v11")
    for i in range(1, 4):
        g(f"v_add_u32 v{VQ+i}, {hex(i*(8*8192 - 1024))}, v{VQ}")
    SQO = (sA, sBo, sIT, sT0)
    g(f"s_lshl_b32 s{sT1}, s{sH}, 3")
    g(f"s_add_u32 s{sT1}, s{sT1}, s{sS}")
    g(f"s_lshl_b32 s{sT1}, s{sT1}, 7")
    g(f"s_lshl_b32 s{sT2}, s{sB}, 20")
    g(f"s_add_u32 s{sT1}, s{sT1}, s{sT2}")
    if 'wq' in skip:
        g(f"s_mov_b32 s{sT1}, {hex(OOB)}")
    g(f"s_lshl_b32 s{sT2}, s{sU}, 19")
    g(f"s_add_u32 s{SQO[0]}, s{sT1}, s{sT2}")
    g(f"s_add_u32 s{SQO[1]}, s{SQO[0]}, {hex(32*8192)}")
    g(f"s_xor_b32 s{sT2}, s{sT2}, {hex(64*8192)}")
    g(f"s_add_u32 s{SQO[2]}, s{sT1}, s{sT2}")
    g(f"s_add_u32 s{SQO[3]}, s{SQO[2]}, {hex(32*8192)}")
    g(f"s_mov_b32 s{sSPIN}, {hex(W_EP)}")
    g(f"s_mov_b32 m0, {L_WQ}")
    g("s_waitcnt lgkmcnt(0)")
    for j in range(4):
        g(f"buffer_load_dwordx4 {vq(XR+4*j)}, v{vX}, {srd(SX)}, s{SXO[j]} offen")
    g(f"buffer_load_dword v{vTAG}, v7, {srd(SWS)}, s{sSPIN} offen sc1")
    for n, so in enumerate(SQO):
        for i in range(4):
            g(f"buffer_load_dwordx4 v{VQ+i}, {srd(SWQ)}, s{so} offen offset:{1024*i} {wflags} lds")
        if n + 1 == bar0:
            g("s_barrier")
        if n < 3:
            g(f"s_add_u32 m0, m0, 4096")
            g("s_nop 0")
    for (b_, off, nb) in ((SB1, 56, 1792 * 2), (SB2, 72, 1024), (SW1, 48, 512 * 1792 * 2), (SW2, 64, 1792 * 512 * 2), (SOUT, 80, 4096)):
        g.srd_load(b_, off)
        g.srd_consts(b_, nb)
    g(f"s_lshr_b32 s{sC1}, s{sS}, 1")
    g(f"s_lshl_b32 s{sC1}, s{sC1}, 3")
    g(f"s_add_u32 s{sC1}, s{sC1}, s{sH}")
    vQS = 10
    g(f"v_lshlrev_b32 v{vQS}, 8, v3")
    g(f"v_lshl_add_u32 v{vQS}, v4, 6, v{vQS}")
    g(f"v_lshl_add_u32 v{vQS}, v5, 4, v{vQS}")
    sOWN, sOWNH, sOWNZ = sA, sBo, sIT
    g(f"s_lshl_b32 s{sOWN}, s2, 10")
    g(f"s_add_u32 s{sOWNH}, s{sOWN}, {hex(A_H)}")
    g(f"s_add_u32 s{sOWNZ}, s{sOWN}, {hex(A_Z)}")
    g(f"v_lshlrev_b32 v{vTR}, 10, v5")
    g(f"v_lshl_add_u32 v{vTR}, v4, 7, v{vTR}")
    g(f"v_lshl_add_u32 v{vTR}, v3, 3, v{vTR}")
    g(f"v_mov_b32 v{vFFh}, 0xff")
    SM1, SM2, SM3 = 12, 14, 68
    for (sm, c) in ((SM1, 1), (SM2, 2), (SM3, 3)):
        g(f"s_mov_b32 s{sm}, {hex(0x000f000f << (4*c))}")
        g(f"s_mov_b32 s{sm+1}, {hex(0x000f000f << (4*c))}")
    def red4(v, t):
        for r in (4, 8):
            g("s_nop 1")
            g(f"v_add_f32_dpp v{v}, v{v}, v{v} row_ror:{r} row_mask:0xf bank_mask:0xf")
        for sw in ("v_permlane16_swap_b32", "v_permlane32_swap_b32"):
            g(f"v_mov_b32 v{t}, v{v}")
            g("s_nop 1")
            g(f"{sw} v{v}, v{t}")
            g(f"v_add_f32 v{v}, v{v}, v{t}")
    NY = 16
    g(f"s_waitcnt vmcnt({NY + 1})")
    for i in range(16):
        g(f"v_lshlrev_b32 v{XF+2*i}, 16, v{XR+i}")
        g(f"v_and_b32 v{XF+2*i+1}, s{sHI}, v{XR+i}")
    g(f"v_pk_add_f32 {vq(hT,2)}, {vq(XF,2)}, {vq(XF+2,2)}")
    g(f"v_pk_add_f32 {vq(hT+2,2)}, {vq(XF+4,2)}, {vq(XF+6,2)}")
    for i in range(4, 16):
        d = hT + 2 * (i & 1)
        g(f"v_pk_add_f32 {vq(d,2)}, {vq(d,2)}, {vq(XF+2*i,2)}")
    g(f"v_pk_add_f32 {vq(hT,2)}, {vq(hT,2)}, {vq(hT+2,2)}")
    g(f"v_add_f32 v{hT}, v{hT}, v{hT+1}")
    red4(hT, hT + 1)
    g(f"v_mul_f32 v{hT}, {f32(-1.0/512)}, v{hT}")
    g(f"v_mov_b32 v{hT+1}, v{hT}")
    for i in range(16):
        t = hT + 6 + 2 * (i & 1)
        d = hT + 2 + 2 * (i & 1)
        g(f"v_pk_add_f32 {vq(t,2)}, {vq(XF+2*i,2)}, {vq(hT,2)}")
        if i < 2:
            g(f"v_pk_mul_f32 {vq(d,2)}, {vq(t,2)}, {vq(t,2)}")
        else:
            g(f"v_pk_fma_f32 {vq(d,2)}, {vq(t,2)}, {vq(t,2)}, {vq(d,2)}")
    g(f"v_pk_add_f32 {vq(hT+2,2)}, {vq(hT+2,2)}, {vq(hT+4,2)}")
    g(f"v_add_f32 v{hT+2}, v{hT+2}, v{hT+3}")
    rne(g, hT, hT)
    red4(hT + 2, hT + 3)
    g(f"v_mul_f32 v{hT+2}, {f32(1.0/512)}, v{hT+2}")
    rne(g, hT + 2, hT + 2)
    g(f"v_add_f32 v{hT+2}, {f32(1e-5)}, v{hT+2}")
    rne(g, hT + 2, hT + 2)
    g(f"v_sqrt_f32 v{hT+2}, v{hT+2}")
    for i in range(8):
        g(f"v_add_f32 v{XF+i}, v{XF+i}, v{hT}")
    rne(g, hT + 2, hT + 2)
    g(f"v_rcp_f32 v{hT+4}, v{hT+2}")
    def round8(F, T):
        for i in range(4):
            g(f"v_cvt_pk_bf16_f32 v{T+i}, v{F+2*i}, v{F+2*i+1}")
        for i in range(4):
            g(f"v_lshlrev_b32 v{F+2*i}, 16, v{T+i}")
            g(f"v_and_b32 v{F+2*i+1}, s{sHI}, v{T+i}")
    round8(XF, R)
    for i in range(8):
        g(f"v_mul_f32 v{XF+8+i}, v{XF+i}, v{hT+4}")
    for i in range(8):
        g(f"v_fma_f32 v{XF+i}, -v{XF+8+i}, v{hT+2}, v{XF+i}")
    for i in range(8):
        g(f"v_fma_f32 v{XF+i}, v{XF+i}, v{hT+4}, v{XF+8+i}")
    for i in range(4):
        g(f"v_cvt_pk_bf16_f32 v{R+i}, v{XF+2*i}, v{XF+2*i+1}")
    g.stamp(1)
    g(f"s_waitcnt vmcnt({NY})")
    g(f"v_add_u32 v{vTAG}, 1, v{vTAG}")
    for t in range(1, 4):
        for i in range(4):
            g(f"v_mov_b32_dpp v{R+4*t+i}, v{R+i} row_ror:{4*t} row_mask:0xf bank_mask:0xf")
    g(f"v_readfirstlane_b32 s{sTAG}, v{vTAG}")
    sTAGQ, sRP = 70, 71
    g(f"s_getreg_b32 s{sTAGQ}, hwreg(HW_REG_XCC_ID)")
    g(f"s_and_b32 s{sTAGQ}, s{sTAGQ}, 7")
    g(f"s_lshl_b32 s{sTAGQ}, s{sTAGQ}, 5")
    g(f"s_and_b32 s{sRP}, s{sTAG}, 31")
    g(f"s_or_b32 s{sTAGQ}, s{sTAGQ}, s{sRP}")

    def gemm1(base, nstep, vm, off, tg):
        for s_ in range(nstep):
            g(f"s_waitcnt vmcnt({vm - 4*(s_+1)})")
            for c in range(4):
                for half in range(2):
                    g(f"ds_read_b64_tr_b16 {vq(WF+16*s_+4*c+2*half,2)}, v{vTR} offset:{base + 4096*s_ + 512*half + 32*c}")
            g("s_waitcnt lgkmcnt(0)")
            for c in range(4):
                cc = "0" if s_ == 0 else vq(hACC + 4 * c)
                g(f"v_mfma_f32_16x16x32_bf16 {vq(hACC+4*c)}, {vq(WF+16*s_+4*c)}, {vq(R+4*((c-s_)&3))}, {cc}")
        g("s_nop 5")
        for (sm, c) in ((SM1, 1), (SM2, 2), (SM3, 3)):
            for r in range(4):
                g(f"v_cndmask_b32 v{hACC+r}, v{hACC+r}, v{hACC+4*c+r}, s[{sm}:{sm+1}]")
        for r in range(4):
            g(f"v_bfi_b32 v{hT+off+r}, v{vFFh}, s{tg}, v{hACC+r}")

    gemm1(L_WQ, 4, 16, 0, sTAGQ)
    g(f"buffer_store_dwordx4 {vq(hT)}, v{vQS}, {srd(SWS)}, s{sOWN} offen {'' if fast else 'sc1'}")
    g.stamp(2)
    g(f"v_mov_b32 v12, s{sTAG}")
    g(f"ds_write_b32 v7, v12 offset:{L_TAG}")
    g(f"v_lshrrev_b32 v14, 3, v0")
    g(f"v_lshlrev_b32 v14, 13, v14")
    g(f"v_and_b32 v13, 7, v0")
    g(f"v_lshl_add_u32 v14, v13, 5, v14")
    g(f"s_lshl_b32 s{SXO[0]}, s{sH}, 10")
    g(f"s_lshl_b32 s{sT0}, s{sB}, 8")
    g(f"s_add_u32 s{SXO[0]}, s{SXO[0]}, s{sT0}")
    for j in range(1, 4):
        g(f"s_add_u32 s{SXO[j]}, s{SXO[0]}, {hex(j << 16)}")
    g(f"v_lshlrev_b32 v13, 4, v0")
    if qwait:
        g(f"s_sleep {qwait}")
    QG = 64
    def republish():
        g(f"buffer_store_dwordx4 {vq(hT)}, v{vQS}, {srd(SWS)}, s{sOWN} offen sc1")
    g(f"s_mov_b32 s{sSPIN}, 0")
    g.label("L_pollq")
    for j in range(4):
        for i in range(2):
            g(f"buffer_load_dwordx4 {vq(QG+8*j+4*i)}, v14, {srd(SWS)}, s{SXO[j]} offen offset:{16*i} sc1")
    g("s_waitcnt vmcnt(0)")
    tagcheck(g, [QG + i for i in range(32)], 30, 31, sTAGQ, 0x1f)
    g("s_cbranch_vccz L_gotq")
    g(f"s_add_u32 s{sSPIN}, s{sSPIN}, 1")
    g(f"s_cmp_lg_u32 s{sSPIN}, {repub}")
    g("s_cbranch_scc1 L_norp")
    g("s_mov_b64 exec, -1")
    republish()
    g.label("L_norp")
    g("s_mov_b64 exec, vcc")
    g(f"s_cmp_lt_u32 s{sSPIN}, {hex(spin_max)}")
    g("s_cbranch_scc1 L_pollq")
    g.label("L_gotq")
    g("s_mov_b64 exec, -1")
    g(f"v_and_b32 v30, 0xe0, v30")
    g(f"v_cmp_ne_u32 vcc, 0, v30")
    g(f"v_mov_b32 v31, 1")
    g("s_cbranch_vccz L_same")
    g(f"v_mov_b32 v31, 2")
    republish()
    g.label("L_same")
    g.stamp(4)
    def sum4():
        for i in range(4):
            g(f"v_pk_add_f32 {vq(QG+2*i,2)}, {vq(QG+2*i,2)}, {vq(QG+8+2*i,2)}")
            g(f"v_pk_add_f32 {vq(QG+16+2*i,2)}, {vq(QG+16+2*i,2)}, {vq(QG+24+2*i,2)}")
        for i in range(4):
            g(f"v_pk_add_f32 {vq(QG+2*i,2)}, {vq(QG+2*i,2)}, {vq(QG+16+2*i,2)}")
    sum4()
    for i in range(4):
        g(f"v_cvt_pk_bf16_f32 v{hACC+i}, v{QG+2*i}, v{QG+2*i+1}")
    g(f"ds_write_b128 v13, {vq(hACC)} offset:{L_Q}")
    g(f"ds_write_b32 v7, v31 offset:{L_TAG+4}")
    if diag and probe is None:
        g(f"s_mov_b32 s{sSTAMP+6}, s{sSPIN}")
    g.stamp(5)
    g("s_setprio 0")
    sSLOWH, sOO = 55, 53
    g(f"v_readfirstlane_b32 s{sSLOWH}, v31")
    g(f"v_and_b32 v14, 1, v4")
    g(f"v_lshlrev_b32 v14, 6, v14")
    g(f"v_lshl_add_u32 v14, v5, 4, v14")
    g(f"s_lshl_b32 s8, s{sC1}, 7")
    g(f"v_and_b32 v15, 1, v0")
    g(f"v_lshlrev_b32 v15, 1, v15")
    g(f"v_lshl_add_u32 v15, v5, 5, v15")
    g(f"s_lshl_b32 s9, s{sS}, 7")
    g(f"s_lshl_b32 s{sT3}, s{sH}, 2")
    g(f"s_add_u32 s9, s9, s{sT3}")
    g(f"s_lshl_b32 s{sOO}, s{sB}, 10")
    g(f"s_add_u32 s{sOO}, s{sOO}, s9")
    g(f"v_lshrrev_b32 v12, 1, v4")
    g(f"v_lshlrev_b32 v12, 17, v12")
    g(f"v_lshl_add_u32 v12, v3, 8, v12")
    g(f"v_lshl_add_u32 v12, v14, 1, v12")
    g(f"s_and_b32 s{SXO[0]}, s2, 0x37")
    g(f"s_lshl_b32 s{SXO[0]}, s{SXO[0]}, 10")
    g(f"s_add_u32 s{SXO[0]}, s{SXO[0]}, {hex(A_H)}")
    g(f"s_add_u32 s{SXO[1]}, s{SXO[0]}, {hex(8 << 10)}")
    g(f"s_add_u32 s{SXO[2]}, s{SXO[0]}, {hex(64 << 10)}")
    g(f"s_add_u32 s{SXO[3]}, s{SXO[0]}, {hex(72 << 10)}")
    g(f"v_lshrrev_b32 v30, 3, v0")
    g(f"v_and_b32 v1, 7, v0")
    g(f"v_lshlrev_b32 v1, 4, v1")
    g(f"v_mul_u32_u24 v{V1}, 3584, v30")
    g(f"v_add_u32 v{V1}, v{V1}, v1")
    g(f"v_lshl_add_u32 v{V2}, v30, 10, v1")
    for (V, rs) in ((V1, 3584), (V2, 1024)):
        for i in range(1, 4):
            g(f"v_add_u32 v{V+i}, {hex(i*(8*rs - 1024))}, v{V}")
    g(f"v_lshlrev_b32 v1, 10, v30")
    g(f"v_lshl_add_u32 v1, v3, 4, v1")
    g(f"s_lshl_b32 s{sT4}, s{sB}, 1")
    g(f"s_add_u32 s{sT4}, s{sT4}, s{sU}")
    g(f"s_mul_i32 s{sT1}, s{sT4}, {64*3584}")
    g(f"s_add_u32 s{sT1}, s{sT1}, s8")
    g(f"s_lshl_b32 s{sT3}, s{sC1}, 16")
    g(f"s_lshl_b32 s{sT4}, s{sT4}, 7")
    g(f"s_add_u32 s{sT3}, s{sT3}, s{sT4}")
    g(f"s_add_u32 s{sT2}, s{sT1}, {32*3584}")
    g(f"s_add_u32 s{sT4}, s{sT3}, {32*1024}")
    g(f"s_mov_b32 m0, {L_W1}")
    g(f"buffer_load_ushort v28, v15, {srd(SX)}, s{sOO} offen")
    g(f"buffer_load_ushort v29, v15, {srd(SB2)}, s9 offen")
    g(f"s_cmp_ge_u32 s{sC1}, 28")
    g("s_cbranch_scc1 L_noffn1")
    g(f"buffer_load_dwordx4 {vq(16)}, v14, {srd(SB1)}, s8 offen")
    for so in (sT1, sT2):
        for i in range(4):
            g(f"buffer_load_dwordx4 v{V1+i}, {srd(SW1)}, s{so} offen offset:{1024*i} {wflags} lds")
        g(f"s_add_u32 m0, m0, 4096")
        g("s_nop 0")
    gemm1(L_W1, 2, 8, 4, sTAG)
    store_mode("h", f"buffer_store_dwordx4 {vq(hT+4)}, v{vQS}, {srd(SWS)}, s{sOWNH} offen", sSLOWH)
    g.label("L_noffn1")
    if ctl is not None:
        c0, dc, c1_, rk = ctl
        g(f"s_cmp_eq_u32 s{sSLOWH}, 1")
        g("s_cbranch_scc0 L_noctl")
        g(f"s_lshl_b32 s{sT1}, s{sH}, 7")
        g(f"s_add_u32 s{sT1}, s{sT1}, {hex(A_C)}")
        g(f"s_lshr_b32 s{sT2}, s2, 3")
        g(f"s_lshl_b32 s{sT2}, s{sT2}, 2")
        g(f"s_add_u32 s{sT2}, s{sT2}, s{sT1}")
        g(f"v_and_b32 v32, 31, v0")
        g(f"v_lshlrev_b32 v32, 2, v32")
        g(f"s_mov_b32 s10, {c0}")
        sGR, sDB = 20, 22
        g(f"s_mov_b32 s{sGR}, 16")
        if gsh is not None:
            g(f"s_load_dwordx2 s[{sDB}:{sDB+1}], s[0:1], 88")
        g(f"s_and_b32 s11, s{sTAG}, 0xff")
        g(f"v_mov_b32 v37, 16")
        g.label("L_ctl")
        ldswait("ctl", L_CNT, "s10", 4, 7, 30)
        if gsh is not None:
            g(f"s_cmp_lg_u32 s{sS}, 0")
            g("s_cbranch_scc1 L_ctl1")
            g(f"s_mov_b32 s{sGR+1}, 1")
            g(f"s_lshl_b32 s{sT0}, s10, 2")
            g(f"s_atomic_add s{sGR+1}, s[{sDB}:{sDB+1}], s{sT0} glc")
            g.label("L_ctl1")
        g(f"s_lshl_b32 s{sMASK2}, s10, 24")
        g(f"s_lshl_b32 s{sT0}, s{sGR}, 8")
        g(f"s_or_b32 s{sT0}, s{sT0}, s11")
        g(f"s_or_b32 s{sT0}, s{sT0}, s{sMASK2}")
        g(f"v_mov_b32 v33, s{sT0}")
        g(f"v_mov_b32 v36, s{sMASK2}")
        g(f"buffer_load_dword v34, v32, {srd(SWS)}, s{sT1} offen sc1")
        g(f"buffer_store_dword v33, v7, {srd(SWS)}, s{sT2} offen")
        g("s_waitcnt vmcnt(1)")
        g(f"v_and_b32 v35, 0x00ffe0ff, v34")
        g(f"v_cmp_eq_u32 vcc, s11, v35")
        g(f"v_cmp_le_u32 s[{sMASK2}:{sMASK2+1}], v36, v34")
        g(f"v_bfe_u32 v35, v34, 8, 5")
        g(f"s_and_b32 s{sT0}, vcc_lo, s{sMASK2}")
        g(f"v_cndmask_b32 v35, v37, v35, vcc")
        g(f"s_bcnt1_i32_b32 s{sT0}, s{sT0}")
        if gsh is not None:
            g(f"v_readlane_b32 s{sMASK2}, v35, 0")
            g(f"v_readlane_b32 s{sMASK2+1}, v35, 8")
            g(f"s_add_u32 s{sSPIN}, s{sMASK2}, s{sMASK2+1}")
            g(f"v_readlane_b32 s{sMASK2}, v35, 16")
            g(f"v_readlane_b32 s{sMASK2+1}, v35, 24")
            g(f"s_add_u32 s{sSPIN}, s{sSPIN}, s{sMASK2}")
            g(f"s_add_u32 s{sSPIN}, s{sSPIN}, s{sMASK2+1}")
            g(f"s_lshr_b32 s{sSPIN}, s{sSPIN}, {gsh}")
            g(f"s_add_u32 s{sT0}, s{sT0}, s{sSPIN}")
        g(f"s_cmp_ge_u32 s{sT0}, {rk + (62 >> gsh if gsh is not None else 0)}")
        g(f"s_cselect_b32 s{sT0}, 0, {eth}")
        g(f"v_mov_b32 v35, s{sT0}")
        g(f"ds_write_b32 v7, v35 offset:{L_TH}")
        if gsh is not None:
            g(f"s_cmp_lg_u32 s{sS}, 0")
            g("s_cbranch_scc1 L_ctl2")
            g("s_waitcnt lgkmcnt(0)")
            g(f"s_min_u32 s{sGR}, s{sGR+1}, 31")
            g(f"s_lshl_b32 s{sT0}, s{sGR}, 8")
            g(f"s_or_b32 s{sT0}, s{sT0}, s11")
            g(f"v_or_b32 v33, s{sT0}, v36")
            g(f"buffer_store_dword v33, v7, {srd(SWS)}, s{sT2} offen")
            g.label("L_ctl2")
        g(f"s_add_u32 s10, s10, {dc}")
        g(f"s_cmp_le_u32 s10, {c1_}")
        g("s_cbranch_scc1 L_ctl")
        g.label("L_noctl")
    ldswait("kdh", L_KD, 512, 8, 7, 30)
    MX, MC, LS = 32, 33, 34
    g(f"ds_read_b32 v{MX}, v{vH4h} offset:{L_MAX}")
    SCR = 128
    for i in range(16):
        g(f"ds_read_b128 {vq(SCR+4*i)}, v13 offset:{L_SC + 1024*i}")
    g(f"s_mov_b32 s10, {f32(LOG2E)}")
    g("s_waitcnt lgkmcnt(0)")
    rne(g, MX, MX)
    g(f"v_mul_f32 v{MC}, s10, v{MX}")
    for i in range(4):
        g(f"v_mov_b32 v{LS+i}, 0")
    g(f"s_mov_b32 s11, 0")
    EX = 64
    for blk in range(4):
        for i in range(16):
            g(f"v_lshlrev_b32 v{EX+2*i}, 16, v{SCR+16*blk+i}")
            g(f"v_and_b32 v{EX+2*i+1}, s{sHI}, v{SCR+16*blk+i}")
        for i in range(32):
            g(f"v_fma_f32 v{EX+i}, v{EX+i}, s10, -v{MC}")
        for i in range(32):
            g(f"v_exp_f32 v{EX+i}, v{EX+i}")
        for i in range(32):
            g(f"v_add_f32 v{LS+(i&3)}, v{LS+(i&3)}, v{EX+i}")
    g(f"v_add_f32 v{LS}, v{LS}, v{LS+1}")
    g(f"v_add_f32 v{LS+2}, v{LS+2}, v{LS+3}")
    g(f"v_add_f32 v{LS}, v{LS}, v{LS+2}")
    red4(LS, LS + 1)
    for i in range(4):
        g(f"v_bfi_b32 v{40+i}, v{vFFh}, s{sTAG}, v{MX if i % 2 == 0 else LS}")
    g(f"s_lshl_b32 s{sT0}, s2, 7")
    g(f"s_add_u32 s{sT0}, s{sT0}, {hex(A_S)}")
    g("s_mov_b64 exec, 0xff")
    store_mode("s", f"buffer_store_dwordx4 {vq(40)}, v13, {srd(SWS)}, s{sT0} offen", sSLOWH)
    g("s_mov_b64 exec, -1")
    g(f"s_and_b32 s{sT0}, s2, 0xc7")
    g(f"s_lshl_b32 s{sT0}, s{sT0}, 7")
    g(f"s_add_u32 s{sT0}, s{sT0}, {hex(A_S)}")
    g("s_sleep 32")
    ST = 44
    poll("s", [f"buffer_load_dwordx2 {vq(ST,2)}, v1, {srd(SWS)}, s{sT0} offen sc1"], [ST, ST + 1, ST], 30, 32)
    C1h, C2h, C3h = 46, 47, 36
    g(f"v_and_b32 v{ST}, s{sHI}, v{ST}")
    g("s_nop 1")
    g(f"v_max_f32_dpp v{C1h}, v{ST}, v{ST} row_ror:8 row_mask:0xf bank_mask:0xf")
    for sw in ("v_permlane16_swap_b32", "v_permlane32_swap_b32"):
        g(f"v_mov_b32 v{C3h}, v{C1h}")
        g("s_nop 1")
        g(f"{sw} v{C1h}, v{C3h}")
        g(f"v_max_f32 v{C1h}, v{C1h}, v{C3h}")
    g(f"v_sub_f32 v{C2h}, v{ST}, v{C1h}")
    g(f"v_sub_f32 v{MX}, v{MX}, v{C1h}")
    g(f"v_mul_f32 v{C2h}, s10, v{C2h}")
    g(f"v_mul_f32 v{MX}, s10, v{MX}")
    g(f"v_exp_f32 v{C2h}, v{C2h}")
    g(f"v_exp_f32 v{MX}, v{MX}")
    g(f"v_mul_f32 v{C2h}, v{C2h}, v{ST+1}")
    g("s_nop 1")
    g(f"v_add_f32_dpp v{C2h}, v{C2h}, v{C2h} row_ror:8 row_mask:0xf bank_mask:0xf")
    for sw in ("v_permlane16_swap_b32", "v_permlane32_swap_b32"):
        g(f"v_mov_b32 v{C3h}, v{C2h}")
        g("s_nop 1")
        g(f"{sw} v{C2h}, v{C3h}")
        g(f"v_add_f32 v{C2h}, v{C2h}, v{C3h}")
    g(f"v_rcp_f32 v{C2h}, v{C2h}")
    g(f"v_mov_b32 v{MX+1}, 1")
    g(f"v_lshlrev_b32 v30, 1, v{vH4h}")
    g(f"v_mul_f32 v{MX}, v{MX}, v{C2h}")
    g(f"ds_write_b64 v30, {vq(MX,2)} offset:{L_F}")
    g.stamp(1)
    g(f"s_cmp_ge_u32 s{sC1}, 28")
    g("s_cbranch_scc1 L_noffn")
    ldswait("trig", L_CNT, 64 + trig, 4, 7, 30)
    g.stamp(10)
    for n, so in enumerate((sT3, sT4)):
        for i in range(4):
            g(f"buffer_load_dwordx4 v{V2+i}, {srd(SW2)}, s{so} offen offset:{1024*i} {wflags} lds")
        if n < 1:
            g(f"s_add_u32 m0, m0, 4096")
            g("s_nop 0")
    poll("h", [f"buffer_load_dwordx4 {vq(QG+8*j+4*i)}, v12, {srd(SWS)}, s{SXO[j]} offen offset:{16*i} sc1"
               for j in range(4) for i in range(2)], [QG + i for i in range(32)], 30, 2)
    for s_ in range(2):
        for j in range(4):
            for half in range(2):
                g(f"ds_read_b64_tr_b16 {vq(WF+16*s_+4*j+2*half,2)}, v{vTR} offset:{L_W2 + 4096*s_ + 512*half + 32*j}")
    sum4()
    g("s_nop 1")
    for i in range(8):
        g(f"v_add_f32_dpp v{QG+i}, v{QG+i}, v{QG+i} row_ror:8 row_mask:0xf bank_mask:0xf")
    round8(QG, hT)
    for i in range(4):
        g(f"v_lshlrev_b32 v{hT+4}, 16, v{16+i}")
        g(f"v_and_b32 v{hT+5}, s{sHI}, v{16+i}")
        g(f"v_add_f32 v{QG+2*i}, v{QG+2*i}, v{hT+4}")
        g(f"v_add_f32 v{QG+2*i+1}, v{QG+2*i+1}, v{hT+5}")
    round8(QG, hT)
    for i in range(8):
        g(f"v_max_f32 v{QG+i}, 0, v{QG+i}")
    for i in range(8):
        g(f"v_mul_f32 v{QG+i}, v{QG+i}, v{QG+i}")
    for i in range(4):
        g(f"v_cvt_pk_bf16_f32 v{R+i}, v{QG+2*i}, v{QG+2*i+1}")
    g("s_nop 0")
    for i in range(4):
        g(f"v_mov_b32_dpp v{R+4+i}, v{R+i} row_ror:4 row_mask:0xf bank_mask:0xf")
    g.stamp(6)
    g("s_waitcnt lgkmcnt(0)")
    g("s_nop 0")
    for s_ in range(2):
        for j in range(4):
            cc = "0" if s_ == 0 else vq(hACC + 4 * j)
            g(f"v_mfma_f32_16x16x32_bf16 {vq(hACC+4*j)}, {vq(R+4*s_)}, {vq(WF+16*s_+4*j)}, {cc}")
    g("s_nop 7")
    for b_ in range(4):
        for j in range(4):
            g(f"v_bfi_b32 v{QG+4*b_+j}, v{vFFh}, s{sTAG}, v{hACC+4*j+b_}")
    g("s_mov_b64 exec, 0xffff")
    for b_ in range(4):
        g(f"buffer_store_dwordx4 {vq(QG+4*b_)}, v13, {srd(SWS)}, s{sOWNZ} offen offset:{256*b_} sc1")
    g("s_mov_b64 exec, -1")
    g.label("L_noffn")
    g.stamp(7)
    g(f"v_bfe_u32 v14, v0, 1, 3")
    g(f"v_lshlrev_b32 v14, 10, v14")
    g(f"v_and_b32 v12, 1, v0")
    g(f"v_lshl_add_u32 v14, v12, 4, v14")
    g(f"v_lshl_add_u32 v12, v5, 14, v14")
    g(f"v_lshl_add_u32 v14, v5, 16, v14")
    g(f"s_lshl_b32 s{sT2}, s{sB}, 8")
    g(f"s_lshl_b32 s{sT1}, s{sH}, 5")
    g(f"s_add_u32 s{sT2}, s{sT2}, s{sT1}")
    g(f"s_lshr_b32 s{sT0}, s{sS}, 1")
    g(f"s_lshl_b32 s{sT0}, s{sT0}, 16")
    g(f"s_lshl_b32 s{sT1}, s{sU}, 13")
    g(f"s_add_u32 s{sT0}, s{sT0}, s{sT1}")
    g(f"s_add_u32 s{sT0}, s{sT0}, s{sT2}")
    g(f"s_add_u32 s{sT0}, s{sT0}, {hex(A_Z)}")
    g(f"s_lshl_b32 s{sT1}, s{sS}, 13")
    g(f"s_add_u32 s{sT1}, s{sT1}, s{sT2}")
    g(f"s_add_u32 s{sT1}, s{sT1}, {hex(A_Y)}")
    Z, Y = 32, 36
    for i in range(4):
        g(f"v_mov_b32 v{Z+i}, 0")
    ldswait("y", L_KD, 512 + 64 * ysig, 1, 7, 30)
    g(f"s_mov_b32 s{sMASK2}, -1")
    g(f"s_mov_b32 s{sMASK2+1}, 0x00ffffff")
    g(f"s_mov_b64 exec, s[{sMASK2}:{sMASK2+1}]")
    poll("z", [f"buffer_load_dwordx4 {vq(Z)}, v12, {srd(SWS)}, s{sT0} offen sc1"], [Z + i for i in range(4)], 30, 0)
    g.stamp(8)
    def gate():
        reduce32x4(g, Z)
        rne(g, Z, Z)
        g(f"v_lshlrev_b32 v29, 16, v29")
        g(f"v_add_f32 v{Z}, v{Z}, v29")
        rne(g, Z, Z)
        g(f"v_mul_f32 v30, {f32(-LOG2E)}, v{Z}")
        g(f"v_exp_f32 v30, v30")
        g("s_nop 0")
        g(f"v_add_f32 v30, 1.0, v30")
        g(f"v_rcp_f32 v30, v30")
        g("s_nop 0")
        g(f"v_mul_f32 v{Z}, v{Z}, v30")
        rne(g, Z, Z)
        g(f"v_lshlrev_b32 v{Z+1}, 16, v28")
        g(f"s_mov_b32 s{sMASK2}, 0x00030003")
        g(f"s_mov_b32 s{sMASK2+1}, 0x00030003")
    if ypipe < 2:
        poll("y", [f"buffer_load_dwordx4 {vq(Y)}, v14, {srd(SWS)}, s{sT1} offen sc1"], [Y + i for i in range(4)], 30, 0, gate)
    else:
        YB = [64 + 4 * i for i in range(ypipe)]
        ld = lambda i: g(f"buffer_load_dwordx4 {vq(YB[i])}, v14, {srd(SWS)}, s{sT1} offen sc1")
        ld(0)
        gate()
        for i in range(1, ypipe):
            ld(i)
        g(f"s_mov_b32 s{sSPIN}, 0")
        g.label("L_polly")
        for i in range(ypipe):
            g(f"s_waitcnt vmcnt({ypipe-1})")
            tagcheck(g, [YB[i] + j for j in range(4)], 30, 31)
            for j in range(4):
                g(f"v_mov_b32 v{Y+j}, v{YB[i]+j}")
            g("s_cbranch_vccz L_goty")
            g("s_mov_b64 exec, vcc")
            ld(i)
        g(f"s_add_u32 s{sSPIN}, s{sSPIN}, 1")
        g(f"s_cmp_lt_u32 s{sSPIN}, {hex(spin_max)}")
        g("s_cbranch_scc1 L_polly")
        g.label("L_goty")
        g("s_mov_b64 exec, -1")
    g.stamp(9)
    reduce32x4(g, Y)
    rne(g, Y, Y)
    g(f"v_mul_f32 v{Y}, v{Y}, v{Z}")
    rne(g, Y, Y)
    g(f"v_add_f32 v{Y}, v{Y}, v{Z+1}")
    g(f"v_cvt_pk_bf16_f32 v{Y}, v{Y}, v{Y}")
    g(f"s_mov_b64 exec, s[{sMASK2}:{sMASK2+1}]")
    g(f"buffer_store_short v{Y}, v15, {srd(SOUT)}, s{sOO} offen")
    g(f"s_cmp_lg_u32 s2, 0")
    g("s_cbranch_scc1 L_noep")
    g(f"s_mov_b32 s{sT0}, {hex(W_EP)}")
    g("s_mov_b64 exec, 1")
    g(f"v_mov_b32 v30, s{sTAG}")
    g(f"buffer_store_dword v30, v7, {srd(SWS)}, s{sT0} offen sc1")
    g.label("L_noep")
    g("s_mov_b64 exec, -1")

    g.label("L_fin")
    if probe is not None:
        role, idx = probe
        g("s_waitcnt vmcnt(0)")
        g.stamp(11)
        g("s_waitcnt lgkmcnt(0)")
        g(f"s_mov_b32 s{sT0}, s{sSTAMP}")
        if role == 'wg':
            g(f"s_cmp_lg_u32 s2, {idx}")
            g("s_cbranch_scc1 L_end")
            g(f"s_cmp_lg_u32 s{sWAVE}, 0")
            g("s_cbranch_scc1 L_end")
        g(f"s_cmp_eq_u32 s{sWAVE}, 0")
        if role == 'h':
            g(f"s_cselect_b32 s{sT0}, s{sSTAMP+2*idx}, s{sT0}")
        elif role == 's':
            g(f"s_cselect_b32 s{sT0}, s{sT0}, s{sSTAMP+2*idx}")
        g(f"s_add_u32 s{sT0}, s{sT0}, 10000")
        g.label("L_probe")
        g(f"s_memrealtime s[{sSTAMP+2}:{sSTAMP+3}]")
        g("s_waitcnt lgkmcnt(0)")
        g(f"s_sub_u32 s{sT1}, s{sSTAMP+2}, s{sT0}")
        g(f"s_cmp_lt_i32 s{sT1}, 0")
        g("s_cbranch_scc1 L_probe")
    if diag:
        g("s_waitcnt vmcnt(0)")
        g.stamp(11)
        g("s_waitcnt lgkmcnt(0)")
        g(f"s_mul_i32 s{sT0}, s2, 5")
        g(f"s_add_u32 s{sT0}, s{sT0}, s{sWAVE}")
        g(f"s_lshl_b32 s{sT0}, s{sT0}, 6")
        g(f"s_add_u32 s{sT0}, s{sT0}, {hex(W_DIAG)}")
        for i in range(12):
            g(f"v_mov_b32 v{8+i}, s{sSTAMP+2*i}")
        g(f"v_mov_b32 v20, s{sSPIN}")
        g(f"v_mov_b32 v22, s{sIT}")
        g("s_getreg_b32 s3, hwreg(HW_REG_XCC_ID)")
        g("v_mov_b32 v21, s3")
        g("v_mov_b32 v23, 0")
        g("v_mov_b32 v1, 0")
        g("s_mov_b64 exec, 1")
        for i in range(4):
            g(f"buffer_store_dwordx4 {vq(8+4*i)}, v1, {srd(SWS)}, s{sT0} offen offset:{16*i}")
    g.label("L_end")
    g("s_endpgm")
    out += g.L
    out += ['.section .rodata,"a"', ".p2align 6", f".amdhsa_kernel {NAME}_kernel",
            "  .amdhsa_next_free_vgpr 256", "  .amdhsa_next_free_sgpr 102", "  .amdhsa_accum_offset 256",
            "  .amdhsa_group_segment_fixed_size 0", "  .amdhsa_kernarg_size 104", "  .amdhsa_user_sgpr_count 2",
            "  .amdhsa_user_sgpr_kernarg_segment_ptr 1", "  .amdhsa_system_sgpr_workgroup_id_x 1",
            "  .amdhsa_float_denorm_mode_32 3",
            ".end_amdhsa_kernel"]
    return "\n".join(out) + "\n"


if __name__ == "__main__":
    kw = eval("dict(%s)" % (sys.argv[2] if len(sys.argv) > 2 else ""))
    open(sys.argv[1], "w").write(gen(**kw))
```

```python
import sys, struct

NAME = "recurrent_scan__gqa_block_cached__dense_activation_squared_relu__decode"

HEADER = """; Kernarg layout for this problem (104 bytes, ptrs only, base s[0:1]):
;   offset  24: d_in[3] A_wq  shape=(512, 4096) dtype=bfloat16
;   offset  32: d_in[4] A_wo  shape=(4096, 512) dtype=bfloat16
;   offset  96: d_ws      workspace (tagged hand-offs between workgroups)
; One workgroup per (batch b, kv head h, key split s of 2048 keys). Waves 1..4 stream first all K, then all V of
; Wave 0 does the small work: layernorm, a slice of the q projection, softmax statistics across the 8 splits,
; a slice of the FFN and the final reduction. Every word handed between workgroups carries a launch tag
; (epoch word of d_ws + 1) in its low bits; readers poll until the tag is there.
"""

def f32(x):
    return "0x%08x" % struct.unpack("<I", struct.pack("<f", x))[0]

LOG2E = 1.4426950408889634
SCALE = 128 ** -0.5

L_Q = 0
L_TAG, L_CNT, L_KD, L_MAX, L_JN, L_F, L_TH, L_WR = 2048, 2056, 2060, 2064, 2080, 2096, 2128, 2132
L_PART, HS, WSP = 3072, 528, 2112
L_WQ, L_W1, L_W2, L_WO, L_SIZE = 12288, 28672, 36864, 45056, 61440
L_SC = L_WQ
A_Q, A_H, A_Z, A_Y, A_P, A_S = 0, 0x40000, 0x80000, 0xc0000, 0x100000, 0x180000
A_C = 0x1a0000
W_EP = 0x1c0000
W_DIAG = 0x280000
W_SIZE = 0x400000
OOB = 0x10000000

SK, SV, SWS, SWO, SW2, SX, SWQ, SW1, SB1, SB2, SOUT = 8, 12, 16, 20, 24, 28, 32, 36, 40, 44, 48
sWAVE, sB, sH, sS = 3, 4, 5, 6
sDR = 55
sSELLO, sSELHI, sSCALE, sLOG2E, sA, sBo, sIT = 56, 57, 58, 59, 60, 61, 62
sT0, sT1, sT2, sT3, sT4 = 63, 64, 65, 66, 67
sMASK = 68
sMASK2 = 70
sSPIN = 72
sHI = 73
sW = 74
sTAG = 75
sSTAMP = 76


class G:
    def __init__(self, diag=False):
        self.L = []
        self.diag = diag
        self.nstamp = {}

    def __call__(self, s):
        self.L.append("  " + s)

    def label(self, s):
        self.L.append(s + ":")

    def comment(self, s):
        self.L.append("  ; " + s)

    def stamp(self, i):
        if self.diag:
            self(f"s_memrealtime s[{sSTAMP+2*i}:{sSTAMP+2*i+1}]")

    def srd_consts(self, base, nbytes):
        self(f"s_mov_b32 s{base+2}, {hex(nbytes)}")
        self(f"s_mov_b32 s{base+3}, 0x20000")

    def srd_load(self, base, off):
        self(f"s_load_dwordx2 s[{base}:{base+1}], s[0:1], {off}")


def srd(b):
    return f"s[{b}:{b+3}]"


def vq(r, n=4):
    return f"v[{r}:{r+n-1}]"


def perms(g, raw, e, dst):
    sel = sSELHI if (e & 1) else sSELLO
    for j in range(4):
        g(f"v_perm_b32 v{dst+j}, v{raw[2*j+1] + (e >> 1)}, v{raw[2*j] + (e >> 1)}, s{sel}")


def rne(g, dst, src):
    g(f"v_cvt_pk_bf16_f32 v{dst}, v{src}, v{src}")
    g(f"v_lshlrev_b32 v{dst}, 16, v{dst}")


def tagcheck(g, regs, c1, c2, tag=None, mask=0xff):
    def tree(op3, op2, dst):
        r = list(regs)
        g(f"{op3} v{dst}, v{r[0]}, v{r[1]}, v{r[2]}" + (" bitop3:0x80" if "bitop" in op3 else ""))
        r = r[3:]
        while len(r) >= 2:
            g(f"{op3} v{dst}, v{dst}, v{r[0]}, v{r[1]}" + (" bitop3:0x80" if "bitop" in op3 else ""))
            r = r[2:]
        if r:
            g(f"{op2} v{dst}, v{dst}, v{r[0]}")
    tree("v_bitop3_b32", "v_and_b32", c1)
    tree("v_or3_b32", "v_or_b32", c2)
    g(f"v_bitop3_b32 v{c1}, v{c1}, v{c2}, s{sTAG if tag is None else tag} bitop3:0x7e")
    g(f"v_and_b32 v{c2}, {hex(mask)}, v{c1}")
    g(f"v_cmp_ne_u32 vcc, 0, v{c2}")


def reduce32x4(g, a):
    g(f"v_permlane32_swap_b32 v{a}, v{a+2}")
    g(f"v_permlane32_swap_b32 v{a+1}, v{a+3}")
    g(f"v_add_f32 v{a}, v{a}, v{a+2}")
    g(f"v_add_f32 v{a+1}, v{a+1}, v{a+3}")
    g("s_nop 1")
    g(f"v_permlane16_swap_b32 v{a}, v{a+1}")
    g(f"v_add_f32 v{a}, v{a}, v{a+1}")
    for r in (8, 4, 2):
        g("s_nop 1")
        g(f"v_add_f32_dpp v{a}, v{a}, v{a} row_ror:{r} row_mask:0xf bank_mask:0xf")


def gen(diag=False, kvflags="nt", wflags="nt", pace=11, pace3=None, spin_max=1 << 18, skip=(), probe=None, qwait=20,
        remap=False, fast=True, repub=3, bar0=4, pf=False, trig=4, ysig=4, brk=True, hstop=None, notail=False, lpace=None, pgrp=4, ks=(2, 1, 2, 1), vs=(2, 1, 2, 1), ps=None, es=0, eth=52, ctl=(18, 6, 48, 22), bs=0, sigearly=True, ypipe=2, touch=False, otouch=False, w1first=True, sth=56, cs=42, ysleep=0, zsleep=0, p1sleep=0, zfl='sc1', yfl='sc1', epf='sc1', xf='', mark2=False,
        lay=(13, 15, 17, 18, 19, 12, 14, 16, 20, 21)):
    SPAN = 0x400000
    assert sorted(lay) == list(range(12, 22))
    tup = lambda x: (x,) * 4 if isinstance(x, int) else tuple(x)
    ps = tup(ks if ps is None else ps)
    ks, vs, es = tup(ks), tup(vs), tup(es)
    bs = tup(bs)
    lv = [ps, ks, vs, es, bs]
    nM = 4 + min(min(x) for x in lv)
    nK = nV = nM
    g = G(diag or probe is not None)
    out = [HEADER + f"; @launch grid=(256,1,1) block=(320,1,1) lds={L_SIZE}",
           '.amdgcn_target "amdgcn-amd-amdhsa--gfx950"', ".text", f".globl {NAME}_kernel", ".p2align 8",
           f".type {NAME}_kernel,@function", f"{NAME}_kernel:"]

    def poll(tag, loads, regs, t, sleep, first=None):
        g(f"s_mov_b32 s{sSPIN}, 0")
        if first is not None:
            for l in loads:
                g(l)
            first()
            g(f"s_branch L_pw{tag}")
        g.label(f"L_poll{tag}")
        for l in loads:
            g(l)
        g.label(f"L_pw{tag}")
        g("s_waitcnt vmcnt(0)")
        if tag == "1" and g.diag:
            g(f"s_cmp_lg_u32 s{sSPIN}, 0")
            g("s_cbranch_scc1 L_nost")
            g.stamp(10)
            g.label("L_nost")
        tagcheck(g, regs, t, t + 1)
        g(f"s_cbranch_vccz L_got{tag}")
        g("s_mov_b64 exec, vcc")
        if sleep:
            g(f"s_sleep {sleep}")
        g(f"s_add_u32 s{sSPIN}, s{sSPIN}, 1")
        g(f"s_cmp_lt_u32 s{sSPIN}, {hex(spin_max)}")
        g(f"s_cbranch_scc1 L_poll{tag}")
        g.label(f"L_got{tag}")
        g("s_mov_b64 exec, -1")

    def ldswait(tag, off, thr, sleep, vz, vt):
        g(f"s_mov_b32 s{sSPIN}, 0")
        g.label(f"L_w{tag}")
        g(f"ds_read_b32 v{vt}, v{vz} offset:{off}")
        g(f"s_add_u32 s{sSPIN}, s{sSPIN}, 1")
        g("s_waitcnt lgkmcnt(0)")
        g(f"v_cmp_le_u32 vcc, {thr}, v{vt}")
        g(f"s_cbranch_vccnz L_g{tag}")
        g(f"s_sleep {sleep}")
        g(f"s_cmp_lt_u32 s{sSPIN}, {hex(spin_max*16)}")
        g(f"s_cbranch_scc1 L_w{tag}")
        g.label(f"L_g{tag}")

    def store_mode(tag, instr, smode):
        if fast:
            g(f"s_cmp_eq_u32 s{smode}, 1")
            g(f"s_cbranch_scc0 L_sl{tag}")
            g(instr)
            g(f"s_branch L_sd{tag}")
            g.label(f"L_sl{tag}")
        g(instr + " sc1")
        g.label(f"L_sd{tag}")

    g("s_cmp_ge_u32 s2, 256")
    g("s_cbranch_scc1 L_end")
    g.srd_load(SX, 0)
    g.srd_load(SWQ, 24)
    g.srd_load(SWS, 96)
    g.srd_load(SK, 8)
    g.srd_consts(SWS, W_SIZE)
    g.stamp(0)
    if pf:
        g("s_getpc_b64 s[44:45]")
        g.label("L_pc0")
        g("s_lshr_b32 s46, s2, 3")
        g("s_lshl_b32 s46, s46, 9")
        g("v_and_b32 v2, 3, v0")
        g("v_lshl_add_u32 v2, v2, 7, s46")
        g("v_min_u32 v2, L_end - L_pc0, v2")
        g("global_load_dword v64, v2, s[44:45]")
    g("v_lshrrev_b32 v1, 6, v0")
    g("v_and_b32 v0, 63, v0")
    g(f"s_lshr_b32 s{sB}, s2, 6")
    g(f"v_readfirstlane_b32 s{sWAVE}, v1")
    if remap:
        g(f"s_and_b32 s{sS}, s2, 7")
        g(f"s_bfe_u32 s{sH}, s2, 0x30003")
        g(f"s_lshl_b32 s2, s{sB}, 3")
        g(f"s_add_u32 s2, s2, s{sS}")
        g(f"s_lshl_b32 s2, s2, 3")
        g(f"s_add_u32 s2, s2, s{sH}")
    else:
        g(f"s_and_b32 s{sH}, s2, 7")
        g(f"s_bfe_u32 s{sS}, s2, 0x30003")
    g(f"s_mov_b32 s{sHI}, 0xffff0000")
    g(f"s_cmp_eq_u32 s{sWAVE}, 0")
    g("s_cbranch_scc1 L_helper")

    vK, vV, vSC, vH4, vMC, vZ0, vZ1 = 1, 2, 3, 4, 5, 6, 7
    vQ, vT, vO = 8, 16, 32
    SLOT = [64, 128, 192]
    sWGB, sSLOW, sTH = 52, 53, 54
    sTI = (33, 34, 35)
    g.srd_consts(SK, SPAN)
    g(f"s_sub_u32 s{sW}, s{sWAVE}, 1")
    if touch:
        g(f"s_lshl_b32 s46, s{sW}, 3")
        g(f"s_add_u32 s46, s46, 48")
        g(f"s_load_dwordx2 s[44:45], s[0:1], s46")
        g.srd_load(SV, 16)
        g.srd_load(SWO, 32)
        g(f"s_lshl_b32 s46, s2, 12")
        g(f"s_lshl_b32 s47, s{sH}, 7")
        g(f"s_bitcmp1_b32 s{sW}, 0")
        g(f"s_cselect_b32 s46, s47, s46")
        g(f"v_mov_b32 v3, s46")
    g(f"s_lshl_b32 s{sWGB}, s{sB}, 3")
    g(f"s_add_u32 s{sWGB}, s{sWGB}, s{sH}")
    g(f"s_lshl_b32 s{sWGB}, s{sWGB}, 22")
    sROT = 39
    def scatter(dst, src, pos, first=None):
        i = 0
        while i < len(pos):
            n = 1
            while i + n < len(pos) and pos[i + n] == pos[i] + n:
                n += 1
            if first is None and i == 0:
                g(f"s_bfe_u32 s{dst}, s{src}, {hex((n << 16) + i)}")
                g(f"s_lshl_b32 s{dst}, s{dst}, {pos[i]}")
            else:
                g(f"s_bfe_u32 s{sT1}, s{src}, {hex((n << 16) + i)}")
                g(f"s_lshl_b32 s{sT1}, s{sT1}, {pos[i]}")
                g(f"s_or_b32 s{dst}, s{first if i == 0 else dst}, s{sT1}")
            i += n
    scatter(sROT, sS, lay[7:10])
    TPOS = lay[5:7] + lay[2:5]
    UOFF = [((u & 1) << lay[0]) + ((u >> 1) << lay[1]) for u in range(4)]
    scatter(sA, sW, lay[5:7], sROT)
    g(f"v_bfe_u32 v{vK}, v0, 1, 1")
    g(f"v_lshlrev_b32 v{vK}, 10, v{vK}")
    g(f"v_bfe_u32 v{vZ0}, v0, 2, 2")
    g(f"v_lshl_add_u32 v{vK}, v{vZ0}, 8, v{vK}")
    g(f"v_lshrrev_b32 v{vZ1}, 4, v0")
    g(f"v_lshl_add_u32 v{vK}, v{vZ1}, 5, v{vK}")
    g(f"v_and_b32 v{vZ0}, 1, v0")
    g(f"v_lshl_add_u32 v{vK}, v{vZ0}, 4, v{vK}")
    g("s_waitcnt lgkmcnt(0)")
    g(f"s_add_u32 s{SK}, s{SK}, s{sWGB}")
    g(f"s_addc_u32 s{SK+1}, s{SK+1}, 0")
    if touch:
        g(f"s_add_u32 s{SV}, s{SV}, s{sWGB}")
        g(f"s_addc_u32 s{SV+1}, s{SV+1}, 0")
        g(f"s_lshl_b32 s46, s{sH}, 19")
        g(f"s_lshr_b32 s47, s2, 3")
        g(f"s_lshl_b32 s47, s47, 14")
        g(f"s_add_u32 s46, s46, s47")
        g(f"s_add_u32 s46, s{SWO}, s46")
        g(f"s_addc_u32 s47, s{SWO+1}, 0")
        g(f"s_bitcmp1_b32 s{sW}, 0")
        g(f"s_cselect_b64 s[46:47], s[46:47], s[{SV}:{SV+1}]")
        g(f"v_mov_b32 v4, 0")
        g("global_load_dword v64, v3, s[44:45]")
        g("global_load_dword v64, v4, s[46:47] nt")
    g("s_barrier")

    def issue(X, isk, paced=None, sp=None):
        if sp is None:
            sp = ks if isk else vs
        for u in range(4):
            so = sA
            for j in range(4):
                vo, rs, off = (vK, SK, (j & 1) * 128 + (j >> 1) * 2048) if isk else (vV, SV, j * 1024)
                d = X + 16 * u + 4 * j
                if j < sp[u]:
                    g(f"buffer_load_dwordx2 {vq(d,2)}, v{vo}, {srd(rs)}, s{so} offen offset:{off} {kvflags}")
                    g(f"buffer_load_dwordx2 {vq(d+2,2)}, v{vo}, {srd(rs)}, s{so} offen offset:{off+8} {kvflags}")
                else:
                    g(f"buffer_load_dwordx4 {vq(d)}, v{vo}, {srd(rs)}, s{so} offen offset:{off} {kvflags}")
                if paced is not None and (j + 1) % pgrp == 0:
                    g(f"s_waitcnt vmcnt({paced})")
            if u < 3:
                g(f"s_add_u32 s{sA}, s{sA}, {hex((UOFF[u+1] - UOFF[u]) & 0xffffffff)}")

    issue(SLOT[0], True, pace, ps)
    if not touch:
        g.srd_load(SV, 16)
        g.srd_load(SWO, 32)
    g.srd_consts(SV, SPAN)
    g.srd_consts(SWO, 4096 * 512 * 2)
    g(f"v_lshlrev_b32 v{vV}, 4, v0")
    g(f"s_mov_b32 s{sSELLO}, 0x05040100")
    g(f"s_mov_b32 s{sSELHI}, 0x07060302")
    g(f"s_mov_b32 s{sLOG2E}, {f32(LOG2E)}")
    g(f"s_mov_b32 s{sSCALE}, {f32(SCALE)}")
    g(f"s_mov_b32 s{sIT}, 0")
    g(f"s_mov_b32 s{sDR}, 0")
    for k in range(3):
        g(f"s_add_u32 s{sTI[k]}, s{sW}, {4*k}")
    g(f"s_mov_b32 s{sMASK}, 0x000f000f")
    g(f"s_mov_b32 s{sMASK+1}, 0x000f000f")
    g(f"v_and_b32 v{vH4}, 3, v0")
    g(f"v_lshlrev_b32 v{vT}, 8, v{vH4}")
    g(f"v_lshl_add_u32 v{vT}, v{vZ1}, 5, v{vT}")
    g(f"v_bfe_u32 v{vZ0}, v0, 2, 1")
    g(f"v_lshl_add_u32 v{vT}, v{vZ0}, 4, v{vT}")
    g(f"v_lshlrev_b32 v{vSC}, 6, v{vZ1}")
    g(f"v_lshl_add_u32 v{vSC}, v{vH4}, 4, v{vSC}")
    g(f"v_lshlrev_b32 v{vH4}, 2, v{vH4}")
    g(f"v_mov_b32 v{vZ0}, 0")
    g(f"v_mov_b32 v{vZ1}, 1")
    sD0 = 28
    g(f"s_lshl_b32 s{sD0}, s{sH}, 2")
    g(f"s_add_u32 s{sD0}, s{sD0}, s{sB}")
    g(f"s_lshl_b32 s{sD0}, s{sD0}, 6")
    g(f"s_add_u32 s{sD0}, s{sD0}, s{sW}")
    g(f"s_lshl_b32 s{sD0}, s{sD0}, 11")
    g(f"s_lshl_b32 s{sT0}, s{sS}, 7")
    g(f"s_add_u32 s{sD0}, s{sD0}, s{sT0}")
    if 'wo' in skip:
        g(f"s_mov_b32 s{sD0}, {hex(OOB)}")
    g(f"s_add_u32 s{sD0+1}, s{sD0}, {64*1024 - 2048}")
    sH1S, sH1G, sYS = 36, 37, 38
    g(f"s_lshl_b32 s{sT0}, s{sW}, 12")
    g(f"s_add_u32 m0, s{sT0}, {L_WO}")
    g(f"s_lshl_b32 s{sH1S}, s2, 2")
    g(f"s_add_u32 s{sH1S}, s{sH1S}, s{sW}")
    g(f"s_lshl_b32 s{sYS}, s{sH1S}, 8")
    g(f"s_add_u32 s{sYS}, s{sYS}, {hex(A_Y)}")
    g(f"s_lshl_b32 s{sH1S}, s{sH1S}, 9")
    g(f"s_add_u32 s{sH1S}, s{sH1S}, {hex(A_P)}")
    g(f"s_lshl_b32 s{sH1G}, s{sW}, 6")
    g(f"s_add_u32 s{sH1G}, s{sH1G}, s{sH}")
    g(f"s_lshl_b32 s{sH1G}, s{sH1G}, 2")
    g(f"s_add_u32 s{sH1G}, s{sH1G}, s{sB}")
    g(f"s_lshl_b32 s{sH1G}, s{sH1G}, 9")
    g(f"s_add_u32 s{sH1G}, s{sH1G}, {hex(A_P)}")
    scatter(sA, sTI[1], TPOS, sROT)
    issue(SLOT[1], True, pace, ps)
    scatter(sA, sTI[2], TPOS, sROT)
    issue(SLOT[2], True, pace3, ps)
    g.stamp(1)
    g(f"s_mov_b32 s{sSPIN}, 0")
    g.label("L_wq")
    g(f"ds_read_b64 {vq(vT+2,2)}, v{vZ0} offset:{L_TAG}")
    g(f"s_add_u32 s{sSPIN}, s{sSPIN}, 1")
    g("s_waitcnt lgkmcnt(0)")
    g(f"v_cmp_ne_u32 vcc, 0, v{vT+3}")
    g("s_cbranch_vccnz L_wq_ok")
    g("s_sleep 2")
    g(f"s_cmp_lt_u32 s{sSPIN}, {hex(spin_max*16)}")
    g("s_cbranch_scc1 L_wq")
    g.label("L_wq_ok")
    if not touch:
        g(f"s_add_u32 s{SV}, s{SV}, s{sWGB}")
        g(f"s_addc_u32 s{SV+1}, s{SV+1}, 0")
    for j in range(2):
        g(f"ds_read_b128 {vq(vQ+4*j)}, v{vT} offset:{L_Q + 128*j}")
    g.stamp(2)
    g(f"v_readfirstlane_b32 s{sTAG}, v{vT+2}")
    g(f"v_readfirstlane_b32 s{sSLOW}, v{vT+3}")
    g("s_waitcnt lgkmcnt(0)")

    def take(k):
        g("s_mov_b64 exec, 1")
        g(f"ds_add_rtn_u32 v{vT}, v{vZ0}, v{vZ1} offset:{L_CNT}")
        g(f"ds_read_b32 v{vT+1}, v{vZ0} offset:{L_TH}")
        g("s_mov_b64 exec, -1")
        g("s_waitcnt lgkmcnt(0)")
        g(f"v_readfirstlane_b32 s{sTI[k]}, v{vT}")
        g(f"v_readfirstlane_b32 s{sTH}, v{vT+1}")
        scatter(sA, sTI[k], TPOS, sROT)

    def ktile(k):
        X = SLOT[k]
        for G_ in range(8):
            if G_ % 2 == 0:
                g(f"s_waitcnt vmcnt({min(63, 8*nM + (3 - G_//2)*nK)})")
            for j in range(2):
                c = "0" if j == 0 else vq(vO + 4 * G_)
                g(f"v_mfma_f32_16x16x32_bf16 {vq(vO+4*G_)}, {vq(X+8*G_+4*j)}, {vq(vQ+4*j)}, {c}")
        for i in range(16):
            g(f"v_add_f32_dpp v{vT+i}, v{vO+2*i+1}, v{vO+2*i} row_shl:4 row_mask:0xf bank_mask:0xf bound_ctrl:0")
        for i in range(8):
            g(f"v_cvt_pk_bf16_f32 v{vO+i}, v{vT+2*i}, v{vT+2*i+1}")
        for i in range(8):
            g(f"v_lshlrev_b32 v{vT+2*i}, 16, v{vO+i}")
            g(f"v_and_b32 v{vT+2*i+1}, s{sHI}, v{vO+i}")
        for i in range(16):
            g(f"v_mul_f32 v{vT+i}, s{sSCALE}, v{vT+i}")
        for i in range(8):
            g(f"v_cvt_pk_bf16_f32 v{vO+8+i}, v{vT+2*i}, v{vT+2*i+1}")
        g(f"s_lshl_b32 s{sT0}, s{sTI[k]}, 9")
        g(f"v_add_u32 v{vO+16}, s{sT0}, v{vSC}")
        g(f"v_max3_f32 v{vO+17}, v{vT}, v{vT+1}, v{vT+2}")
        g(f"v_max3_f32 v{vO+18}, v{vT+3}, v{vT+4}, v{vT+5}")
        g(f"v_max3_f32 v{vO+17}, v{vO+17}, v{vT+6}, v{vT+7}")
        g(f"v_max3_f32 v{vO+18}, v{vO+18}, v{vT+8}, v{vT+9}")
        g(f"v_max3_f32 v{vO+17}, v{vO+17}, v{vT+10}, v{vT+11}")
        g(f"v_max3_f32 v{vO+18}, v{vO+18}, v{vT+12}, v{vT+13}")
        g(f"v_max3_f32 v{vO+17}, v{vO+17}, v{vT+14}, v{vT+15}")
        g(f"v_max_f32 v{vO+17}, v{vO+17}, v{vO+18}")
        g(f"s_mov_b64 exec, s[{sMASK}:{sMASK+1}]")
        g(f"ds_write_b128 v{vO+16}, {vq(vO+8)} offset:{L_SC}")
        g(f"ds_write_b128 v{vO+16}, {vq(vO+12)} offset:{L_SC+256}")
        g(f"ds_max_f32 v{vH4}, v{vO+17} offset:{L_MAX}")
        g(f"ds_add_u32 v{vZ0}, v{vZ1} offset:{L_KD}")

    def vtile(k):
        X = SLOT[k]
        P = vQ
        cnt = [0]
        def wait(n):
            g(f"s_waitcnt vmcnt({min(63, n + 8*nV)})")
            g(f"s_cbranch_scc0 L_w{k}{cnt[0]}")
            g(f"s_waitcnt vmcnt({n + 4})")
            g.label(f"L_w{k}{cnt[0]}")
            cnt[0] += 1
        g(f"s_lshl_b32 s{sT0}, s{sTI[k]}, 9")
        g(f"s_sub_u32 s{sT0}, s{sT0}, {32*512 - L_SC}")
        g(f"v_add_u32 v{vT}, s{sT0}, v{vSC}")
        g(f"ds_read_b128 {vq(P)}, v{vT}")
        g(f"ds_read_b128 {vq(P+4)}, v{vT} offset:256")
        g(f"s_cmp_eq_u32 s{sDR}, 2")
        g("s_waitcnt lgkmcnt(0)")
        for i in range(8):
            g(f"v_lshlrev_b32 v{vT+2*i}, 16, v{P+i}")
            g(f"v_and_b32 v{vT+2*i+1}, s{sHI}, v{P+i}")
        for i in range(16):
            g(f"v_fma_f32 v{vT+i}, v{vT+i}, s{sLOG2E}, -v{vMC}")
        for i in range(16):
            g(f"v_exp_f32 v{vT+i}, v{vT+i}")
        for i in range(8):
            g(f"v_cvt_pk_bf16_f32 v{P+i}, v{vT+2*i}, v{vT+2*i+1}")
        for hb in range(2):
            raw = [X + 32 * hb + 4 * t for t in range(8)]
            wait(2 * nV * (1 - hb))
            perms(g, raw, 0, vT)
            perms(g, raw, 1, vT + 4)
            for e in range(8):
                g(f"v_mfma_f32_16x16x32_bf16 {vq(vO+4*e)}, {vq(vT+4*(e%4))}, {vq(P+4*hb)}, {vq(vO+4*e)}")
                if e + 2 < 8:
                    perms(g, raw, e + 2, vT + 4 * ((e + 2) % 4))

    g.L.append(".p2align 3")
    for k in range(3):
        g.label(f"L_k{k}")
        g(f"s_cmp_ge_u32 s{sTI[k]}, 32")
        g(f"s_cbranch_scc1 L_tr{k}")
        ktile(k)
        take(k)
        g(f"s_cmp_ge_u32 s{sTI[k]}, 32")
        g(f"s_cbranch_scc1 L_kv{k}")
        g(f"s_cmp_ge_u32 s{sTI[k]}, s{sTH}")
        g(f"s_cbranch_scc1 L_kb{k}")
        issue(SLOT[k], True, lpace)
    g("s_branch L_k0")
    for k in range(3):
        g.label(f"L_kb{k}")
        if g.diag:
            g(f"s_add_u32 s{sIT}, s{sIT}, 1")
        issue(SLOT[k], True, lpace, bs)
        g(f"s_branch L_k{(k+1)%3}")
        g.label(f"L_kv{k}")
        g(f"s_cmp_ge_u32 s{sTI[k]}, s{sTH}")
        g(f"s_cbranch_scc1 L_kvb{k}")
        issue(SLOT[k], False, lpace)
        g(f"s_branch L_k{(k+1)%3}")
        g.label(f"L_kvb{k}")
        if g.diag:
            g(f"s_add_u32 s{sIT}, s{sIT}, 1")
        issue(SLOT[k], False, lpace, es)
        g(f"s_branch L_k{(k+1)%3}")
    for k in range(3):
        g.label(f"L_tr{k}")
        g(f"s_mov_b32 s{sT4}, {k}")
        if k < 2:
            g("s_branch L_trans")
    g.label("L_trans")
    g.stamp(7)
    for i in range(32):
        g(f"v_mov_b32 v{vO+i}, 0")
    ldswait("kd", L_KD, 512, 1, vZ0, vT)
    g(f"ds_read_b32 v{vMC}, v{vH4} offset:{L_MAX}")
    g.stamp(8)
    g("s_waitcnt lgkmcnt(0)")
    rne(g, vMC, vMC)
    g(f"v_mul_f32 v{vMC}, s{sLOG2E}, v{vMC}")
    g(f"s_cmp_eq_u32 s{sT4}, 1")
    g("s_cbranch_scc1 L_v1")
    g(f"s_cmp_eq_u32 s{sT4}, 2")
    g("s_cbranch_scc1 L_v2")
    g.L.append(".p2align 3")
    for k in range(3):
        g.label(f"L_v{k}")
        vtile(k)
        g(f"s_cmp_lg_u32 s{sDR}, 0")
        g(f"s_cbranch_scc1 L_dr{k}")
        take(k)
        g(f"s_cmp_ge_u32 s{sTI[k]}, s{sTH}")
        g(f"s_cbranch_scc1 L_ve{k}")
        issue(SLOT[k], False, lpace)
    g("s_branch L_v0")
    for k in range(3):
        g.label(f"L_ve{k}")
        g(f"s_cmp_ge_u32 s{sTI[k]}, 64")
        g(f"s_cbranch_scc1 L_dr1{k}")
        if g.diag:
            g(f"s_add_u32 s{sIT}, s{sIT}, 1")
        issue(SLOT[k], False, lpace, es)
        g(f"s_branch L_v{(k+1)%3}")

    vPW = vK
    for k in range(3):
        nxt = f"L_v{(k+1)%3}"
        g.label(f"L_dr{k}")
        g(f"s_cmp_eq_u32 s{sDR}, 2")
        g(f"s_cbranch_scc1 L_tail")
        g(f"s_mov_b32 s{sDR}, 2")
        g(f"s_branch {nxt}")
        g.label(f"L_dr1{k}")
        g(f"s_mov_b32 s{sT4}, {(k+1)%3}")
        if k < 2:
            g("s_branch L_drain")
    g.label("L_drain")
    va = vT
    g(f"v_lshrrev_b32 v{va}, 3, v0")
    g(f"v_lshlrev_b32 v{va}, 13, v{va}")
    g(f"v_and_b32 v{va+1}, 7, v0")
    g(f"v_lshl_add_u32 v{va}, v{va+1}, 4, v{va}")
    g(f"v_and_b32 v{va+1}, 16, v0")
    g(f"v_lshlrev_b32 v{va+1}, 1, v{va+1}")
    g(f"s_and_b32 s{sT0}, s{sW}, 1")
    g(f"s_lshl_b32 s{sT0}, s{sT0}, 6")
    g(f"v_bitop3_b32 v{va}, v{va}, v{va+1}, s{sT0} bitop3:0x96")
    for i in range(4):
        g(f"buffer_load_dwordx4 v{va}, {srd(SWO)}, s{sD0 + (i>>1)} offen offset:{1024*i} {wflags} lds")
    g(f"v_lshrrev_b32 v{vPW}, 4, v0")
    g(f"v_lshlrev_b32 v{vPW}, 4, v{vPW}")
    g(f"v_mul_u32_u24 v{va+1}, {HS//4}, v{vH4}")
    g(f"s_mul_i32 s{sT0}, s{sW}, {WSP}")
    g(f"v_add3_u32 v{vPW}, v{vPW}, v{va+1}, s{sT0}")
    g(f"s_mov_b32 s{sDR}, 1")
    g(f"s_waitcnt vmcnt({4*nV + 4})")
    g(f"s_cmp_eq_u32 s{sT4}, 1")
    g("s_cbranch_scc1 L_v1")
    g(f"s_cmp_eq_u32 s{sT4}, 2")
    g("s_cbranch_scc1 L_v2")
    g("s_branch L_v0")

    X = 64
    WT = 128
    g.label("L_tail")
    g.stamp(3)
    if notail:
        g("s_branch L_fin")
    RA, RF, vJ, vFF, vP1, vG, TM = 8, 9, 10, 11, 12, 13, 14
    TRA = (16, 17, 18, 19)
    g(f"s_lshl_b32 s{sT0}, s{sW}, 2")
    g(f"v_mov_b32 v{vJ}, s{sT0}")
    g(f"v_and_b32 v{RA}, 31, v0")
    g(f"s_mul_i32 s{sT1}, s{sW}, {HS}")
    g(f"v_lshl_add_u32 v{RA}, v{RA}, 4, s{sT1}")
    g(f"v_lshlrev_b32 v{RF}, 1, v{vJ}")
    g(f"s_mov_b64 exec, s[{sMASK}:{sMASK+1}]")
    for e in range(8):
        g(f"ds_write_b128 v{vPW}, {vq(vO+4*e)} offset:{L_PART + 64*e}")
    if not mark2:
        g("s_waitcnt vmcnt(0)")
    g(f"ds_write_b32 v{vJ}, v{vZ1} offset:{L_JN}")
    g("s_mov_b64 exec, -1")
    PR = X
    JN, FF_ = X + 16, X + 20
    def joinreads():
        g(f"ds_read_b128 {vq(JN)}, v{vZ0} offset:{L_JN}")
        g(f"ds_read_b64 {vq(FF_,2)}, v{RF} offset:{L_F}")
        for w in range(4):
            g(f"ds_read_b128 {vq(PR+4*w)}, v{RA} offset:{L_PART + WSP*w}")
    joinreads()
    g(f"v_mov_b32 v{vFF}, 0xff")
    g(f"v_lshrrev_b32 v{vP1}, 3, v0")
    g(f"v_lshlrev_b32 v{vP1}, 14, v{vP1}")
    g(f"v_and_b32 v{TM}, 7, v0")
    g(f"v_lshl_add_u32 v{vP1}, v{TM}, 4, v{vP1}")
    g(f"v_lshrrev_b32 v{vG}, 4, v0")
    g(f"v_bfe_u32 v{TRA[0]}, v0, 2, 2")
    g(f"v_lshlrev_b32 v{TRA[0]}, 7, v{TRA[0]}")
    g(f"v_lshl_add_u32 v{TRA[0]}, v{vH4}, 1, v{TRA[0]}")
    g(f"v_lshl_add_u32 v{TRA[0]}, v{vG}, 12, v{TRA[0]}")
    g(f"v_bfe_u32 v{TM}, v0, 3, 2")
    g(f"v_lshl_add_u32 v{TRA[0]}, v{TM}, 5, v{TRA[0]}")
    for j in range(1, 4):
        g(f"v_xor_b32 v{TRA[j]}, {32*j}, v{TRA[0]}")
    g(f"s_mov_b32 s{sMASK}, -1")
    g(f"s_mov_b32 s{sMASK+1}, 0")
    g(f"s_mov_b32 s{sSPIN}, 0")
    g.label("L_join")
    g("s_waitcnt lgkmcnt(0)" if g.diag else "s_waitcnt lgkmcnt(4)")
    g(f"v_min3_u32 v{TM}, v{JN}, v{JN+1}, v{JN+2}")
    g(f"v_min3_u32 v{TM}, v{TM}, v{JN+3}, v{FF_+1}")
    g(f"v_cmp_eq_u32 vcc, 0, v{TM}")
    g("s_waitcnt lgkmcnt(0)")
    g("s_cbranch_vccz L_joined")
    joinreads()
    g(f"s_add_u32 s{sSPIN}, s{sSPIN}, 1")
    g(f"s_cmp_lt_u32 s{sSPIN}, {hex(spin_max*16)}")
    g("s_cbranch_scc1 L_join")
    g("s_waitcnt lgkmcnt(0)")
    g.label("L_joined")
    g.stamp(4)
    for i in range(4):
        g(f"v_add_f32 v{PR+i}, v{PR+i}, v{PR+4+i}")
        g(f"v_add_f32 v{PR+8+i}, v{PR+8+i}, v{PR+12+i}")
    for i in range(4):
        g(f"v_add_f32 v{PR+i}, v{PR+i}, v{PR+8+i}")
    for i in range(4):
        g(f"v_mul_f32 v{PR+i}, v{FF_}, v{PR+i}")
    for i in range(4):
        g(f"v_bfi_b32 v{PR+i}, v{vFF}, s{sTAG}, v{PR+i}")
    g(f"s_mov_b64 exec, s[{sMASK}:{sMASK+1}]")
    store_mode("p", f"buffer_store_dwordx4 {vq(PR)}, v{vV}, {srd(SWS)}, s{sH1S} offen", sSLOW)
    g("s_mov_b64 exec, -1")
    D = X + 24
    C1 = X + 40
    def wofrag():
        if mark2:
            g("s_waitcnt vmcnt(5)")
            g("s_mov_b64 exec, 1")
            g(f"ds_add_u32 v{vZ0}, v{vZ1} offset:{L_WR}")
            g("s_mov_b64 exec, -1")
            g(f"s_mov_b32 s{sT2}, 0")
            g.label("L_wwo")
            g(f"ds_read_b32 v{TM}, v{vZ0} offset:{L_WR}")
            g(f"s_add_u32 s{sT2}, s{sT2}, 1")
            g("s_waitcnt lgkmcnt(0)")
            g(f"v_cmp_le_u32 vcc, 4, v{TM}")
            g("s_cbranch_vccnz L_gwo")
            g(f"s_cmp_lt_u32 s{sT2}, {hex(spin_max*16)}")
            g("s_cbranch_scc1 L_wwo")
            g.label("L_gwo")
        for step in range(4):
            for j in range(4):
                for half in range(2):
                    g(f"ds_read_b64_tr_b16 {vq(WT+16*step+4*j+2*half,2)}, v{TRA[j]} offset:{L_WO + 1024*((step>>1) + 2*(step&1)) + 512*half}")
    g.stamp(9)
    poll("1", [f"buffer_load_dwordx4 {vq(D+4*i)}, v{vP1}, {srd(SWS)}, s{sH1G} offen offset:{128*i} sc1" for i in range(4)],
         [D + i for i in range(16)], C1, p1sleep, wofrag)
    g.stamp(5)
    if sigearly:
        g(f"ds_add_u32 v{vZ0}, v{vZ1} offset:{L_KD}")
    for i in range(8):
        g(f"v_permlane32_swap_b32 v{D+i}, v{D+8+i}")
    for i in range(8):
        g(f"v_add_f32 v{D+i}, v{D+i}, v{D+8+i}")
    for i in range(4):
        g(f"v_permlane16_swap_b32 v{D+i}, v{D+4+i}")
    for i in range(4):
        g(f"v_add_f32 v{D+i}, v{D+i}, v{D+4+i}")
    for i in range(4):
        g(f"v_add_f32_dpp v{D+i}, v{D+i}, v{D+i} row_ror:8 row_mask:0xf bank_mask:0xf")
    B0 = X + 44
    g(f"v_cvt_pk_bf16_f32 v{B0}, v{D}, v{D+1}")
    g(f"v_cvt_pk_bf16_f32 v{B0+1}, v{D+2}, v{D+3}")
    g("s_waitcnt lgkmcnt(0)")
    def mv(c):
        for i in range(2):
            g(f"v_mov_b32_dpp v{B0+2*c+i}, v{B0+i} row_shl:{c} row_mask:0xf bank_mask:0xf bound_ctrl:0")
    mv(1)
    mv(2)
    for step in range(4):
        for j in range(4):
            c = "0" if step == 0 else vq(vO + 4 * j)
            g(f"v_mfma_f32_16x16x32_bf16 {vq(vO+4*j)}, {vq(B0+4*step)}, {vq(WT+16*step+4*j)}, {c}")
            if step * 4 + j < 5:
                mv(3 + step * 4 + j)
    if not sigearly:
        g(f"ds_add_u32 v{vZ0}, v{vZ1} offset:{L_KD}")
    else:
        g("s_nop 0")
    g("s_mov_b64 exec, 0xffff")
    g("s_nop 2")
    YO = 20
    for j in range(4):
        g(f"v_bfi_b32 v{YO+j}, v{vFF}, s{sTAG}, v{vO+4*j}")
    g(f"buffer_store_dwordx4 {vq(YO)}, v{vV}, {srd(SWS)}, s{sYS} offen {yfl}")
    g("s_mov_b64 exec, -1")
    g.stamp(6)
    g("s_branch L_fin")

    g.label("L_helper")
    g(f"v_mov_b32 v7, 0")
    g(f"v_lshlrev_b32 v8, 2, v0")
    g(f"ds_write_b32 v8, v7 offset:{L_TAG}")
    g(f"v_mov_b32 v9, 12")
    g(f"ds_write_b32 v7, v9 offset:{L_CNT}")
    g(f"v_mov_b32 v9, {eth}")
    g(f"ds_write_b32 v7, v9 offset:{L_TH}")
    g(f"v_and_b32 v8, 12, v8")
    g(f"v_mov_b32 v9, 0xff800000")
    g(f"ds_write_b32 v8, v9 offset:{L_MAX}")
    if bar0 == 0:
        g("s_waitcnt lgkmcnt(0)")
        g("s_barrier")
    g("s_setprio 3")
    g.srd_consts(SX, 4096)
    g.srd_consts(SWQ, 512 * 4096 * 2)
    hT = 20
    hACC = 32
    R = 48
    XR = 64
    XF = 80
    WF = 128
    vX, vTAG, vTR, vFFh, vH4h = 2, 6, 9, 11, 8
    sU, sC1 = 52, 54
    g(f"s_and_b32 s{sU}, s{sS}, 1")
    g(f"v_and_b32 v3, 3, v0")
    g(f"v_lshlrev_b32 v{vX}, 10, v3")
    g(f"v_bfe_u32 v4, v0, 2, 2")
    g(f"s_lshl_b32 s{sT0}, s{sU}, 1")
    g(f"v_xor_b32 v5, s{sT0}, v4")
    g(f"v_lshl_add_u32 v{vX}, v5, 6, v{vX}")
    g(f"v_lshrrev_b32 v5, 4, v0")
    g(f"v_lshl_add_u32 v{vX}, v5, 4, v{vX}")
    SXO = (56, 57, 58, 59)
    for j in range(4):
        g(f"s_xor_b32 s{SXO[j]}, s{sB}, {j}")
        g(f"s_lshl_b32 s{SXO[j]}, s{SXO[j]}, 8")
    g(f"v_lshrrev_b32 v10, 3, v0")
    g(f"v_and_b32 v11, 7, v0")
    g(f"v_lshlrev_b32 v11, 4, v11")
    VQ, V1, V2 = 112, 116, 120
    g(f"v_lshl_add_u32 v{VQ}, v10, 13, v11")
    for i in range(1, 4):
        g(f"v_add_u32 v{VQ+i}, {hex(i*(8*8192 - 1024))}, v{VQ}")
    SQO = (sA, sBo, sIT, sT0)
    g(f"s_lshl_b32 s{sT1}, s{sH}, 3")
    g(f"s_add_u32 s{sT1}, s{sT1}, s{sS}")
    g(f"s_lshl_b32 s{sT1}, s{sT1}, 7")
    g(f"s_lshl_b32 s{sT2}, s{sB}, 20")
    g(f"s_add_u32 s{sT1}, s{sT1}, s{sT2}")
    if 'wq' in skip:
        g(f"s_mov_b32 s{sT1}, {hex(OOB)}")
    g(f"s_lshl_b32 s{sT2}, s{sU}, 19")
    g(f"s_add_u32 s{SQO[0]}, s{sT1}, s{sT2}")
    g(f"s_add_u32 s{SQO[1]}, s{SQO[0]}, {hex(32*8192)}")
    g(f"s_xor_b32 s{sT2}, s{sT2}, {hex(64*8192)}")
    g(f"s_add_u32 s{SQO[2]}, s{sT1}, s{sT2}")
    g(f"s_add_u32 s{SQO[3]}, s{SQO[2]}, {hex(32*8192)}")
    g(f"s_mov_b32 s{sSPIN}, {hex(W_EP)}")
    g(f"s_mov_b32 m0, {L_WQ}")
    g("s_waitcnt lgkmcnt(0)")
    for j in range(4):
        g(f"buffer_load_dwordx4 {vq(XR+4*j)}, v{vX}, {srd(SX)}, s{SXO[j]} offen {xf}")
    g(f"buffer_load_dword v{vTAG}, v7, {srd(SWS)}, s{sSPIN} offen {epf}")
    for n, so in enumerate(SQO):
        for i in range(4):
            g(f"buffer_load_dwordx4 v{VQ+i}, {srd(SWQ)}, s{so} offen offset:{1024*i} {wflags} lds")
        if n + 1 == bar0:
            g("s_barrier")
        if n < 3:
            g(f"s_add_u32 m0, m0, 4096")
            g("s_nop 0")
    for (b_, off, nb) in ((SB1, 56, 1792 * 2), (SB2, 72, 1024), (SW1, 48, 512 * 1792 * 2), (SW2, 64, 1792 * 512 * 2), (SOUT, 80, 4096)):
        g.srd_load(b_, off)
        g.srd_consts(b_, nb)
    g(f"s_lshr_b32 s{sC1}, s{sS}, 1")
    g(f"s_lshl_b32 s{sC1}, s{sC1}, 3")
    g(f"s_add_u32 s{sC1}, s{sC1}, s{sH}")
    vQS = 10
    g(f"v_lshlrev_b32 v{vQS}, 8, v3")
    g(f"v_lshl_add_u32 v{vQS}, v4, 6, v{vQS}")
    g(f"v_lshl_add_u32 v{vQS}, v5, 4, v{vQS}")
    sOWN, sOWNH, sOWNZ = sA, sBo, sIT
    g(f"s_lshl_b32 s{sOWN}, s2, 10")
    g(f"s_add_u32 s{sOWNH}, s{sOWN}, {hex(A_H)}")
    g(f"s_add_u32 s{sOWNZ}, s{sOWN}, {hex(A_Z)}")
    g(f"v_lshlrev_b32 v{vTR}, 10, v5")
    g(f"v_lshl_add_u32 v{vTR}, v4, 7, v{vTR}")
    g(f"v_lshl_add_u32 v{vTR}, v3, 3, v{vTR}")
    g(f"v_mov_b32 v{vFFh}, 0xff")
    SM1, SM2, SM3 = 12, 14, 68
    for (sm, c) in ((SM1, 1), (SM2, 2), (SM3, 3)):
        g(f"s_mov_b32 s{sm}, {hex(0x000f000f << (4*c))}")
        g(f"s_mov_b32 s{sm+1}, {hex(0x000f000f << (4*c))}")
    def red4(v, t):
        for r in (4, 8):
            g("s_nop 1")
            g(f"v_add_f32_dpp v{v}, v{v}, v{v} row_ror:{r} row_mask:0xf bank_mask:0xf")
        for sw in ("v_permlane16_swap_b32", "v_permlane32_swap_b32"):
            g(f"v_mov_b32 v{t}, v{v}")
            g("s_nop 1")
            g(f"{sw} v{v}, v{t}")
            g(f"v_add_f32 v{v}, v{v}, v{t}")
    NY = 16
    g(f"s_waitcnt vmcnt({NY + 1})")
    for i in range(16):
        g(f"v_lshlrev_b32 v{XF+2*i}, 16, v{XR+i}")
        g(f"v_and_b32 v{XF+2*i+1}, s{sHI}, v{XR+i}")
    g(f"v_pk_add_f32 {vq(hT,2)}, {vq(XF,2)}, {vq(XF+2,2)}")
    g(f"v_pk_add_f32 {vq(hT+2,2)}, {vq(XF+4,2)}, {vq(XF+6,2)}")
    for i in range(4, 16):
        d = hT + 2 * (i & 1)
        g(f"v_pk_add_f32 {vq(d,2)}, {vq(d,2)}, {vq(XF+2*i,2)}")
    g(f"v_pk_add_f32 {vq(hT,2)}, {vq(hT,2)}, {vq(hT+2,2)}")
    g(f"v_add_f32 v{hT}, v{hT}, v{hT+1}")
    red4(hT, hT + 1)
    g(f"v_mul_f32 v{hT}, {f32(-1.0/512)}, v{hT}")
    g(f"v_mov_b32 v{hT+1}, v{hT}")
    for i in range(16):
        t = hT + 6 + 2 * (i & 1)
        d = hT + 2 + 2 * (i & 1)
        g(f"v_pk_add_f32 {vq(t,2)}, {vq(XF+2*i,2)}, {vq(hT,2)}")
        if i < 2:
            g(f"v_pk_mul_f32 {vq(d,2)}, {vq(t,2)}, {vq(t,2)}")
        else:
            g(f"v_pk_fma_f32 {vq(d,2)}, {vq(t,2)}, {vq(t,2)}, {vq(d,2)}")
    g(f"v_pk_add_f32 {vq(hT+2,2)}, {vq(hT+2,2)}, {vq(hT+4,2)}")
    g(f"v_add_f32 v{hT+2}, v{hT+2}, v{hT+3}")
    rne(g, hT, hT)
    red4(hT + 2, hT + 3)
    g(f"v_mul_f32 v{hT+2}, {f32(1.0/512)}, v{hT+2}")
    rne(g, hT + 2, hT + 2)
    g(f"v_add_f32 v{hT+2}, {f32(1e-5)}, v{hT+2}")
    rne(g, hT + 2, hT + 2)
    g(f"v_sqrt_f32 v{hT+2}, v{hT+2}")
    for i in range(8):
        g(f"v_add_f32 v{XF+i}, v{XF+i}, v{hT}")
    rne(g, hT + 2, hT + 2)
    g(f"v_rcp_f32 v{hT+4}, v{hT+2}")
    def round8(F, T):
        for i in range(4):
            g(f"v_cvt_pk_bf16_f32 v{T+i}, v{F+2*i}, v{F+2*i+1}")
        for i in range(4):
            g(f"v_lshlrev_b32 v{F+2*i}, 16, v{T+i}")
            g(f"v_and_b32 v{F+2*i+1}, s{sHI}, v{T+i}")
    round8(XF, R)
    for i in range(8):
        g(f"v_mul_f32 v{XF+8+i}, v{XF+i}, v{hT+4}")
    for i in range(8):
        g(f"v_fma_f32 v{XF+i}, -v{XF+8+i}, v{hT+2}, v{XF+i}")
    for i in range(8):
        g(f"v_fma_f32 v{XF+i}, v{XF+i}, v{hT+4}, v{XF+8+i}")
    for i in range(4):
        g(f"v_cvt_pk_bf16_f32 v{R+i}, v{XF+2*i}, v{XF+2*i+1}")
    g.stamp(1)
    g(f"s_waitcnt vmcnt({NY})")
    g(f"v_add_u32 v{vTAG}, 1, v{vTAG}")
    for t in range(1, 4):
        for i in range(4):
            g(f"v_mov_b32_dpp v{R+4*t+i}, v{R+i} row_ror:{4*t} row_mask:0xf bank_mask:0xf")
    g(f"v_readfirstlane_b32 s{sTAG}, v{vTAG}")
    sTAGQ, sRP = 70, 71
    g(f"s_getreg_b32 s{sTAGQ}, hwreg(HW_REG_XCC_ID)")
    g(f"s_and_b32 s{sTAGQ}, s{sTAGQ}, 7")
    g(f"s_lshl_b32 s{sTAGQ}, s{sTAGQ}, 5")
    g(f"s_and_b32 s{sRP}, s{sTAG}, 31")
    g(f"s_or_b32 s{sTAGQ}, s{sTAGQ}, s{sRP}")

    def gemm1(base, nstep, vm, off, tg):
        for s_ in range(nstep):
            g(f"s_waitcnt vmcnt({vm - 4*(s_+1)})")
            for c in range(4):
                for half in range(2):
                    g(f"ds_read_b64_tr_b16 {vq(WF+16*s_+4*c+2*half,2)}, v{vTR} offset:{base + 4096*s_ + 512*half + 32*c}")
            g("s_waitcnt lgkmcnt(0)")
            for c in range(4):
                cc = "0" if s_ == 0 else vq(hACC + 4 * c)
                g(f"v_mfma_f32_16x16x32_bf16 {vq(hACC+4*c)}, {vq(WF+16*s_+4*c)}, {vq(R+4*((c-s_)&3))}, {cc}")
        g("s_nop 5")
        for (sm, c) in ((SM1, 1), (SM2, 2), (SM3, 3)):
            for r in range(4):
                g(f"v_cndmask_b32 v{hACC+r}, v{hACC+r}, v{hACC+4*c+r}, s[{sm}:{sm+1}]")
        for r in range(4):
            g(f"v_bfi_b32 v{hT+off+r}, v{vFFh}, s{tg}, v{hACC+r}")

    gemm1(L_WQ, 4, 16, 0, sTAGQ)
    g(f"buffer_store_dwordx4 {vq(hT)}, v{vQS}, {srd(SWS)}, s{sOWN} offen {'' if fast else 'sc1'}")
    g.stamp(2)
    g(f"v_mov_b32 v12, s{sTAG}")
    g(f"ds_write_b32 v7, v12 offset:{L_TAG}")
    SQG = (20, 21, 22, 23)
    def qpart():
        g(f"v_lshrrev_b32 v124, 3, v0")
        g(f"v_lshlrev_b32 v124, 13, v124")
        g(f"v_and_b32 v13, 7, v0")
        g(f"v_lshl_add_u32 v124, v13, 5, v124")
        g(f"s_lshl_b32 s{SQG[0]}, s{sH}, 10")
        g(f"s_lshl_b32 s{sT0}, s{sB}, 8")
        g(f"s_add_u32 s{SQG[0]}, s{SQG[0]}, s{sT0}")
        for j in range(1, 4):
            g(f"s_add_u32 s{SQG[j]}, s{SQG[0]}, {hex(j << 16)}")
        g(f"v_lshlrev_b32 v13, 4, v0")
        if qwait and not w1first:
            g(f"s_sleep {qwait}")
        QG = 64
        def republish():
            g(f"buffer_store_dwordx4 {vq(hT)}, v{vQS}, {srd(SWS)}, s{sOWN} offen sc1")
        g(f"s_mov_b32 s{sSPIN}, 0")
        g.label("L_pollq")
        for j in range(4):
            for i in range(2):
                g(f"buffer_load_dwordx4 {vq(QG+8*j+4*i)}, v124, {srd(SWS)}, s{SQG[j]} offen offset:{16*i} sc1")
        g("s_waitcnt vmcnt(0)")
        tagcheck(g, [QG + i for i in range(32)], 30, 31, sTAGQ, 0x1f)
        g("s_cbranch_vccz L_gotq")
        g(f"s_add_u32 s{sSPIN}, s{sSPIN}, 1")
        g(f"s_cmp_lg_u32 s{sSPIN}, {repub}")
        g("s_cbranch_scc1 L_norp")
        g("s_mov_b64 exec, -1")
        republish()
        g.label("L_norp")
        g("s_mov_b64 exec, vcc")
        g("s_sleep 4")
        g(f"s_cmp_lt_u32 s{sSPIN}, {hex(spin_max)}")
        g("s_cbranch_scc1 L_pollq")
        g.label("L_gotq")
        g("s_mov_b64 exec, -1")
        g(f"v_and_b32 v30, 0xe0, v30")
        g(f"v_cmp_ne_u32 vcc, 0, v30")
        g(f"v_mov_b32 v31, 1")
        g("s_cbranch_vccz L_same")
        g(f"v_mov_b32 v31, 2")
        republish()
        g.label("L_same")
        g.stamp(4)
        def sum4():
            for i in range(4):
                g(f"v_pk_add_f32 {vq(QG+2*i,2)}, {vq(QG+2*i,2)}, {vq(QG+8+2*i,2)}")
                g(f"v_pk_add_f32 {vq(QG+16+2*i,2)}, {vq(QG+16+2*i,2)}, {vq(QG+24+2*i,2)}")
            for i in range(4):
                g(f"v_pk_add_f32 {vq(QG+2*i,2)}, {vq(QG+2*i,2)}, {vq(QG+16+2*i,2)}")
        sum4()
        for i in range(4):
            g(f"v_cvt_pk_bf16_f32 v{hACC+i}, v{QG+2*i}, v{QG+2*i+1}")
        g(f"ds_write_b128 v13, {vq(hACC)} offset:{L_Q}")
        g(f"ds_write_b32 v7, v31 offset:{L_TAG+4}")
        if diag and probe is None:
            g(f"s_mov_b32 s{sSTAMP+6}, s{sSPIN}")
        g.stamp(5)
        g("s_setprio 0")
        g(f"v_readfirstlane_b32 s55, v31")
    QG = 64
    def sum4():
        for i in range(4):
            g(f"v_pk_add_f32 {vq(QG+2*i,2)}, {vq(QG+2*i,2)}, {vq(QG+8+2*i,2)}")
            g(f"v_pk_add_f32 {vq(QG+16+2*i,2)}, {vq(QG+16+2*i,2)}, {vq(QG+24+2*i,2)}")
        for i in range(4):
            g(f"v_pk_add_f32 {vq(QG+2*i,2)}, {vq(QG+2*i,2)}, {vq(QG+16+2*i,2)}")
    if not w1first:
        qpart()
    sSLOWH, sOO = 55, 53
    g(f"v_and_b32 v14, 1, v4")
    g(f"v_lshlrev_b32 v14, 6, v14")
    g(f"v_lshl_add_u32 v14, v5, 4, v14")
    g(f"s_lshl_b32 s8, s{sC1}, 7")
    g(f"v_and_b32 v15, 1, v0")
    g(f"v_lshlrev_b32 v15, 1, v15")
    g(f"v_lshl_add_u32 v15, v5, 5, v15")
    g(f"s_lshl_b32 s9, s{sS}, 7")
    g(f"s_lshl_b32 s{sT3}, s{sH}, 2")
    g(f"s_add_u32 s9, s9, s{sT3}")
    g(f"s_lshl_b32 s{sOO}, s{sB}, 10")
    g(f"s_add_u32 s{sOO}, s{sOO}, s9")
    g(f"v_lshrrev_b32 v12, 1, v4")
    g(f"v_lshlrev_b32 v12, 17, v12")
    g(f"v_lshl_add_u32 v12, v3, 8, v12")
    g(f"v_lshl_add_u32 v12, v14, 1, v12")
    g(f"s_and_b32 s{SXO[0]}, s2, 0x37")
    g(f"s_lshl_b32 s{SXO[0]}, s{SXO[0]}, 10")
    g(f"s_add_u32 s{SXO[0]}, s{SXO[0]}, {hex(A_H)}")
    g(f"s_add_u32 s{SXO[1]}, s{SXO[0]}, {hex(8 << 10)}")
    g(f"s_add_u32 s{SXO[2]}, s{SXO[0]}, {hex(64 << 10)}")
    g(f"s_add_u32 s{SXO[3]}, s{SXO[0]}, {hex(72 << 10)}")
    g(f"v_lshrrev_b32 v30, 3, v0")
    g(f"v_and_b32 v1, 7, v0")
    g(f"v_lshlrev_b32 v1, 4, v1")
    g(f"v_mul_u32_u24 v{V1}, 3584, v30")
    g(f"v_add_u32 v{V1}, v{V1}, v1")
    g(f"v_lshl_add_u32 v{V2}, v30, 10, v1")
    for (V, rs) in ((V1, 3584), (V2, 1024)):
        for i in range(1, 4):
            g(f"v_add_u32 v{V+i}, {hex(i*(8*rs - 1024))}, v{V}")
    g(f"v_lshlrev_b32 v1, 10, v30")
    g(f"v_lshl_add_u32 v1, v3, 4, v1")
    g(f"s_lshl_b32 s{sT4}, s{sB}, 1")
    g(f"s_add_u32 s{sT4}, s{sT4}, s{sU}")
    g(f"s_mul_i32 s{sT1}, s{sT4}, {64*3584}")
    g(f"s_add_u32 s{sT1}, s{sT1}, s8")
    g(f"s_lshl_b32 s{sT3}, s{sC1}, 16")
    g(f"s_lshl_b32 s{sT4}, s{sT4}, 7")
    g(f"s_add_u32 s{sT3}, s{sT3}, s{sT4}")
    g(f"s_add_u32 s{sT2}, s{sT1}, {32*3584}")
    g(f"s_add_u32 s{sT4}, s{sT3}, {32*1024}")
    g(f"s_mov_b32 m0, {L_W1}")
    g(f"buffer_load_ushort v28, v15, {srd(SX)}, s{sOO} offen")
    g(f"buffer_load_ushort v29, v15, {srd(SB2)}, s9 offen")
    if otouch:
        g(f"s_mov_b64 exec, 1")
        g(f"buffer_store_short v7, v15, {srd(SOUT)}, s{sOO} offen")
        g(f"s_mov_b64 exec, -1")
    g(f"s_cmp_ge_u32 s{sC1}, 28")
    g("s_cbranch_scc1 L_noffn0" if w1first else "s_cbranch_scc1 L_noffn1")
    g(f"buffer_load_dwordx4 {vq(16)}, v14, {srd(SB1)}, s8 offen")
    for so in (sT1, sT2):
        for i in range(4):
            g(f"buffer_load_dwordx4 v{V1+i}, {srd(SW1)}, s{so} offen offset:{1024*i} {wflags} lds")
        g(f"s_add_u32 m0, m0, 4096")
        g("s_nop 0")
    gemm1(L_W1, 2, 8, 4, sTAG)
    g.label("L_noffn0")
    if w1first:
        qpart()
        g(f"s_cmp_ge_u32 s{sC1}, 28")
        g("s_cbranch_scc1 L_noffn1")
    store_mode("h", f"buffer_store_dwordx4 {vq(hT+4)}, v{vQS}, {srd(SWS)}, s{sOWNH} offen", sSLOWH)
    g.label("L_noffn1")
    def control(tag, c0, dc, c1_, rk):
        g(f"s_cmp_eq_u32 s{sSLOWH}, 1")
        g(f"s_cbranch_scc0 L_noctl{tag}")
        g(f"s_lshl_b32 s{sT1}, s{sH}, 7")
        g(f"s_add_u32 s{sT1}, s{sT1}, {hex(A_C)}")
        g(f"s_lshr_b32 s{sT2}, s2, 3")
        g(f"s_lshl_b32 s{sT2}, s{sT2}, 2")
        g(f"s_add_u32 s{sT2}, s{sT2}, s{sT1}")
        g(f"v_and_b32 v124, 31, v0")
        g(f"v_lshlrev_b32 v124, 2, v124")
        g(f"s_mov_b32 s20, {c0}")
        g(f"s_and_b32 s11, s{sTAG}, 0xff")
        g.label(f"L_ctl{tag}")
        ldswait(f"ctl{tag}", L_CNT, "s20", 4, 7, 30)
        g(f"s_lshl_b32 s21, s20, 8")
        g(f"s_or_b32 s21, s21, s11")
        g(f"v_mov_b32 v125, s21")
        g(f"buffer_load_dword v126, v124, {srd(SWS)}, s{sT1} offen sc1")
        g(f"buffer_store_dword v125, v7, {srd(SWS)}, s{sT2} offen")
        g("s_waitcnt vmcnt(1)")
        g(f"v_and_b32 v127, 0xffff00ff, v126")
        g(f"v_cmp_eq_u32 vcc, s11, v127")
        g(f"v_cmp_le_u32 s[{sMASK2}:{sMASK2+1}], v125, v126")
        g(f"s_and_b32 s21, vcc_lo, s{sMASK2}")
        g(f"s_bcnt1_i32_b32 s21, s21")
        g(f"s_cmp_ge_u32 s21, {rk}")
        g(f"s_cselect_b32 s21, 0, {eth}")
        g(f"v_mov_b32 v127, s21")
        g(f"ds_write_b32 v7, v127 offset:{L_TH}")
        g(f"s_add_u32 s20, s20, {dc}")
        g(f"s_cmp_le_u32 s20, {c1_}")
        g(f"s_cbranch_scc1 L_ctl{tag}")
        g.label(f"L_noctl{tag}")
    if ctl is not None:
        control("a", ctl[0], ctl[1], cs, ctl[3])
    ldswait("kdh", L_KD, 512, 8, 7, 30)
    MX, MC, LS = 32, 33, 34
    g(f"ds_read_b32 v{MX}, v{vH4h} offset:{L_MAX}")
    SCR = 128
    for i in range(16):
        g(f"ds_read_b128 {vq(SCR+4*i)}, v13 offset:{L_SC + 1024*i}")
    g(f"s_mov_b32 s10, {f32(LOG2E)}")
    g("s_waitcnt lgkmcnt(0)")
    rne(g, MX, MX)
    g(f"v_mul_f32 v{MC}, s10, v{MX}")
    for i in range(4):
        g(f"v_mov_b32 v{LS+i}, 0")
    EX = 64
    for blk in range(4):
        for i in range(16):
            g(f"v_lshlrev_b32 v{EX+2*i}, 16, v{SCR+16*blk+i}")
            g(f"v_and_b32 v{EX+2*i+1}, s{sHI}, v{SCR+16*blk+i}")
        for i in range(32):
            g(f"v_fma_f32 v{EX+i}, v{EX+i}, s10, -v{MC}")
        for i in range(32):
            g(f"v_exp_f32 v{EX+i}, v{EX+i}")
        for i in range(32):
            g(f"v_add_f32 v{LS+(i&3)}, v{LS+(i&3)}, v{EX+i}")
    g(f"v_add_f32 v{LS}, v{LS}, v{LS+1}")
    g(f"v_add_f32 v{LS+2}, v{LS+2}, v{LS+3}")
    g(f"v_add_f32 v{LS}, v{LS}, v{LS+2}")
    red4(LS, LS + 1)
    for i in range(4):
        g(f"v_bfi_b32 v{40+i}, v{vFFh}, s{sTAG}, v{MX if i % 2 == 0 else LS}")
    g(f"s_lshl_b32 s{sT0}, s2, 7")
    g(f"s_add_u32 s{sT0}, s{sT0}, {hex(A_S)}")
    g("s_mov_b64 exec, 0xff")
    store_mode("s", f"buffer_store_dwordx4 {vq(40)}, v13, {srd(SWS)}, s{sT0} offen", sSLOWH)
    g("s_mov_b64 exec, -1")
    g(f"s_and_b32 s{sT0}, s2, 0xc7")
    g(f"s_lshl_b32 s{sT0}, s{sT0}, 7")
    g(f"s_add_u32 s{sT0}, s{sT0}, {hex(A_S)}")
    if ctl is not None and cs + ctl[1] <= ctl[2]:
        control("b", cs + ctl[1], ctl[1], ctl[2], ctl[3])
    ldswait("st", L_CNT, sth, 4, 7, 30)
    ST = 44
    poll("s", [f"buffer_load_dwordx2 {vq(ST,2)}, v1, {srd(SWS)}, s{sT0} offen sc1"], [ST, ST + 1, ST], 30, 8)
    C1h, C2h, C3h = 46, 47, 36
    g(f"v_and_b32 v{ST}, s{sHI}, v{ST}")
    g("s_nop 1")
    g(f"v_max_f32_dpp v{C1h}, v{ST}, v{ST} row_ror:8 row_mask:0xf bank_mask:0xf")
    for sw in ("v_permlane16_swap_b32", "v_permlane32_swap_b32"):
        g(f"v_mov_b32 v{C3h}, v{C1h}")
        g("s_nop 1")
        g(f"{sw} v{C1h}, v{C3h}")
        g(f"v_max_f32 v{C1h}, v{C1h}, v{C3h}")
    g(f"v_sub_f32 v{C2h}, v{ST}, v{C1h}")
    g(f"v_sub_f32 v{MX}, v{MX}, v{C1h}")
    g(f"v_mul_f32 v{C2h}, s10, v{C2h}")
    g(f"v_mul_f32 v{MX}, s10, v{MX}")
    g(f"v_exp_f32 v{C2h}, v{C2h}")
    g(f"v_exp_f32 v{MX}, v{MX}")
    g(f"v_mul_f32 v{C2h}, v{C2h}, v{ST+1}")
    g("s_nop 1")
    g(f"v_add_f32_dpp v{C2h}, v{C2h}, v{C2h} row_ror:8 row_mask:0xf bank_mask:0xf")
    for sw in ("v_permlane16_swap_b32", "v_permlane32_swap_b32"):
        g(f"v_mov_b32 v{C3h}, v{C2h}")
        g("s_nop 1")
        g(f"{sw} v{C2h}, v{C3h}")
        g(f"v_add_f32 v{C2h}, v{C2h}, v{C3h}")
    g(f"v_rcp_f32 v{C2h}, v{C2h}")
    g(f"v_mov_b32 v{MX+1}, 1")
    g(f"v_lshlrev_b32 v30, 1, v{vH4h}")
    g(f"v_mul_f32 v{MX}, v{MX}, v{C2h}")
    g(f"ds_write_b64 v30, {vq(MX,2)} offset:{L_F}")
    g.stamp(1)
    g(f"s_cmp_ge_u32 s{sC1}, 28")
    g("s_cbranch_scc1 L_noffn")
    ldswait("trig", L_CNT, 64 + trig, 4, 7, 30)
    g.stamp(10)
    for n, so in enumerate((sT3, sT4)):
        for i in range(4):
            g(f"buffer_load_dwordx4 v{V2+i}, {srd(SW2)}, s{so} offen offset:{1024*i} {wflags} lds")
        if n < 1:
            g(f"s_add_u32 m0, m0, 4096")
            g("s_nop 0")
    poll("h", [f"buffer_load_dwordx4 {vq(QG+8*j+4*i)}, v12, {srd(SWS)}, s{SXO[j]} offen offset:{16*i} sc1"
               for j in range(4) for i in range(2)], [QG + i for i in range(32)], 30, 2)
    for s_ in range(2):
        for j in range(4):
            for half in range(2):
                g(f"ds_read_b64_tr_b16 {vq(WF+16*s_+4*j+2*half,2)}, v{vTR} offset:{L_W2 + 4096*s_ + 512*half + 32*j}")
    sum4()
    g("s_nop 1")
    for i in range(8):
        g(f"v_add_f32_dpp v{QG+i}, v{QG+i}, v{QG+i} row_ror:8 row_mask:0xf bank_mask:0xf")
    round8(QG, hT)
    for i in range(4):
        g(f"v_lshlrev_b32 v{hT+4}, 16, v{16+i}")
        g(f"v_and_b32 v{hT+5}, s{sHI}, v{16+i}")
        g(f"v_add_f32 v{QG+2*i}, v{QG+2*i}, v{hT+4}")
        g(f"v_add_f32 v{QG+2*i+1}, v{QG+2*i+1}, v{hT+5}")
    round8(QG, hT)
    for i in range(8):
        g(f"v_max_f32 v{QG+i}, 0, v{QG+i}")
    for i in range(8):
        g(f"v_mul_f32 v{QG+i}, v{QG+i}, v{QG+i}")
    for i in range(4):
        g(f"v_cvt_pk_bf16_f32 v{R+i}, v{QG+2*i}, v{QG+2*i+1}")
    g("s_nop 0")
    for i in range(4):
        g(f"v_mov_b32_dpp v{R+4+i}, v{R+i} row_ror:4 row_mask:0xf bank_mask:0xf")
    g.stamp(6)
    g("s_waitcnt lgkmcnt(0)")
    g("s_nop 0")
    for s_ in range(2):
        for j in range(4):
            cc = "0" if s_ == 0 else vq(hACC + 4 * j)
            g(f"v_mfma_f32_16x16x32_bf16 {vq(hACC+4*j)}, {vq(R+4*s_)}, {vq(WF+16*s_+4*j)}, {cc}")
    g("s_nop 7")
    for b_ in range(4):
        for j in range(4):
            g(f"v_bfi_b32 v{QG+4*b_+j}, v{vFFh}, s{sTAG}, v{hACC+4*j+b_}")
    g("s_mov_b64 exec, 0xffff")
    for b_ in range(4):
        g(f"buffer_store_dwordx4 {vq(QG+4*b_)}, v13, {srd(SWS)}, s{sOWNZ} offen offset:{256*b_} {zfl}")
    g("s_mov_b64 exec, -1")
    g.label("L_noffn")
    g.stamp(7)
    g(f"v_bfe_u32 v14, v0, 1, 3")
    g(f"v_lshlrev_b32 v14, 10, v14")
    g(f"v_and_b32 v12, 1, v0")
    g(f"v_lshl_add_u32 v14, v12, 4, v14")
    g(f"v_lshl_add_u32 v12, v5, 14, v14")
    g(f"v_lshl_add_u32 v14, v5, 16, v14")
    g(f"s_lshl_b32 s{sT2}, s{sB}, 8")
    g(f"s_lshl_b32 s{sT1}, s{sH}, 5")
    g(f"s_add_u32 s{sT2}, s{sT2}, s{sT1}")
    g(f"s_lshr_b32 s{sT0}, s{sS}, 1")
    g(f"s_lshl_b32 s{sT0}, s{sT0}, 16")
    g(f"s_lshl_b32 s{sT1}, s{sU}, 13")
    g(f"s_add_u32 s{sT0}, s{sT0}, s{sT1}")
    g(f"s_add_u32 s{sT0}, s{sT0}, s{sT2}")
    g(f"s_add_u32 s{sT0}, s{sT0}, {hex(A_Z)}")
    g(f"s_lshl_b32 s{sT1}, s{sS}, 13")
    g(f"s_add_u32 s{sT1}, s{sT1}, s{sT2}")
    g(f"s_add_u32 s{sT1}, s{sT1}, {hex(A_Y)}")
    Z, Y = 32, 36
    for i in range(4):
        g(f"v_mov_b32 v{Z+i}, 0")
    ldswait("y", L_KD, 512 + 64 * ysig, 1, 7, 30)
    g(f"s_mov_b32 s{sMASK2}, -1")
    g(f"s_mov_b32 s{sMASK2+1}, 0x00ffffff")
    g(f"s_mov_b64 exec, s[{sMASK2}:{sMASK2+1}]")
    poll("z", [f"buffer_load_dwordx4 {vq(Z)}, v12, {srd(SWS)}, s{sT0} offen sc1"], [Z + i for i in range(4)], 30, zsleep)
    g.stamp(8)
    def gate():
        reduce32x4(g, Z)
        rne(g, Z, Z)
        g(f"v_lshlrev_b32 v29, 16, v29")
        g(f"v_add_f32 v{Z}, v{Z}, v29")
        rne(g, Z, Z)
        g(f"v_mul_f32 v30, {f32(-LOG2E)}, v{Z}")
        g(f"v_exp_f32 v30, v30")
        g("s_nop 0")
        g(f"v_add_f32 v30, 1.0, v30")
        g(f"v_rcp_f32 v30, v30")
        g("s_nop 0")
        g(f"v_mul_f32 v{Z}, v{Z}, v30")
        rne(g, Z, Z)
        g(f"v_lshlrev_b32 v{Z+1}, 16, v28")
        g(f"s_mov_b32 s{sMASK2}, 0x00030003")
        g(f"s_mov_b32 s{sMASK2+1}, 0x00030003")
    if ypipe < 2:
        poll("y", [f"buffer_load_dwordx4 {vq(Y)}, v14, {srd(SWS)}, s{sT1} offen sc1"], [Y + i for i in range(4)], 30, ysleep, gate)
    else:
        YB = [64 + 4 * i for i in range(ypipe)]
        ld = lambda i: g(f"buffer_load_dwordx4 {vq(YB[i])}, v14, {srd(SWS)}, s{sT1} offen sc1")
        ld(0)
        gate()
        for i in range(1, ypipe):
            ld(i)
        g(f"s_mov_b32 s{sSPIN}, 0")
        g.label("L_polly")
        for i in range(ypipe):
            g(f"s_waitcnt vmcnt({ypipe-1})")
            tagcheck(g, [YB[i] + j for j in range(4)], 30, 31)
            for j in range(4):
                g(f"v_mov_b32 v{Y+j}, v{YB[i]+j}")
            g("s_cbranch_vccz L_goty")
            g("s_mov_b64 exec, vcc")
            ld(i)
        g(f"s_add_u32 s{sSPIN}, s{sSPIN}, 1")
        g(f"s_cmp_lt_u32 s{sSPIN}, {hex(spin_max)}")
        g("s_cbranch_scc1 L_polly")
        g.label("L_goty")
        g("s_mov_b64 exec, -1")
    g.stamp(9)
    reduce32x4(g, Y)
    rne(g, Y, Y)
    g(f"v_mul_f32 v{Y}, v{Y}, v{Z}")
    rne(g, Y, Y)
    g(f"v_add_f32 v{Y}, v{Y}, v{Z+1}")
    g(f"v_cvt_pk_bf16_f32 v{Y}, v{Y}, v{Y}")
    g(f"s_mov_b64 exec, s[{sMASK2}:{sMASK2+1}]")
    g(f"buffer_store_short v{Y}, v15, {srd(SOUT)}, s{sOO} offen")
    g(f"s_cmp_lg_u32 s2, 0")
    g("s_cbranch_scc1 L_noep")
    g(f"s_mov_b32 s{sT0}, {hex(W_EP)}")
    g("s_mov_b64 exec, 1")
    g(f"v_mov_b32 v30, s{sTAG}")
    g(f"buffer_store_dword v30, v7, {srd(SWS)}, s{sT0} offen sc1")
    g.label("L_noep")
    g("s_mov_b64 exec, -1")

    g.label("L_fin")
    if probe is not None:
        role, idx = probe
        g("s_waitcnt vmcnt(0)")
        g.stamp(11)
        g("s_waitcnt lgkmcnt(0)")
        g(f"s_mov_b32 s{sT0}, s{sSTAMP}")
        if role == 'wg':
            g(f"s_cmp_lg_u32 s2, {idx}")
            g("s_cbranch_scc1 L_end")
            g(f"s_cmp_lg_u32 s{sWAVE}, 0")
            g("s_cbranch_scc1 L_end")
        g(f"s_cmp_eq_u32 s{sWAVE}, 0")
        if role == 'h':
            g(f"s_cselect_b32 s{sT0}, s{sSTAMP+2*idx}, s{sT0}")
        elif role == 's':
            g(f"s_cselect_b32 s{sT0}, s{sT0}, s{sSTAMP+2*idx}")
        g(f"s_add_u32 s{sT0}, s{sT0}, 10000")
        g.label("L_probe")
        g(f"s_memrealtime s[{sSTAMP+2}:{sSTAMP+3}]")
        g("s_waitcnt lgkmcnt(0)")
        g(f"s_sub_u32 s{sT1}, s{sSTAMP+2}, s{sT0}")
        g(f"s_cmp_lt_i32 s{sT1}, 0")
        g("s_cbranch_scc1 L_probe")
    if diag:
        g("s_waitcnt vmcnt(0)")
        g.stamp(11)
        g("s_waitcnt lgkmcnt(0)")
        g(f"s_mul_i32 s{sT0}, s2, 5")
        g(f"s_add_u32 s{sT0}, s{sT0}, s{sWAVE}")
        g(f"s_lshl_b32 s{sT0}, s{sT0}, 6")
        g(f"s_add_u32 s{sT0}, s{sT0}, {hex(W_DIAG)}")
        for i in range(12):
            g(f"v_mov_b32 v{8+i}, s{sSTAMP+2*i}")
        g(f"v_mov_b32 v20, s{sSPIN}")
        g(f"v_mov_b32 v22, s{sIT}")
        g("s_getreg_b32 s3, hwreg(HW_REG_XCC_ID)")
        g("v_mov_b32 v21, s3")
        g("v_mov_b32 v23, 0")
        g("v_mov_b32 v1, 0")
        g("s_mov_b64 exec, 1")
        for i in range(4):
            g(f"buffer_store_dwordx4 {vq(8+4*i)}, v1, {srd(SWS)}, s{sT0} offen offset:{16*i}")
    g.label("L_end")
    g("s_endpgm")
    out += g.L
    out += ['.section .rodata,"a"', ".p2align 6", f".amdhsa_kernel {NAME}_kernel",
            "  .amdhsa_next_free_vgpr 256", "  .amdhsa_next_free_sgpr 102", "  .amdhsa_accum_offset 256",
            "  .amdhsa_group_segment_fixed_size 0", "  .amdhsa_kernarg_size 104", "  .amdhsa_user_sgpr_count 2",
            "  .amdhsa_user_sgpr_kernarg_segment_ptr 1", "  .amdhsa_system_sgpr_workgroup_id_x 1",
            "  .amdhsa_float_denorm_mode_32 3",
            ".end_amdhsa_kernel"]
    return "\n".join(out) + "\n"


if __name__ == "__main__":
    kw = eval("dict(%s)" % (sys.argv[2] if len(sys.argv) > 2 else ""))
    open(sys.argv[1], "w").write(gen(**kw))
```

```python
import sys, struct

NAME = "recurrent_scan__gqa_block_cached__dense_activation_squared_relu__decode"

HEADER = """; Kernarg layout for this problem (104 bytes, ptrs only, base s[0:1]):
;   offset  24: d_in[3] A_wq  shape=(512, 4096) dtype=bfloat16
;   offset  32: d_in[4] A_wo  shape=(4096, 512) dtype=bfloat16
;   offset  96: d_ws      workspace (tagged hand-offs between workgroups)
; One workgroup per (batch b, kv head h, key split s of 2048 keys). Waves 1..4 stream first all K, then all V of
; Wave 0 does the small work: layernorm, a slice of the q projection, softmax statistics across the 8 splits,
; a slice of the FFN and the final reduction. Every word handed between workgroups carries a launch tag
; (epoch word of d_ws + 1) in its low bits; readers poll until the tag is there.
"""

def f32(x):
    return "0x%08x" % struct.unpack("<I", struct.pack("<f", x))[0]

LOG2E = 1.4426950408889634
SCALE = 128 ** -0.5

L_Q = 0
L_TAG, L_CNT, L_KD, L_MAX, L_JN, L_F, L_TH, L_WR = 2048, 2056, 2060, 2064, 2080, 2096, 2128, 2132
L_PART, HS, WSP = 3072, 528, 2112
L_WQ, L_W1, L_W2, L_WO, L_SIZE = 12288, 28672, 36864, 45056, 61440
L_SC = L_WQ
A_Q, A_H, A_Z, A_Y, A_P, A_S = 0, 0x40000, 0x80000, 0xc0000, 0x100000, 0x180000
A_C = 0x1a0000
W_EP = 0x1c0000
W_DIAG = 0x280000
W_SIZE = 0x400000
OOB = 0x10000000

SK, SV, SWS, SWO, SW2, SX, SWQ, SW1, SB1, SB2, SOUT = 8, 12, 16, 20, 24, 28, 32, 36, 40, 44, 48
sWAVE, sB, sH, sS = 3, 4, 5, 6
sDR = 55
sSELLO, sSELHI, sSCALE, sLOG2E, sA, sBo, sIT = 56, 57, 58, 59, 60, 61, 62
sT0, sT1, sT2, sT3, sT4 = 63, 64, 65, 66, 67
sMASK = 68
sMASK2 = 70
sSPIN = 72
sHI = 73
sW = 74
sTAG = 75
sSTAMP = 76


class G:
    def __init__(self, diag=False):
        self.L = []
        self.diag = diag
        self.nstamp = {}

    def __call__(self, s):
        self.L.append("  " + s)

    def label(self, s):
        self.L.append(s + ":")

    def comment(self, s):
        self.L.append("  ; " + s)

    def stamp(self, i):
        if self.diag:
            self(f"s_memrealtime s[{sSTAMP+2*i}:{sSTAMP+2*i+1}]")

    def srd_consts(self, base, nbytes):
        self(f"s_mov_b32 s{base+2}, {hex(nbytes)}")
        self(f"s_mov_b32 s{base+3}, 0x20000")

    def srd_load(self, base, off):
        self(f"s_load_dwordx2 s[{base}:{base+1}], s[0:1], {off}")


def srd(b):
    return f"s[{b}:{b+3}]"


def vq(r, n=4):
    return f"v[{r}:{r+n-1}]"


def perms(g, raw, e, dst):
    sel = sSELHI if (e & 1) else sSELLO
    for j in range(4):
        g(f"v_perm_b32 v{dst+j}, v{raw[2*j+1] + (e >> 1)}, v{raw[2*j] + (e >> 1)}, s{sel}")


def rne(g, dst, src):
    g(f"v_cvt_pk_bf16_f32 v{dst}, v{src}, v{src}")
    g(f"v_lshlrev_b32 v{dst}, 16, v{dst}")


def tagcheck(g, regs, c1, c2, tag=None, mask=0xff):
    regs = list(dict.fromkeys(regs))
    for r in regs:
        g(f"v_xor_b32 v{r}, s{sTAG if tag is None else tag}, v{r}")
    r = list(regs)
    acc = [c1, c2] if len(r) >= 8 else [c1]
    started = []
    i = 0
    while r:
        d = acc[i % len(acc)]
        if d not in started:
            if len(r) >= 3:
                g(f"v_or3_b32 v{d}, v{r[0]}, v{r[1]}, v{r[2]}")
                r = r[3:]
            else:
                g(f"v_or_b32 v{d}, v{r[0]}, v{r[1]}")
                r = r[2:]
            started.append(d)
        elif len(r) >= 2:
            g(f"v_or3_b32 v{d}, v{d}, v{r[0]}, v{r[1]}")
            r = r[2:]
        else:
            if len(started) == 2:
                g(f"v_or3_b32 v{c1}, v{c1}, v{c2}, v{r[0]}")
                started = [c1]
            else:
                g(f"v_or_b32 v{d}, v{d}, v{r[0]}")
            r = []
        i += 1
    if len(started) == 2:
        g(f"v_or_b32 v{c1}, v{c1}, v{c2}")
    g(f"v_and_b32 v{c2}, {hex(mask)}, v{c1}")
    g(f"v_cmp_ne_u32 vcc, 0, v{c2}")


def reduce32x4(g, a):
    g(f"v_permlane32_swap_b32 v{a}, v{a+2}")
    g(f"v_permlane32_swap_b32 v{a+1}, v{a+3}")
    g(f"v_add_f32 v{a}, v{a}, v{a+2}")
    g(f"v_add_f32 v{a+1}, v{a+1}, v{a+3}")
    g("s_nop 1")
    g(f"v_permlane16_swap_b32 v{a}, v{a+1}")
    g(f"v_add_f32 v{a}, v{a}, v{a+1}")
    for r in (8, 4, 2):
        g("s_nop 1")
        g(f"v_add_f32_dpp v{a}, v{a}, v{a} row_ror:{r} row_mask:0xf bank_mask:0xf")


def gen(diag=False, kvflags="nt", wflags="nt", pace=11, pace3=None, spin_max=1 << 18, skip=(), probe=None, qwait=20,
        remap=False, fast=True, repub=3, bar0=4, pf=False, trig=4, ysig=4, brk=True, hstop=None, notail=False, lpace=None, pgrp=4, ks=(2, 1, 2, 1), vs=(2, 1, 2, 1), ps=None, es=0, eth=52, ctl=(18, 6, 48, 22), bs=0, sigearly=True, ypipe=2, touch=False, otouch=False, w1first=True, sth=56, cs=42, ysleep=0, zsleep=0, p1sleep=0, zfl='sc1', yfl='sc1', epf='sc1', xf='', mark2=False, stouch=True, btouch=0, det=True, sprio=0, cf='sc1', gf='sc1', csf='', cnone=False,
        lay=(13, 15, 17, 18, 19, 12, 14, 16, 20, 21)):
    SPAN = 0x400000
    assert sorted(lay) == list(range(12, 22))
    tup = lambda x: (x,) * 4 if isinstance(x, int) else tuple(x)
    ps = tup(ks if ps is None else ps)
    ks, vs, es = tup(ks), tup(vs), tup(es)
    bs = tup(bs)
    lv = [ps, ks, vs, es, bs]
    nM = 4 + min(min(x) for x in lv)
    nK = nV = nM
    g = G(diag or probe is not None)
    out = [HEADER + f"; @launch grid=(256,1,1) block=(320,1,1) lds={L_SIZE}",
           '.amdgcn_target "amdgcn-amd-amdhsa--gfx950"', ".text", f".globl {NAME}_kernel", ".p2align 8",
           f".type {NAME}_kernel,@function", f"{NAME}_kernel:"]

    def poll(tag, loads, regs, t, sleep, first=None):
        g(f"s_mov_b32 s{sSPIN}, 0")
        if first is not None:
            for l in loads:
                g(l)
            first()
            g(f"s_branch L_pw{tag}")
        g.label(f"L_poll{tag}")
        for l in loads:
            g(l)
        g.label(f"L_pw{tag}")
        g("s_waitcnt vmcnt(0)")
        if tag == "1" and g.diag:
            g(f"s_cmp_lg_u32 s{sSPIN}, 0")
            g("s_cbranch_scc1 L_nost")
            g.stamp(10)
            g.label("L_nost")
        tagcheck(g, regs, t, t + 1)
        g(f"s_cbranch_vccz L_got{tag}")
        g("s_mov_b64 exec, vcc")
        if sleep:
            g(f"s_sleep {sleep}")
        g(f"s_add_u32 s{sSPIN}, s{sSPIN}, 1")
        g(f"s_cmp_lt_u32 s{sSPIN}, {hex(spin_max)}")
        g(f"s_cbranch_scc1 L_poll{tag}")
        g.label(f"L_got{tag}")
        g("s_mov_b64 exec, -1")

    def ldswait(tag, off, thr, sleep, vz, vt):
        g(f"s_mov_b32 s{sSPIN}, 0")
        g.label(f"L_w{tag}")
        g(f"ds_read_b32 v{vt}, v{vz} offset:{off}")
        g(f"s_add_u32 s{sSPIN}, s{sSPIN}, 1")
        g("s_waitcnt lgkmcnt(0)")
        g(f"v_cmp_le_u32 vcc, {thr}, v{vt}")
        g(f"s_cbranch_vccnz L_g{tag}")
        g(f"s_sleep {sleep}")
        g(f"s_cmp_lt_u32 s{sSPIN}, {hex(spin_max*16)}")
        g(f"s_cbranch_scc1 L_w{tag}")
        g.label(f"L_g{tag}")

    def store_mode(tag, instr, smode):
        if fast:
            g(f"s_cmp_eq_u32 s{smode}, 1")
            g(f"s_cbranch_scc0 L_sl{tag}")
            g(instr)
            g(f"s_branch L_sd{tag}")
            g.label(f"L_sl{tag}")
        g(instr + " sc1")
        g.label(f"L_sd{tag}")

    g("s_cmp_ge_u32 s2, 256")
    g("s_cbranch_scc1 L_end")
    g.srd_load(SX, 0)
    g.srd_load(SWQ, 24)
    g.srd_load(SWS, 96)
    g.srd_load(SK, 8)
    g.srd_consts(SWS, W_SIZE)
    g.stamp(0)
    if pf:
        g("s_getpc_b64 s[44:45]")
        g.label("L_pc0")
        g("s_lshr_b32 s46, s2, 3")
        g("s_lshl_b32 s46, s46, 9")
        g("v_and_b32 v2, 3, v0")
        g("v_lshl_add_u32 v2, v2, 7, s46")
        g("v_min_u32 v2, L_end - L_pc0, v2")
        g("global_load_dword v64, v2, s[44:45]")
    g("v_lshrrev_b32 v1, 6, v0")
    g("v_and_b32 v0, 63, v0")
    g(f"s_lshr_b32 s{sB}, s2, 6")
    g(f"v_readfirstlane_b32 s{sWAVE}, v1")
    if remap:
        g(f"s_and_b32 s{sS}, s2, 7")
        g(f"s_bfe_u32 s{sH}, s2, 0x30003")
        g(f"s_lshl_b32 s2, s{sB}, 3")
        g(f"s_add_u32 s2, s2, s{sS}")
        g(f"s_lshl_b32 s2, s2, 3")
        g(f"s_add_u32 s2, s2, s{sH}")
    else:
        g(f"s_and_b32 s{sH}, s2, 7")
        g(f"s_bfe_u32 s{sS}, s2, 0x30003")
    g(f"s_mov_b32 s{sHI}, 0xffff0000")
    g(f"s_cmp_eq_u32 s{sWAVE}, 0")
    g("s_cbranch_scc1 L_helper")

    vK, vV, vSC, vH4, vMC, vZ0, vZ1 = 1, 2, 3, 4, 5, 6, 7
    vQ, vT, vO = 8, 16, 32
    SLOT = [64, 128, 192]
    sWGB, sSLOW, sTH = 52, 53, 54
    sTI = (33, 34, 35)
    g.srd_consts(SK, SPAN)
    g(f"s_sub_u32 s{sW}, s{sWAVE}, 1")
    if touch:
        g(f"s_lshl_b32 s46, s{sW}, 3")
        g(f"s_add_u32 s46, s46, 48")
        g(f"s_load_dwordx2 s[44:45], s[0:1], s46")
        g.srd_load(SV, 16)
        g.srd_load(SWO, 32)
        g(f"s_lshl_b32 s46, s2, 12")
        g(f"s_lshl_b32 s47, s{sH}, 7")
        g(f"s_bitcmp1_b32 s{sW}, 0")
        g(f"s_cselect_b32 s46, s47, s46")
        g(f"v_mov_b32 v3, s46")
    g(f"s_lshl_b32 s{sWGB}, s{sB}, 3")
    g(f"s_add_u32 s{sWGB}, s{sWGB}, s{sH}")
    g(f"s_lshl_b32 s{sWGB}, s{sWGB}, 22")
    sROT = 39
    def scatter(dst, src, pos, first=None):
        i = 0
        while i < len(pos):
            n = 1
            while i + n < len(pos) and pos[i + n] == pos[i] + n:
                n += 1
            if first is None and i == 0:
                g(f"s_bfe_u32 s{dst}, s{src}, {hex((n << 16) + i)}")
                g(f"s_lshl_b32 s{dst}, s{dst}, {pos[i]}")
            else:
                g(f"s_bfe_u32 s{sT1}, s{src}, {hex((n << 16) + i)}")
                g(f"s_lshl_b32 s{sT1}, s{sT1}, {pos[i]}")
                g(f"s_or_b32 s{dst}, s{first if i == 0 else dst}, s{sT1}")
            i += n
    scatter(sROT, sS, lay[7:10])
    TPOS = lay[5:7] + lay[2:5]
    UOFF = [((u & 1) << lay[0]) + ((u >> 1) << lay[1]) for u in range(4)]
    scatter(sA, sW, lay[5:7], sROT)
    g(f"v_bfe_u32 v{vK}, v0, 1, 1")
    g(f"v_lshlrev_b32 v{vK}, 10, v{vK}")
    g(f"v_bfe_u32 v{vZ0}, v0, 2, 2")
    g(f"v_lshl_add_u32 v{vK}, v{vZ0}, 8, v{vK}")
    g(f"v_lshrrev_b32 v{vZ1}, 4, v0")
    g(f"v_lshl_add_u32 v{vK}, v{vZ1}, 5, v{vK}")
    g(f"v_and_b32 v{vZ0}, 1, v0")
    g(f"v_lshl_add_u32 v{vK}, v{vZ0}, 4, v{vK}")
    g("s_waitcnt lgkmcnt(0)")
    g(f"s_add_u32 s{SK}, s{SK}, s{sWGB}")
    g(f"s_addc_u32 s{SK+1}, s{SK+1}, 0")
    if touch:
        g(f"s_add_u32 s{SV}, s{SV}, s{sWGB}")
        g(f"s_addc_u32 s{SV+1}, s{SV+1}, 0")
        g(f"s_lshl_b32 s46, s{sH}, 19")
        g(f"s_lshr_b32 s47, s2, 3")
        g(f"s_lshl_b32 s47, s47, 14")
        g(f"s_add_u32 s46, s46, s47")
        g(f"s_add_u32 s46, s{SWO}, s46")
        g(f"s_addc_u32 s47, s{SWO+1}, 0")
        g(f"s_bitcmp1_b32 s{sW}, 0")
        g(f"s_cselect_b64 s[46:47], s[46:47], s[{SV}:{SV+1}]")
        g(f"v_mov_b32 v4, 0")
        g("global_load_dword v64, v3, s[44:45]")
        g("global_load_dword v64, v4, s[46:47] nt")
    g("s_barrier")

    def issue(X, isk, paced=None, sp=None):
        if sp is None:
            sp = ks if isk else vs
        for u in range(4):
            so = sA
            for j in range(4):
                vo, rs, off = (vK, SK, (j & 1) * 128 + (j >> 1) * 2048) if isk else (vV, SV, j * 1024)
                d = X + 16 * u + 4 * j
                if j < sp[u]:
                    g(f"buffer_load_dwordx2 {vq(d,2)}, v{vo}, {srd(rs)}, s{so} offen offset:{off} {kvflags}")
                    g(f"buffer_load_dwordx2 {vq(d+2,2)}, v{vo}, {srd(rs)}, s{so} offen offset:{off+8} {kvflags}")
                else:
                    g(f"buffer_load_dwordx4 {vq(d)}, v{vo}, {srd(rs)}, s{so} offen offset:{off} {kvflags}")
                if paced is not None and (j + 1) % pgrp == 0:
                    g(f"s_waitcnt vmcnt({paced})")
            if u < 3:
                g(f"s_add_u32 s{sA}, s{sA}, {hex((UOFF[u+1] - UOFF[u]) & 0xffffffff)}")

    issue(SLOT[0], True, pace, ps)
    if not touch:
        g.srd_load(SV, 16)
        g.srd_load(SWO, 32)
    g.srd_consts(SV, SPAN)
    g.srd_consts(SWO, 4096 * 512 * 2)
    g(f"v_lshlrev_b32 v{vV}, 4, v0")
    g(f"s_mov_b32 s{sSELLO}, 0x05040100")
    g(f"s_mov_b32 s{sSELHI}, 0x07060302")
    g(f"s_mov_b32 s{sLOG2E}, {f32(LOG2E)}")
    g(f"s_mov_b32 s{sSCALE}, {f32(SCALE)}")
    g(f"s_mov_b32 s{sIT}, 0")
    g(f"s_mov_b32 s{sDR}, 0")
    sVN = 30
    g(f"s_add_u32 s{sVN}, s{sW}, 32")
    for k in range(3):
        g(f"s_add_u32 s{sTI[k]}, s{sW}, {4*k}")
    g(f"s_mov_b32 s{sMASK}, 0x000f000f")
    g(f"s_mov_b32 s{sMASK+1}, 0x000f000f")
    g(f"v_and_b32 v{vH4}, 3, v0")
    g(f"v_lshlrev_b32 v{vT}, 8, v{vH4}")
    g(f"v_lshl_add_u32 v{vT}, v{vZ1}, 5, v{vT}")
    g(f"v_bfe_u32 v{vZ0}, v0, 2, 1")
    g(f"v_lshl_add_u32 v{vT}, v{vZ0}, 4, v{vT}")
    g(f"v_lshlrev_b32 v{vSC}, 6, v{vZ1}")
    g(f"v_lshl_add_u32 v{vSC}, v{vH4}, 4, v{vSC}")
    g(f"v_lshlrev_b32 v{vH4}, 2, v{vH4}")
    g(f"v_mov_b32 v{vZ0}, 0")
    g(f"v_mov_b32 v{vZ1}, 1")
    sD0 = 28
    g(f"s_lshl_b32 s{sD0}, s{sH}, 2")
    g(f"s_add_u32 s{sD0}, s{sD0}, s{sB}")
    g(f"s_lshl_b32 s{sD0}, s{sD0}, 6")
    g(f"s_add_u32 s{sD0}, s{sD0}, s{sW}")
    g(f"s_lshl_b32 s{sD0}, s{sD0}, 11")
    g(f"s_lshl_b32 s{sT0}, s{sS}, 7")
    g(f"s_add_u32 s{sD0}, s{sD0}, s{sT0}")
    if 'wo' in skip:
        g(f"s_mov_b32 s{sD0}, {hex(OOB)}")
    g(f"s_add_u32 s{sD0+1}, s{sD0}, {64*1024 - 2048}")
    sH1S, sH1G, sYS = 36, 37, 38
    g(f"s_lshl_b32 s{sT0}, s{sW}, 12")
    g(f"s_add_u32 m0, s{sT0}, {L_WO}")
    g(f"s_lshl_b32 s{sH1S}, s2, 2")
    g(f"s_add_u32 s{sH1S}, s{sH1S}, s{sW}")
    g(f"s_lshl_b32 s{sYS}, s{sH1S}, 8")
    g(f"s_add_u32 s{sYS}, s{sYS}, {hex(A_Y)}")
    g(f"s_lshl_b32 s{sH1S}, s{sH1S}, 9")
    g(f"s_add_u32 s{sH1S}, s{sH1S}, {hex(A_P)}")
    g(f"s_lshl_b32 s{sH1G}, s{sW}, 6")
    g(f"s_add_u32 s{sH1G}, s{sH1G}, s{sH}")
    g(f"s_lshl_b32 s{sH1G}, s{sH1G}, 2")
    g(f"s_add_u32 s{sH1G}, s{sH1G}, s{sB}")
    g(f"s_lshl_b32 s{sH1G}, s{sH1G}, 9")
    g(f"s_add_u32 s{sH1G}, s{sH1G}, {hex(A_P)}")
    if btouch:
        g(f"s_lshl_b32 s{sT0}, s{sW}, 3")
        scatter(sT2, sT0, TPOS, sROT)
        g("s_waitcnt lgkmcnt(0)")
        g(f"s_add_u32 s40, s{SK}, s{sT2}")
        g(f"s_addc_u32 s41, s{SK+1}, 0")
        g(f"s_add_u32 s{sT2}, s{sT2}, s{sWGB}")
        g(f"s_add_u32 s42, s{SV}, s{sT2}")
        g(f"s_addc_u32 s43, s{SV+1}, 0")
        n = 44
        for base in (40, 42):
            for blk in range(2):
                for sub in range(btouch):
                    g(f"s_load_dword s{n}, s[{base}:{base+1}], {hex((blk << lay[2]) + sub * (0x10000 // btouch))}")
                    n = 44 + (n - 43) % 8
    scatter(sA, sTI[1], TPOS, sROT)
    issue(SLOT[1], True, pace, ps)
    scatter(sA, sTI[2], TPOS, sROT)
    issue(SLOT[2], True, pace3, ps)
    g.stamp(1)
    g(f"s_mov_b32 s{sSPIN}, 0")
    g.label("L_wq")
    g(f"ds_read_b64 {vq(vT+2,2)}, v{vZ0} offset:{L_TAG}")
    g(f"s_add_u32 s{sSPIN}, s{sSPIN}, 1")
    g("s_waitcnt lgkmcnt(0)")
    g(f"v_cmp_ne_u32 vcc, 0, v{vT+3}")
    g("s_cbranch_vccnz L_wq_ok")
    g("s_sleep 2")
    g(f"s_cmp_lt_u32 s{sSPIN}, {hex(spin_max*16)}")
    g("s_cbranch_scc1 L_wq")
    g.label("L_wq_ok")
    if sprio:
        g(f"s_setprio {sprio}")
    if not touch:
        g(f"s_add_u32 s{SV}, s{SV}, s{sWGB}")
        g(f"s_addc_u32 s{SV+1}, s{SV+1}, 0")
    for j in range(2):
        g(f"ds_read_b128 {vq(vQ+4*j)}, v{vT} offset:{L_Q + 128*j}")
    g.stamp(2)
    g(f"v_readfirstlane_b32 s{sTAG}, v{vT+2}")
    g(f"v_readfirstlane_b32 s{sSLOW}, v{vT+3}")
    g("s_waitcnt lgkmcnt(0)")

    def take(k):
        g("s_mov_b64 exec, 1")
        g(f"ds_add_rtn_u32 v{vT}, v{vZ0}, v{vZ1} offset:{L_CNT}")
        g(f"ds_read_b32 v{vT+1}, v{vZ0} offset:{L_TH}")
        g("s_mov_b64 exec, -1")
        g("s_waitcnt lgkmcnt(0)")
        g(f"v_readfirstlane_b32 s{sTI[k]}, v{vT}")
        g(f"v_readfirstlane_b32 s{sTH}, v{vT+1}")
        if det:
            g(f"s_cmp_ge_u32 s{sTI[k]}, 32")
            g(f"s_cselect_b32 s{sTI[k]}, s{sVN}, s{sTI[k]}")
            g(f"s_cselect_b32 s{sT1}, 4, 0")
            g(f"s_add_u32 s{sVN}, s{sVN}, s{sT1}")
        scatter(sA, sTI[k], TPOS, sROT)

    def ktile(k):
        X = SLOT[k]
        for G_ in range(8):
            if G_ % 2 == 0:
                g(f"s_waitcnt vmcnt({min(63, 8*nM + (3 - G_//2)*nK)})")
            for j in range(2):
                c = "0" if j == 0 else vq(vO + 4 * G_)
                g(f"v_mfma_f32_16x16x32_bf16 {vq(vO+4*G_)}, {vq(X+8*G_+4*j)}, {vq(vQ+4*j)}, {c}")
        for i in range(16):
            g(f"v_add_f32_dpp v{vT+i}, v{vO+2*i+1}, v{vO+2*i} row_shl:4 row_mask:0xf bank_mask:0xf bound_ctrl:0")
        for i in range(8):
            g(f"v_cvt_pk_bf16_f32 v{vO+i}, v{vT+2*i}, v{vT+2*i+1}")
        for i in range(8):
            g(f"v_lshlrev_b32 v{vT+2*i}, 16, v{vO+i}")
            g(f"v_and_b32 v{vT+2*i+1}, s{sHI}, v{vO+i}")
        for i in range(16):
            g(f"v_mul_f32 v{vT+i}, s{sSCALE}, v{vT+i}")
        for i in range(8):
            g(f"v_cvt_pk_bf16_f32 v{vO+8+i}, v{vT+2*i}, v{vT+2*i+1}")
        g(f"s_lshl_b32 s{sT0}, s{sTI[k]}, 9")
        g(f"v_add_u32 v{vO+16}, s{sT0}, v{vSC}")
        g(f"v_max3_f32 v{vO+17}, v{vT}, v{vT+1}, v{vT+2}")
        g(f"v_max3_f32 v{vO+18}, v{vT+3}, v{vT+4}, v{vT+5}")
        g(f"v_max3_f32 v{vO+17}, v{vO+17}, v{vT+6}, v{vT+7}")
        g(f"v_max3_f32 v{vO+18}, v{vO+18}, v{vT+8}, v{vT+9}")
        g(f"v_max3_f32 v{vO+17}, v{vO+17}, v{vT+10}, v{vT+11}")
        g(f"v_max3_f32 v{vO+18}, v{vO+18}, v{vT+12}, v{vT+13}")
        g(f"v_max3_f32 v{vO+17}, v{vO+17}, v{vT+14}, v{vT+15}")
        g(f"v_max_f32 v{vO+17}, v{vO+17}, v{vO+18}")
        g(f"s_mov_b64 exec, s[{sMASK}:{sMASK+1}]")
        g(f"ds_write_b128 v{vO+16}, {vq(vO+8)} offset:{L_SC}")
        g(f"ds_write_b128 v{vO+16}, {vq(vO+12)} offset:{L_SC+256}")
        g(f"ds_max_f32 v{vH4}, v{vO+17} offset:{L_MAX}")
        g(f"ds_add_u32 v{vZ0}, v{vZ1} offset:{L_KD}")

    def vtile(k):
        X = SLOT[k]
        P = vQ
        cnt = [0]
        def wait(n):
            g(f"s_waitcnt vmcnt({min(63, n + 8*nV)})")
            g(f"s_cbranch_scc0 L_w{k}{cnt[0]}")
            g(f"s_waitcnt vmcnt({n + 4})")
            g.label(f"L_w{k}{cnt[0]}")
            cnt[0] += 1
        g(f"s_lshl_b32 s{sT0}, s{sTI[k]}, 9")
        g(f"s_sub_u32 s{sT0}, s{sT0}, {32*512 - L_SC}")
        g(f"v_add_u32 v{vT}, s{sT0}, v{vSC}")
        g(f"ds_read_b128 {vq(P)}, v{vT}")
        g(f"ds_read_b128 {vq(P+4)}, v{vT} offset:256")
        g(f"s_cmp_eq_u32 s{sDR}, 2")
        g("s_waitcnt lgkmcnt(0)")
        for i in range(8):
            g(f"v_lshlrev_b32 v{vT+2*i}, 16, v{P+i}")
            g(f"v_and_b32 v{vT+2*i+1}, s{sHI}, v{P+i}")
        for i in range(16):
            g(f"v_fma_f32 v{vT+i}, v{vT+i}, s{sLOG2E}, -v{vMC}")
        for i in range(16):
            g(f"v_exp_f32 v{vT+i}, v{vT+i}")
        for i in range(8):
            g(f"v_cvt_pk_bf16_f32 v{P+i}, v{vT+2*i}, v{vT+2*i+1}")
        for hb in range(2):
            raw = [X + 32 * hb + 4 * t for t in range(8)]
            wait(2 * nV * (1 - hb))
            perms(g, raw, 0, vT)
            perms(g, raw, 1, vT + 4)
            for e in range(8):
                if e == 7:
                    g("s_nop 0")
                g(f"v_mfma_f32_16x16x32_bf16 {vq(vO+4*e)}, {vq(vT+4*(e%4))}, {vq(P+4*hb)}, {vq(vO+4*e)}")
                if e + 2 < 8:
                    perms(g, raw, e + 2, vT + 4 * ((e + 2) % 4))

    g.L.append(".p2align 3")
    for k in range(3):
        g.comment('K tile: scores = bf16(bf16(q.k) * 128^-0.5) -> LDS, running maximum per head (ds_max), next tile')
        g.label(f"L_k{k}")
        g(f"s_cmp_ge_u32 s{sTI[k]}, 32")
        g(f"s_cbranch_scc1 L_tr{k}")
        ktile(k)
        take(k)
        g(f"s_cmp_ge_u32 s{sTI[k]}, 32")
        g(f"s_cbranch_scc1 L_kv{k}")
        g(f"s_cmp_ge_u32 s{sTI[k]}, s{sTH}")
        g(f"s_cbranch_scc1 L_kb{k}")
        issue(SLOT[k], True, lpace)
    g("s_branch L_k0")
    for k in range(3):
        g.label(f"L_kb{k}")
        if g.diag:
            g(f"s_add_u32 s{sIT}, s{sIT}, 1")
        issue(SLOT[k], True, lpace, bs)
        g(f"s_branch L_k{(k+1)%3}")
        g.label(f"L_kv{k}")
        g(f"s_cmp_ge_u32 s{sTI[k]}, s{sTH}")
        g(f"s_cbranch_scc1 L_kvb{k}")
        issue(SLOT[k], False, lpace)
        g(f"s_branch L_k{(k+1)%3}")
        g.label(f"L_kvb{k}")
        if g.diag:
            g(f"s_add_u32 s{sIT}, s{sIT}, 1")
        issue(SLOT[k], False, lpace, es)
        g(f"s_branch L_k{(k+1)%3}")
    for k in range(3):
        g.label(f"L_tr{k}")
        g(f"s_mov_b32 s{sT4}, {k}")
        if k < 2:
            g("s_branch L_trans")
    g.label("L_trans")
    g.stamp(7)
    for i in range(32):
        g(f"v_mov_b32 v{vO+i}, 0")
    ldswait("kd", L_KD, 512, 1, vZ0, vT)
    g(f"ds_read_b32 v{vMC}, v{vH4} offset:{L_MAX}")
    g.stamp(8)
    g("s_waitcnt lgkmcnt(0)")
    rne(g, vMC, vMC)
    g(f"v_mul_f32 v{vMC}, s{sLOG2E}, v{vMC}")
    g(f"s_cmp_eq_u32 s{sT4}, 1")
    g("s_cbranch_scc1 L_v1")
    g(f"s_cmp_eq_u32 s{sT4}, 2")
    g("s_cbranch_scc1 L_v2")
    g.L.append(".p2align 3")
    for k in range(3):
        g.comment('V tile: p = exp(s - max) in bf16, V transposed in registers (v_perm), O += V^T p')
        g.label(f"L_v{k}")
        vtile(k)
        g(f"s_cmp_lg_u32 s{sDR}, 0")
        g(f"s_cbranch_scc1 L_dr{k}")
        take(k)
        g(f"s_cmp_ge_u32 s{sTI[k]}, s{sTH}")
        g(f"s_cbranch_scc1 L_ve{k}")
        issue(SLOT[k], False, lpace)
    g("s_branch L_v0")
    for k in range(3):
        g.label(f"L_ve{k}")
        g(f"s_cmp_ge_u32 s{sTI[k]}, 64")
        g(f"s_cbranch_scc1 L_dr1{k}")
        if g.diag:
            g(f"s_add_u32 s{sIT}, s{sIT}, 1")
        issue(SLOT[k], False, lpace, es)
        g(f"s_branch L_v{(k+1)%3}")

    vPW = vK
    for k in range(3):
        nxt = f"L_v{(k+1)%3}"
        g.label(f"L_dr{k}")
        g(f"s_cmp_eq_u32 s{sDR}, 2")
        g(f"s_cbranch_scc1 L_tail")
        g(f"s_mov_b32 s{sDR}, 2")
        g(f"s_branch {nxt}")
        g.label(f"L_dr1{k}")
        g(f"s_mov_b32 s{sT4}, {(k+1)%3}")
        if k < 2:
            g("s_branch L_drain")
    g.label("L_drain")
    va = vT
    g(f"v_lshrrev_b32 v{va}, 3, v0")
    g(f"v_lshlrev_b32 v{va}, 13, v{va}")
    g(f"v_and_b32 v{va+1}, 7, v0")
    g(f"v_lshl_add_u32 v{va}, v{va+1}, 4, v{va}")
    g(f"v_and_b32 v{va+1}, 16, v0")
    g(f"v_lshlrev_b32 v{va+1}, 1, v{va+1}")
    g(f"s_and_b32 s{sT0}, s{sW}, 1")
    g(f"s_lshl_b32 s{sT0}, s{sT0}, 6")
    g(f"v_bitop3_b32 v{va}, v{va}, v{va+1}, s{sT0} bitop3:0x96")
    for i in range(4):
        g(f"buffer_load_dwordx4 v{va}, {srd(SWO)}, s{sD0 + (i>>1)} offen offset:{1024*i} {wflags} lds")
    g(f"v_lshrrev_b32 v{vPW}, 4, v0")
    g(f"v_lshlrev_b32 v{vPW}, 4, v{vPW}")
    g(f"v_mul_u32_u24 v{va+1}, {HS//4}, v{vH4}")
    g(f"s_mul_i32 s{sT0}, s{sW}, {WSP}")
    g(f"v_add3_u32 v{vPW}, v{vPW}, v{va+1}, s{sT0}")
    g(f"s_mov_b32 s{sDR}, 1")
    g(f"s_waitcnt vmcnt({4*nV + 4})")
    g(f"s_cmp_eq_u32 s{sT4}, 1")
    g("s_cbranch_scc1 L_v1")
    g(f"s_cmp_eq_u32 s{sT4}, 2")
    g("s_cbranch_scc1 L_v2")
    g("s_branch L_v0")

    X = 64
    WT = 128
    g.label("L_tail")
    g.stamp(3)
    if notail:
        g("s_branch L_fin")
    RA, RF, vJ, vFF, vP1, vG, TM = 8, 9, 10, 11, 12, 13, 14
    TRA = (16, 17, 18, 19)
    g(f"s_lshl_b32 s{sT0}, s{sW}, 2")
    g(f"v_mov_b32 v{vJ}, s{sT0}")
    g(f"v_and_b32 v{RA}, 31, v0")
    g(f"s_mul_i32 s{sT1}, s{sW}, {HS}")
    g(f"v_lshl_add_u32 v{RA}, v{RA}, 4, s{sT1}")
    g(f"v_lshlrev_b32 v{RF}, 1, v{vJ}")
    g(f"s_mov_b64 exec, s[{sMASK}:{sMASK+1}]")
    for e in range(8):
        g(f"ds_write_b128 v{vPW}, {vq(vO+4*e)} offset:{L_PART + 64*e}")
    if not mark2:
        g("s_waitcnt vmcnt(0)")
    g(f"ds_write_b32 v{vJ}, v{vZ1} offset:{L_JN}")
    g("s_mov_b64 exec, -1")
    PR = X
    JN, FF_ = X + 16, X + 20
    def joinreads():
        g(f"ds_read_b128 {vq(JN)}, v{vZ0} offset:{L_JN}")
        g(f"ds_read_b64 {vq(FF_,2)}, v{RF} offset:{L_F}")
        for w in range(4):
            g(f"ds_read_b128 {vq(PR+4*w)}, v{RA} offset:{L_PART + WSP*w}")
    joinreads()
    g(f"v_mov_b32 v{vFF}, 0xff")
    g(f"v_lshrrev_b32 v{vP1}, 3, v0")
    g(f"v_lshlrev_b32 v{vP1}, 14, v{vP1}")
    g(f"v_and_b32 v{TM}, 7, v0")
    g(f"v_lshl_add_u32 v{vP1}, v{TM}, 4, v{vP1}")
    g(f"v_lshrrev_b32 v{vG}, 4, v0")
    g(f"v_bfe_u32 v{TRA[0]}, v0, 2, 2")
    g(f"v_lshlrev_b32 v{TRA[0]}, 7, v{TRA[0]}")
    g(f"v_lshl_add_u32 v{TRA[0]}, v{vH4}, 1, v{TRA[0]}")
    g(f"v_lshl_add_u32 v{TRA[0]}, v{vG}, 12, v{TRA[0]}")
    g(f"v_bfe_u32 v{TM}, v0, 3, 2")
    g(f"v_lshl_add_u32 v{TRA[0]}, v{TM}, 5, v{TRA[0]}")
    for j in range(1, 4):
        g(f"v_xor_b32 v{TRA[j]}, {32*j}, v{TRA[0]}")
    g(f"s_mov_b32 s{sMASK}, -1")
    g(f"s_mov_b32 s{sMASK+1}, 0")
    g(f"s_mov_b32 s{sSPIN}, 0")
    g.label("L_join")
    g("s_waitcnt lgkmcnt(0)" if g.diag else "s_waitcnt lgkmcnt(4)")
    g(f"v_min3_u32 v{TM}, v{JN}, v{JN+1}, v{JN+2}")
    g(f"v_min3_u32 v{TM}, v{TM}, v{JN+3}, v{FF_+1}")
    g(f"v_cmp_eq_u32 vcc, 0, v{TM}")
    g("s_waitcnt lgkmcnt(0)")
    g("s_cbranch_vccz L_joined")
    joinreads()
    g(f"s_add_u32 s{sSPIN}, s{sSPIN}, 1")
    g(f"s_cmp_lt_u32 s{sSPIN}, {hex(spin_max*16)}")
    g("s_cbranch_scc1 L_join")
    g("s_waitcnt lgkmcnt(0)")
    g.label("L_joined")
    g.stamp(4)
    for i in range(4):
        g(f"v_add_f32 v{PR+i}, v{PR+i}, v{PR+4+i}")
        g(f"v_add_f32 v{PR+8+i}, v{PR+8+i}, v{PR+12+i}")
    for i in range(4):
        g(f"v_add_f32 v{PR+i}, v{PR+i}, v{PR+8+i}")
    for i in range(4):
        g(f"v_mul_f32 v{PR+i}, v{FF_}, v{PR+i}")
    for i in range(4):
        g(f"v_bfi_b32 v{PR+i}, v{vFF}, s{sTAG}, v{PR+i}")
    g(f"s_mov_b64 exec, s[{sMASK}:{sMASK+1}]")
    store_mode("p", f"buffer_store_dwordx4 {vq(PR)}, v{vV}, {srd(SWS)}, s{sH1S} offen", sSLOW)
    g("s_mov_b64 exec, -1")
    D = X + 24
    C1 = X + 40
    def wofrag():
        if mark2:
            g("s_waitcnt vmcnt(5)")
            g("s_mov_b64 exec, 1")
            g(f"ds_add_u32 v{vZ0}, v{vZ1} offset:{L_WR}")
            g("s_mov_b64 exec, -1")
            g(f"s_mov_b32 s{sT2}, 0")
            g.label("L_wwo")
            g(f"ds_read_b32 v{TM}, v{vZ0} offset:{L_WR}")
            g(f"s_add_u32 s{sT2}, s{sT2}, 1")
            g("s_waitcnt lgkmcnt(0)")
            g(f"v_cmp_le_u32 vcc, 4, v{TM}")
            g("s_cbranch_vccnz L_gwo")
            g(f"s_cmp_lt_u32 s{sT2}, {hex(spin_max*16)}")
            g("s_cbranch_scc1 L_wwo")
            g.label("L_gwo")
        for step in range(4):
            for j in range(4):
                for half in range(2):
                    g(f"ds_read_b64_tr_b16 {vq(WT+16*step+4*j+2*half,2)}, v{TRA[j]} offset:{L_WO + 1024*((step>>1) + 2*(step&1)) + 512*half}")
    g.stamp(9)
    poll("1", [f"buffer_load_dwordx4 {vq(D+4*i)}, v{vP1}, {srd(SWS)}, s{sH1G} offen offset:{128*i} {gf}" for i in range(4)],
         [D + i for i in range(16)], C1, p1sleep, wofrag)
    g.stamp(5)
    if sigearly:
        g(f"ds_add_u32 v{vZ0}, v{vZ1} offset:{L_KD}")
    for i in range(8):
        g(f"v_permlane32_swap_b32 v{D+i}, v{D+8+i}")
    for i in range(8):
        g(f"v_add_f32 v{D+i}, v{D+i}, v{D+8+i}")
    for i in range(4):
        g(f"v_permlane16_swap_b32 v{D+i}, v{D+4+i}")
    for i in range(4):
        g(f"v_add_f32 v{D+i}, v{D+i}, v{D+4+i}")
    for i in range(4):
        g(f"v_add_f32_dpp v{D+i}, v{D+i}, v{D+i} row_ror:8 row_mask:0xf bank_mask:0xf")
    B0 = X + 44
    g(f"v_cvt_pk_bf16_f32 v{B0}, v{D}, v{D+1}")
    g(f"v_cvt_pk_bf16_f32 v{B0+1}, v{D+2}, v{D+3}")
    g("s_waitcnt lgkmcnt(0)")
    def mv(c):
        for i in range(2):
            g(f"v_mov_b32_dpp v{B0+2*c+i}, v{B0+i} row_shl:{c} row_mask:0xf bank_mask:0xf bound_ctrl:0")
    mv(1)
    mv(2)
    for step in range(4):
        for j in range(4):
            c = "0" if step == 0 else vq(vO + 4 * j)
            g(f"v_mfma_f32_16x16x32_bf16 {vq(vO+4*j)}, {vq(B0+4*step)}, {vq(WT+16*step+4*j)}, {c}")
            if step * 4 + j < 5:
                mv(3 + step * 4 + j)
    if not sigearly:
        g(f"ds_add_u32 v{vZ0}, v{vZ1} offset:{L_KD}")
    else:
        g("s_nop 0")
    g("s_mov_b64 exec, 0xffff")
    g("s_nop 2")
    YO = 20
    for j in range(4):
        g(f"v_bfi_b32 v{YO+j}, v{vFF}, s{sTAG}, v{vO+4*j}")
    g(f"buffer_store_dwordx4 {vq(YO)}, v{vV}, {srd(SWS)}, s{sYS} offen {yfl}")
    g("s_mov_b64 exec, -1")
    g.stamp(6)
    g("s_branch L_fin")

    g.label("L_helper")
    g(f"v_mov_b32 v7, 0")
    g(f"v_lshlrev_b32 v8, 2, v0")
    g(f"ds_write_b32 v8, v7 offset:{L_TAG}")
    g(f"v_mov_b32 v9, 12")
    g(f"ds_write_b32 v7, v9 offset:{L_CNT}")
    g(f"v_mov_b32 v9, {eth}")
    g(f"ds_write_b32 v7, v9 offset:{L_TH}")
    g(f"v_and_b32 v8, 12, v8")
    g(f"v_mov_b32 v9, 0xff800000")
    g(f"ds_write_b32 v8, v9 offset:{L_MAX}")
    if bar0 == 0:
        g("s_waitcnt lgkmcnt(0)")
        g("s_barrier")
    g("s_setprio 3")
    g.srd_consts(SX, 4096)
    g.srd_consts(SWQ, 512 * 4096 * 2)
    hT = 20
    hACC = 32
    R = 48
    XR = 64
    XF = 80
    WF = 128
    vX, vTAG, vTR, vFFh, vH4h = 2, 6, 9, 11, 8
    sU, sC1 = 52, 54
    g(f"s_and_b32 s{sU}, s{sS}, 1")
    g(f"v_and_b32 v3, 3, v0")
    g(f"v_lshlrev_b32 v{vX}, 10, v3")
    g(f"v_bfe_u32 v4, v0, 2, 2")
    g(f"s_lshl_b32 s{sT0}, s{sU}, 1")
    g(f"v_xor_b32 v5, s{sT0}, v4")
    g(f"v_lshl_add_u32 v{vX}, v5, 6, v{vX}")
    g(f"v_lshrrev_b32 v5, 4, v0")
    g(f"v_lshl_add_u32 v{vX}, v5, 4, v{vX}")
    SXO = (56, 57, 58, 59)
    for j in range(4):
        g(f"s_xor_b32 s{SXO[j]}, s{sB}, {j}")
        g(f"s_lshl_b32 s{SXO[j]}, s{SXO[j]}, 8")
    g(f"v_lshrrev_b32 v10, 3, v0")
    g(f"v_and_b32 v11, 7, v0")
    g(f"v_lshlrev_b32 v11, 4, v11")
    VQ, V1, V2 = 112, 116, 120
    g(f"v_lshl_add_u32 v{VQ}, v10, 13, v11")
    for i in range(1, 4):
        g(f"v_add_u32 v{VQ+i}, {hex(i*(8*8192 - 1024))}, v{VQ}")
    SQO = (sA, sBo, sIT, sT0)
    g(f"s_lshl_b32 s{sT1}, s{sH}, 3")
    g(f"s_add_u32 s{sT1}, s{sT1}, s{sS}")
    g(f"s_lshl_b32 s{sT1}, s{sT1}, 7")
    g(f"s_lshl_b32 s{sT2}, s{sB}, 20")
    g(f"s_add_u32 s{sT1}, s{sT1}, s{sT2}")
    if 'wq' in skip:
        g(f"s_mov_b32 s{sT1}, {hex(OOB)}")
    g(f"s_lshl_b32 s{sT2}, s{sU}, 19")
    g(f"s_add_u32 s{SQO[0]}, s{sT1}, s{sT2}")
    g(f"s_add_u32 s{SQO[1]}, s{SQO[0]}, {hex(32*8192)}")
    g(f"s_xor_b32 s{sT2}, s{sT2}, {hex(64*8192)}")
    g(f"s_add_u32 s{SQO[2]}, s{sT1}, s{sT2}")
    g(f"s_add_u32 s{SQO[3]}, s{SQO[2]}, {hex(32*8192)}")
    g(f"s_mov_b32 s{sSPIN}, {hex(W_EP)}")
    g(f"s_mov_b32 m0, {L_WQ}")
    g("s_waitcnt lgkmcnt(0)")
    for j in range(4):
        g(f"buffer_load_dwordx4 {vq(XR+4*j)}, v{vX}, {srd(SX)}, s{SXO[j]} offen {xf}")
    g(f"buffer_load_dword v{vTAG}, v7, {srd(SWS)}, s{sSPIN} offen {epf}")
    for n, so in enumerate(SQO):
        for i in range(4):
            g(f"buffer_load_dwordx4 v{VQ+i}, {srd(SWQ)}, s{so} offen offset:{1024*i} {wflags} lds")
        if n + 1 == bar0:
            g("s_barrier")
        if n < 3:
            g(f"s_add_u32 m0, m0, 4096")
            g("s_nop 0")
    for (b_, off, nb) in ((SB1, 56, 1792 * 2), (SB2, 72, 1024), (SW1, 48, 512 * 1792 * 2), (SW2, 64, 1792 * 512 * 2), (SOUT, 80, 4096)):
        g.srd_load(b_, off)
        g.srd_consts(b_, nb)
    g(f"s_lshr_b32 s{sC1}, s{sS}, 1")
    g(f"s_lshl_b32 s{sC1}, s{sC1}, 3")
    g(f"s_add_u32 s{sC1}, s{sC1}, s{sH}")
    vQS = 10
    g(f"v_lshlrev_b32 v{vQS}, 8, v3")
    g(f"v_lshl_add_u32 v{vQS}, v4, 6, v{vQS}")
    g(f"v_lshl_add_u32 v{vQS}, v5, 4, v{vQS}")
    sOWN, sOWNH, sOWNZ = sA, sBo, sIT
    g(f"s_lshl_b32 s{sOWN}, s2, 10")
    g(f"s_add_u32 s{sOWNH}, s{sOWN}, {hex(A_H)}")
    g(f"s_add_u32 s{sOWNZ}, s{sOWN}, {hex(A_Z)}")
    g(f"v_lshlrev_b32 v{vTR}, 10, v5")
    g(f"v_lshl_add_u32 v{vTR}, v4, 7, v{vTR}")
    g(f"v_lshl_add_u32 v{vTR}, v3, 3, v{vTR}")
    g(f"v_mov_b32 v{vFFh}, 0xff")
    SM1, SM2, SM3 = 12, 14, 68
    for (sm, c) in ((SM1, 1), (SM2, 2), (SM3, 3)):
        g(f"s_mov_b32 s{sm}, {hex(0x000f000f << (4*c))}")
        g(f"s_mov_b32 s{sm+1}, {hex(0x000f000f << (4*c))}")
    def red4(v, t):
        for r in (4, 8):
            g("s_nop 1")
            g(f"v_add_f32_dpp v{v}, v{v}, v{v} row_ror:{r} row_mask:0xf bank_mask:0xf")
        for sw in ("v_permlane16_swap_b32", "v_permlane32_swap_b32"):
            g(f"v_mov_b32 v{t}, v{v}")
            g("s_nop 1")
            g(f"{sw} v{v}, v{t}")
            g(f"v_add_f32 v{v}, v{v}, v{t}")
    NY = 16
    g(f"s_waitcnt vmcnt({NY + 1})")
    for i in range(16):
        g(f"v_lshlrev_b32 v{XF+2*i}, 16, v{XR+i}")
        g(f"v_and_b32 v{XF+2*i+1}, s{sHI}, v{XR+i}")
    g(f"v_pk_add_f32 {vq(hT,2)}, {vq(XF,2)}, {vq(XF+2,2)}")
    g(f"v_pk_add_f32 {vq(hT+2,2)}, {vq(XF+4,2)}, {vq(XF+6,2)}")
    for i in range(4, 16):
        d = hT + 2 * (i & 1)
        g(f"v_pk_add_f32 {vq(d,2)}, {vq(d,2)}, {vq(XF+2*i,2)}")
    g(f"v_pk_add_f32 {vq(hT,2)}, {vq(hT,2)}, {vq(hT+2,2)}")
    g(f"v_add_f32 v{hT}, v{hT}, v{hT+1}")
    red4(hT, hT + 1)
    g(f"v_mul_f32 v{hT}, {f32(-1.0/512)}, v{hT}")
    g(f"v_mov_b32 v{hT+1}, v{hT}")
    for i in range(16):
        t = hT + 6 + 2 * (i & 1)
        d = hT + 2 + 2 * (i & 1)
        g(f"v_pk_add_f32 {vq(t,2)}, {vq(XF+2*i,2)}, {vq(hT,2)}")
        if i < 2:
            g(f"v_pk_mul_f32 {vq(d,2)}, {vq(t,2)}, {vq(t,2)}")
        else:
            g(f"v_pk_fma_f32 {vq(d,2)}, {vq(t,2)}, {vq(t,2)}, {vq(d,2)}")
    g(f"v_pk_add_f32 {vq(hT+2,2)}, {vq(hT+2,2)}, {vq(hT+4,2)}")
    g(f"v_add_f32 v{hT+2}, v{hT+2}, v{hT+3}")
    rne(g, hT, hT)
    red4(hT + 2, hT + 3)
    g(f"v_mul_f32 v{hT+2}, {f32(1.0/512)}, v{hT+2}")
    rne(g, hT + 2, hT + 2)
    g(f"v_add_f32 v{hT+2}, {f32(1e-5)}, v{hT+2}")
    rne(g, hT + 2, hT + 2)
    g(f"v_sqrt_f32 v{hT+2}, v{hT+2}")
    for i in range(8):
        g(f"v_add_f32 v{XF+i}, v{XF+i}, v{hT}")
    rne(g, hT + 2, hT + 2)
    g(f"v_rcp_f32 v{hT+4}, v{hT+2}")
    def round8(F, T):
        for i in range(4):
            g(f"v_cvt_pk_bf16_f32 v{T+i}, v{F+2*i}, v{F+2*i+1}")
        for i in range(4):
            g(f"v_lshlrev_b32 v{F+2*i}, 16, v{T+i}")
            g(f"v_and_b32 v{F+2*i+1}, s{sHI}, v{T+i}")
    round8(XF, R)
    for i in range(8):
        g(f"v_mul_f32 v{XF+8+i}, v{XF+i}, v{hT+4}")
    for i in range(8):
        g(f"v_fma_f32 v{XF+i}, -v{XF+8+i}, v{hT+2}, v{XF+i}")
    for i in range(8):
        g(f"v_fma_f32 v{XF+i}, v{XF+i}, v{hT+4}, v{XF+8+i}")
    for i in range(4):
        g(f"v_cvt_pk_bf16_f32 v{R+i}, v{XF+2*i}, v{XF+2*i+1}")
    g.stamp(1)
    g(f"s_waitcnt vmcnt({NY})")
    g(f"v_add_u32 v{vTAG}, 1, v{vTAG}")
    for t in range(1, 4):
        for i in range(4):
            g(f"v_mov_b32_dpp v{R+4*t+i}, v{R+i} row_ror:{4*t} row_mask:0xf bank_mask:0xf")
    g(f"v_readfirstlane_b32 s{sTAG}, v{vTAG}")
    g(f"s_and_b32 s{sTAG}, s{sTAG}, 0xff")
    sTAGQ, sRP = 70, 71
    g(f"s_getreg_b32 s{sTAGQ}, hwreg(HW_REG_XCC_ID)")
    g(f"s_and_b32 s{sTAGQ}, s{sTAGQ}, 7")
    g(f"s_lshl_b32 s{sTAGQ}, s{sTAGQ}, 5")
    g(f"s_and_b32 s{sRP}, s{sTAG}, 31")
    g(f"s_or_b32 s{sTAGQ}, s{sTAGQ}, s{sRP}")

    def gemm1(base, nstep, vm, off, tg):
        for s_ in range(nstep):
            g(f"s_waitcnt vmcnt({vm - 4*(s_+1)})")
            for c in range(4):
                for half in range(2):
                    g(f"ds_read_b64_tr_b16 {vq(WF+16*s_+4*c+2*half,2)}, v{vTR} offset:{base + 4096*s_ + 512*half + 32*c}")
            g("s_waitcnt lgkmcnt(0)")
            for c in range(4):
                cc = "0" if s_ == 0 else vq(hACC + 4 * c)
                g(f"v_mfma_f32_16x16x32_bf16 {vq(hACC+4*c)}, {vq(WF+16*s_+4*c)}, {vq(R+4*((c-s_)&3))}, {cc}")
        g("s_nop 5")
        for (sm, c) in ((SM1, 1), (SM2, 2), (SM3, 3)):
            for r in range(4):
                g(f"v_cndmask_b32 v{hACC+r}, v{hACC+r}, v{hACC+4*c+r}, s[{sm}:{sm+1}]")
        for r in range(4):
            g(f"v_bfi_b32 v{hT+off+r}, v{vFFh}, s{tg}, v{hACC+r}")

    gemm1(L_WQ, 4, 16, 0, sTAGQ)
    g(f"buffer_store_dwordx4 {vq(hT)}, v{vQS}, {srd(SWS)}, s{sOWN} offen {'' if fast else 'sc1'}")
    g.stamp(2)
    g(f"v_mov_b32 v12, s{sTAG}")
    g(f"ds_write_b32 v7, v12 offset:{L_TAG}")
    SQG = (20, 21, 22, 23)
    def qpart():
        g(f"v_lshrrev_b32 v124, 3, v0")
        g(f"v_lshlrev_b32 v124, 13, v124")
        g(f"v_and_b32 v13, 7, v0")
        g(f"v_lshl_add_u32 v124, v13, 5, v124")
        g(f"s_lshl_b32 s{SQG[0]}, s{sH}, 10")
        g(f"s_lshl_b32 s{sT0}, s{sB}, 8")
        g(f"s_add_u32 s{SQG[0]}, s{SQG[0]}, s{sT0}")
        for j in range(1, 4):
            g(f"s_add_u32 s{SQG[j]}, s{SQG[0]}, {hex(j << 16)}")
        g(f"v_lshlrev_b32 v13, 4, v0")
        if qwait and not w1first:
            g(f"s_sleep {qwait}")
        QG = 64
        def republish():
            g(f"buffer_store_dwordx4 {vq(hT)}, v{vQS}, {srd(SWS)}, s{sOWN} offen sc1")
        g(f"s_mov_b32 s{sSPIN}, 0")
        g.label("L_pollq")
        for j in range(4):
            for i in range(2):
                g(f"buffer_load_dwordx4 {vq(QG+8*j+4*i)}, v124, {srd(SWS)}, s{SQG[j]} offen offset:{16*i} {gf}")
        g("s_waitcnt vmcnt(0)")
        tagcheck(g, [QG + i for i in range(32)], 30, 31, sTAGQ, 0x1f)
        g("s_cbranch_vccz L_gotq")
        g(f"s_add_u32 s{sSPIN}, s{sSPIN}, 1")
        g(f"s_cmp_lg_u32 s{sSPIN}, {repub}")
        g("s_cbranch_scc1 L_norp")
        g("s_mov_b64 exec, -1")
        republish()
        g.label("L_norp")
        g("s_mov_b64 exec, vcc")
        g("s_sleep 4")
        g(f"s_cmp_lt_u32 s{sSPIN}, {hex(spin_max)}")
        g("s_cbranch_scc1 L_pollq")
        g.label("L_gotq")
        g("s_mov_b64 exec, -1")
        g(f"v_and_b32 v30, 0xe0, v30")
        g(f"v_cmp_ne_u32 vcc, 0, v30")
        g(f"v_mov_b32 v31, 1")
        g("s_cbranch_vccz L_same")
        g(f"v_mov_b32 v31, 2")
        republish()
        for i in range(32):
            g(f"v_and_b32 v{QG+i}, 0xffffff00, v{QG+i}")
        g.label("L_same")
        g.stamp(4)
        def sum4():
            for i in range(4):
                g(f"v_pk_add_f32 {vq(QG+2*i,2)}, {vq(QG+2*i,2)}, {vq(QG+8+2*i,2)}")
                g(f"v_pk_add_f32 {vq(QG+16+2*i,2)}, {vq(QG+16+2*i,2)}, {vq(QG+24+2*i,2)}")
            for i in range(4):
                g(f"v_pk_add_f32 {vq(QG+2*i,2)}, {vq(QG+2*i,2)}, {vq(QG+16+2*i,2)}")
        sum4()
        for i in range(4):
            g(f"v_cvt_pk_bf16_f32 v{hACC+i}, v{QG+2*i}, v{QG+2*i+1}")
        g(f"ds_write_b128 v13, {vq(hACC)} offset:{L_Q}")
        g(f"ds_write_b32 v7, v31 offset:{L_TAG+4}")
        if diag and probe is None:
            g(f"s_mov_b32 s{sSTAMP+6}, s{sSPIN}")
        g.stamp(5)
        g("s_setprio 2" if sprio else "s_setprio 0")
        g(f"v_readfirstlane_b32 s55, v31")
    QG = 64
    def sum4():
        for i in range(4):
            g(f"v_pk_add_f32 {vq(QG+2*i,2)}, {vq(QG+2*i,2)}, {vq(QG+8+2*i,2)}")
            g(f"v_pk_add_f32 {vq(QG+16+2*i,2)}, {vq(QG+16+2*i,2)}, {vq(QG+24+2*i,2)}")
        for i in range(4):
            g(f"v_pk_add_f32 {vq(QG+2*i,2)}, {vq(QG+2*i,2)}, {vq(QG+16+2*i,2)}")
    if not w1first:
        qpart()
    sSLOWH, sOO = 55, 53
    g(f"v_and_b32 v14, 1, v4")
    g(f"v_lshlrev_b32 v14, 6, v14")
    g(f"v_lshl_add_u32 v14, v5, 4, v14")
    g(f"s_lshl_b32 s8, s{sC1}, 7")
    g(f"v_and_b32 v15, 1, v0")
    g(f"v_lshlrev_b32 v15, 1, v15")
    g(f"v_lshl_add_u32 v15, v5, 5, v15")
    g(f"s_lshl_b32 s9, s{sS}, 7")
    g(f"s_lshl_b32 s{sT3}, s{sH}, 2")
    g(f"s_add_u32 s9, s9, s{sT3}")
    g(f"s_lshl_b32 s{sOO}, s{sB}, 10")
    g(f"s_add_u32 s{sOO}, s{sOO}, s9")
    g(f"v_lshrrev_b32 v12, 1, v4")
    g(f"v_lshlrev_b32 v12, 17, v12")
    g(f"v_lshl_add_u32 v12, v3, 8, v12")
    g(f"v_lshl_add_u32 v12, v14, 1, v12")
    g(f"s_and_b32 s{SXO[0]}, s2, 0x37")
    g(f"s_lshl_b32 s{SXO[0]}, s{SXO[0]}, 10")
    g(f"s_add_u32 s{SXO[0]}, s{SXO[0]}, {hex(A_H)}")
    g(f"s_add_u32 s{SXO[1]}, s{SXO[0]}, {hex(8 << 10)}")
    g(f"s_add_u32 s{SXO[2]}, s{SXO[0]}, {hex(64 << 10)}")
    g(f"s_add_u32 s{SXO[3]}, s{SXO[0]}, {hex(72 << 10)}")
    g(f"v_lshrrev_b32 v30, 3, v0")
    g(f"v_and_b32 v1, 7, v0")
    g(f"v_lshlrev_b32 v1, 4, v1")
    g(f"v_mul_u32_u24 v{V1}, 3584, v30")
    g(f"v_add_u32 v{V1}, v{V1}, v1")
    g(f"v_lshl_add_u32 v{V2}, v30, 10, v1")
    for (V, rs) in ((V1, 3584), (V2, 1024)):
        for i in range(1, 4):
            g(f"v_add_u32 v{V+i}, {hex(i*(8*rs - 1024))}, v{V}")
    g(f"v_lshlrev_b32 v1, 10, v30")
    g(f"v_lshl_add_u32 v1, v3, 4, v1")
    g(f"s_lshl_b32 s{sT4}, s{sB}, 1")
    g(f"s_add_u32 s{sT4}, s{sT4}, s{sU}")
    g(f"s_mul_i32 s{sT1}, s{sT4}, {64*3584}")
    g(f"s_add_u32 s{sT1}, s{sT1}, s8")
    g(f"s_lshl_b32 s{sT3}, s{sC1}, 16")
    g(f"s_lshl_b32 s{sT4}, s{sT4}, 7")
    g(f"s_add_u32 s{sT3}, s{sT3}, s{sT4}")
    g(f"s_add_u32 s{sT2}, s{sT1}, {32*3584}")
    g(f"s_add_u32 s{sT4}, s{sT3}, {32*1024}")
    g(f"s_mov_b32 m0, {L_W1}")
    g(f"buffer_load_ushort v28, v15, {srd(SX)}, s{sOO} offen")
    g(f"buffer_load_ushort v29, v15, {srd(SB2)}, s9 offen")
    if otouch:
        g(f"s_mov_b64 exec, 1")
        g(f"buffer_store_short v7, v15, {srd(SOUT)}, s{sOO} offen")
        g(f"s_mov_b64 exec, -1")
    g(f"s_cmp_ge_u32 s{sC1}, 28")
    g("s_cbranch_scc1 L_noffn0" if w1first else "s_cbranch_scc1 L_noffn1")
    g(f"buffer_load_dwordx4 {vq(16)}, v14, {srd(SB1)}, s8 offen")
    for so in (sT1, sT2):
        for i in range(4):
            g(f"buffer_load_dwordx4 v{V1+i}, {srd(SW1)}, s{so} offen offset:{1024*i} {wflags} lds")
        g(f"s_add_u32 m0, m0, 4096")
        g("s_nop 0")
    gemm1(L_W1, 2, 8, 4, sTAG)
    g.label("L_noffn0")
    if w1first:
        qpart()
        g(f"s_cmp_ge_u32 s{sC1}, 28")
        g("s_cbranch_scc1 L_noffn1")
    store_mode("h", f"buffer_store_dwordx4 {vq(hT+4)}, v{vQS}, {srd(SWS)}, s{sOWNH} offen", sSLOWH)
    g.label("L_noffn1")
    if stouch:
        g("s_load_dwordx2 s[20:21], s[0:1], 16")
        g("s_load_dwordx2 s[22:23], s[0:1], 32")
        g(f"s_lshl_b32 s{sT0}, s{sB}, 3")
        g(f"s_add_u32 s{sT0}, s{sT0}, s{sH}")
        g(f"s_lshl_b32 s{sT0}, s{sT0}, 3")
        g(f"s_add_u32 s{sT0}, s{sT0}, s{sS}")
        g(f"s_lshl_b32 s{sT0}, s{sT0}, 19")
        g(f"s_lshl_b32 s{sT1}, s{sH}, 19")
        g("s_waitcnt lgkmcnt(0)")
        g(f"s_add_u32 s20, s20, s{sT0}")
        g(f"s_addc_u32 s21, s21, 0")
        g(f"s_add_u32 s22, s22, s{sT1}")
        g(f"s_addc_u32 s23, s23, 0")
        g("s_load_dword s10, s[20:21], 0")
        g("s_load_dword s11, s[22:23], 0")
        g(f"s_load_dword s{sT1}, s[{SW2}:{SW2+1}], 0")
        if stouch == 2:
            g(f"s_load_dword s{sT2}, s[{SOUT}:{SOUT+1}], 0")
        g("s_waitcnt lgkmcnt(0)")
    def control(tag, c0, dc, c1_, rk):
        g.comment('speed only: a workgroup that is among the last of its die at a checkpoint requests whole lines only')
        g(f"s_cmp_eq_u32 s{sSLOWH}, 1")
        g(f"s_cbranch_scc0 L_noctl{tag}")
        g(f"s_lshl_b32 s{sT1}, s{sH}, 7")
        g(f"s_add_u32 s{sT1}, s{sT1}, {hex(A_C)}")
        g(f"s_lshr_b32 s{sT2}, s2, 3")
        g(f"s_lshl_b32 s{sT2}, s{sT2}, 2")
        g(f"s_add_u32 s{sT2}, s{sT2}, s{sT1}")
        g(f"v_and_b32 v124, 31, v0")
        g(f"v_lshlrev_b32 v124, 2, v124")
        g(f"s_mov_b32 s20, {c0}")
        g(f"s_and_b32 s11, s{sTAG}, 0xff")
        g.label(f"L_ctl{tag}")
        ldswait(f"ctl{tag}", L_CNT, "s20", 4, 7, 30)
        g(f"s_lshl_b32 s21, s20, 8")
        g(f"s_or_b32 s21, s21, s11")
        g(f"v_mov_b32 v125, s21")
        g(f"buffer_load_dword v126, v124, {srd(SWS)}, s{sT1} offen {cf}")
        g(f"buffer_store_dword v125, v7, {srd(SWS)}, s{sT2} offen {csf}")
        g("s_waitcnt vmcnt(1)")
        g(f"v_and_b32 v127, 0xffff00ff, v126")
        g(f"v_cmp_eq_u32 vcc, s11, v127")
        g(f"v_cmp_le_u32 s[{sMASK2}:{sMASK2+1}], v125, v126")
        g(f"s_and_b32 s21, vcc_lo, s{sMASK2}")
        g(f"s_bcnt1_i32_b32 s21, s21")
        g(f"s_cmp_ge_u32 s21, {rk}")
        g(f"s_cselect_b32 s21, {eth if cnone else 0}, {eth}")
        g(f"v_mov_b32 v127, s21")
        g(f"ds_write_b32 v7, v127 offset:{L_TH}")
        g(f"s_add_u32 s20, s20, {dc}")
        g(f"s_cmp_le_u32 s20, {c1_}")
        g(f"s_cbranch_scc1 L_ctl{tag}")
        g.label(f"L_noctl{tag}")
    if ctl is not None:
        control("a", ctl[0], ctl[1], cs, ctl[3])
    ldswait("kdh", L_KD, 512, 8, 7, 30)
    MX, MC, LS = 32, 33, 34
    g(f"ds_read_b32 v{MX}, v{vH4h} offset:{L_MAX}")
    SCR = 128
    for i in range(16):
        g(f"ds_read_b128 {vq(SCR+4*i)}, v13 offset:{L_SC + 1024*i}")
    g(f"s_mov_b32 s10, {f32(LOG2E)}")
    g("s_waitcnt lgkmcnt(0)")
    rne(g, MX, MX)
    g(f"v_mul_f32 v{MC}, s10, v{MX}")
    for i in range(4):
        g(f"v_mov_b32 v{LS+i}, 0")
    EX = 64
    if sprio:
        g("s_setprio 0")
    for blk in range(4):
        for i in range(16):
            g(f"v_lshlrev_b32 v{EX+2*i}, 16, v{SCR+16*blk+i}")
            g(f"v_and_b32 v{EX+2*i+1}, s{sHI}, v{SCR+16*blk+i}")
        for i in range(32):
            g(f"v_fma_f32 v{EX+i}, v{EX+i}, s10, -v{MC}")
        for i in range(32):
            g(f"v_exp_f32 v{EX+i}, v{EX+i}")
        for i in range(32):
            g(f"v_add_f32 v{LS+(i&3)}, v{LS+(i&3)}, v{EX+i}")
    if sprio:
        g("s_setprio 2")
    g(f"v_add_f32 v{LS}, v{LS}, v{LS+1}")
    g(f"v_add_f32 v{LS+2}, v{LS+2}, v{LS+3}")
    g(f"v_add_f32 v{LS}, v{LS}, v{LS+2}")
    red4(LS, LS + 1)
    for i in range(4):
        g(f"v_bfi_b32 v{40+i}, v{vFFh}, s{sTAG}, v{MX if i % 2 == 0 else LS}")
    g(f"s_lshl_b32 s{sT0}, s2, 7")
    g(f"s_add_u32 s{sT0}, s{sT0}, {hex(A_S)}")
    g("s_mov_b64 exec, 0xff")
    store_mode("s", f"buffer_store_dwordx4 {vq(40)}, v13, {srd(SWS)}, s{sT0} offen", sSLOWH)
    g("s_mov_b64 exec, -1")
    g(f"s_and_b32 s{sT0}, s2, 0xc7")
    g(f"s_lshl_b32 s{sT0}, s{sT0}, 7")
    g(f"s_add_u32 s{sT0}, s{sT0}, {hex(A_S)}")
    if ctl is not None and cs + ctl[1] <= ctl[2]:
        control("b", cs + ctl[1], ctl[1], ctl[2], ctl[3])
    ldswait("st", L_CNT, sth, 4, 7, 30)
    ST = 44
    poll("s", [f"buffer_load_dwordx2 {vq(ST,2)}, v1, {srd(SWS)}, s{sT0} offen {gf}"], [ST, ST + 1, ST], 30, 8)
    C1h, C2h, C3h = 46, 47, 36
    g(f"v_max_f32_dpp v{C1h}, v{ST}, v{ST} row_ror:8 row_mask:0xf bank_mask:0xf")
    for sw in ("v_permlane16_swap_b32", "v_permlane32_swap_b32"):
        g(f"v_mov_b32 v{C3h}, v{C1h}")
        g("s_nop 1")
        g(f"{sw} v{C1h}, v{C3h}")
        g(f"v_max_f32 v{C1h}, v{C1h}, v{C3h}")
    g(f"v_sub_f32 v{C2h}, v{ST}, v{C1h}")
    g(f"v_sub_f32 v{MX}, v{MX}, v{C1h}")
    g(f"v_mul_f32 v{C2h}, s10, v{C2h}")
    g(f"v_mul_f32 v{MX}, s10, v{MX}")
    g(f"v_exp_f32 v{C2h}, v{C2h}")
    g(f"v_exp_f32 v{MX}, v{MX}")
    g(f"v_mul_f32 v{C2h}, v{C2h}, v{ST+1}")
    g("s_nop 1")
    g(f"v_add_f32_dpp v{C2h}, v{C2h}, v{C2h} row_ror:8 row_mask:0xf bank_mask:0xf")
    for sw in ("v_permlane16_swap_b32", "v_permlane32_swap_b32"):
        g(f"v_mov_b32 v{C3h}, v{C2h}")
        g("s_nop 1")
        g(f"{sw} v{C2h}, v{C3h}")
        g(f"v_add_f32 v{C2h}, v{C2h}, v{C3h}")
    g(f"v_rcp_f32 v{C2h}, v{C2h}")
    g(f"v_mov_b32 v{MX+1}, 1")
    g(f"v_lshlrev_b32 v30, 1, v{vH4h}")
    g(f"v_mul_f32 v{MX}, v{MX}, v{C2h}")
    g(f"ds_write_b64 v30, {vq(MX,2)} offset:{L_F}")
    g.stamp(1)
    g(f"s_cmp_ge_u32 s{sC1}, 28")
    g("s_cbranch_scc1 L_noffn")
    ldswait("trig", L_CNT, 64 + trig, 4, 7, 30)
    g.stamp(10)
    for n, so in enumerate((sT3, sT4)):
        for i in range(4):
            g(f"buffer_load_dwordx4 v{V2+i}, {srd(SW2)}, s{so} offen offset:{1024*i} {wflags} lds")
        if n < 1:
            g(f"s_add_u32 m0, m0, 4096")
            g("s_nop 0")
    poll("h", [f"buffer_load_dwordx4 {vq(QG+8*j+4*i)}, v12, {srd(SWS)}, s{SXO[j]} offen offset:{16*i} {gf}"
               for j in range(4) for i in range(2)], [QG + i for i in range(32)], 30, 2)
    for s_ in range(2):
        for j in range(4):
            for half in range(2):
                g(f"ds_read_b64_tr_b16 {vq(WF+16*s_+4*j+2*half,2)}, v{vTR} offset:{L_W2 + 4096*s_ + 512*half + 32*j}")
    sum4()
    g("s_nop 1")
    for i in range(8):
        g(f"v_add_f32_dpp v{QG+i}, v{QG+i}, v{QG+i} row_ror:8 row_mask:0xf bank_mask:0xf")
    round8(QG, hT)
    for i in range(4):
        g(f"v_lshlrev_b32 v{hT+4}, 16, v{16+i}")
        g(f"v_and_b32 v{hT+5}, s{sHI}, v{16+i}")
        g(f"v_add_f32 v{QG+2*i}, v{QG+2*i}, v{hT+4}")
        g(f"v_add_f32 v{QG+2*i+1}, v{QG+2*i+1}, v{hT+5}")
    round8(QG, hT)
    for i in range(8):
        g(f"v_max_f32 v{QG+i}, 0, v{QG+i}")
    for i in range(8):
        g(f"v_mul_f32 v{QG+i}, v{QG+i}, v{QG+i}")
    for i in range(4):
        g(f"v_cvt_pk_bf16_f32 v{R+i}, v{QG+2*i}, v{QG+2*i+1}")
    g("s_nop 0")
    for i in range(4):
        g(f"v_mov_b32_dpp v{R+4+i}, v{R+i} row_ror:4 row_mask:0xf bank_mask:0xf")
    g.stamp(6)
    g("s_waitcnt lgkmcnt(0)")
    g("s_nop 0")
    for s_ in range(2):
        for j in range(4):
            cc = "0" if s_ == 0 else vq(hACC + 4 * j)
            g(f"v_mfma_f32_16x16x32_bf16 {vq(hACC+4*j)}, {vq(R+4*s_)}, {vq(WF+16*s_+4*j)}, {cc}")
    g("s_nop 7")
    for b_ in range(4):
        for j in range(4):
            g(f"v_bfi_b32 v{QG+4*b_+j}, v{vFFh}, s{sTAG}, v{hACC+4*j+b_}")
    g("s_mov_b64 exec, 0xffff")
    for b_ in range(4):
        g(f"buffer_store_dwordx4 {vq(QG+4*b_)}, v13, {srd(SWS)}, s{sOWNZ} offen offset:{256*b_} {zfl}")
    g("s_mov_b64 exec, -1")
    g.label("L_noffn")
    g.stamp(7)
    g(f"v_bfe_u32 v14, v0, 1, 3")
    g(f"v_lshlrev_b32 v14, 10, v14")
    g(f"v_and_b32 v12, 1, v0")
    g(f"v_lshl_add_u32 v14, v12, 4, v14")
    g(f"v_lshl_add_u32 v12, v5, 14, v14")
    g(f"v_lshl_add_u32 v14, v5, 16, v14")
    g(f"s_lshl_b32 s{sT2}, s{sB}, 8")
    g(f"s_lshl_b32 s{sT1}, s{sH}, 5")
    g(f"s_add_u32 s{sT2}, s{sT2}, s{sT1}")
    g(f"s_lshr_b32 s{sT0}, s{sS}, 1")
    g(f"s_lshl_b32 s{sT0}, s{sT0}, 16")
    g(f"s_lshl_b32 s{sT1}, s{sU}, 13")
    g(f"s_add_u32 s{sT0}, s{sT0}, s{sT1}")
    g(f"s_add_u32 s{sT0}, s{sT0}, s{sT2}")
    g(f"s_add_u32 s{sT0}, s{sT0}, {hex(A_Z)}")
    g(f"s_lshl_b32 s{sT1}, s{sS}, 13")
    g(f"s_add_u32 s{sT1}, s{sT1}, s{sT2}")
    g(f"s_add_u32 s{sT1}, s{sT1}, {hex(A_Y)}")
    Z, Y = 32, 36
    for i in range(4):
        g(f"v_mov_b32 v{Z+i}, 0")
    ldswait("y", L_KD, 512 + 64 * ysig, 1, 7, 30)
    g(f"s_mov_b32 s{sMASK2}, -1")
    g(f"s_mov_b32 s{sMASK2+1}, 0x00ffffff")
    g(f"s_mov_b64 exec, s[{sMASK2}:{sMASK2+1}]")
    poll("z", [f"buffer_load_dwordx4 {vq(Z)}, v12, {srd(SWS)}, s{sT0} offen sc1"], [Z + i for i in range(4)], 30, zsleep)
    g.stamp(8)
    def gate():
        reduce32x4(g, Z)
        rne(g, Z, Z)
        g(f"v_lshlrev_b32 v29, 16, v29")
        g(f"v_add_f32 v{Z}, v{Z}, v29")
        rne(g, Z, Z)
        g(f"v_mul_f32 v30, {f32(-LOG2E)}, v{Z}")
        g(f"v_exp_f32 v30, v30")
        g("s_nop 0")
        g(f"v_add_f32 v30, 1.0, v30")
        g(f"v_rcp_f32 v30, v30")
        g("s_nop 0")
        g(f"v_mul_f32 v{Z}, v{Z}, v30")
        rne(g, Z, Z)
        g(f"v_lshlrev_b32 v{Z+1}, 16, v28")
        g(f"s_mov_b32 s{sMASK2}, 0x00030003")
        g(f"s_mov_b32 s{sMASK2+1}, 0x00030003")
    if ypipe < 2:
        poll("y", [f"buffer_load_dwordx4 {vq(Y)}, v14, {srd(SWS)}, s{sT1} offen sc1"], [Y + i for i in range(4)], 30, ysleep, gate)
    else:
        YB = [64 + 4 * i for i in range(ypipe)]
        ld = lambda i: g(f"buffer_load_dwordx4 {vq(YB[i])}, v14, {srd(SWS)}, s{sT1} offen sc1")
        ld(0)
        gate()
        for i in range(1, ypipe):
            ld(i)
        g(f"s_mov_b32 s{sSPIN}, 0")
        g.label("L_polly")
        for i in range(ypipe):
            g(f"s_waitcnt vmcnt({ypipe-1})")
            tagcheck(g, [YB[i] + j for j in range(4)], 30, 31)
            for j in range(4):
                g(f"v_mov_b32 v{Y+j}, v{YB[i]+j}")
            g("s_cbranch_vccz L_goty")
            g("s_mov_b64 exec, vcc")
            ld(i)
        g(f"s_add_u32 s{sSPIN}, s{sSPIN}, 1")
        g(f"s_cmp_lt_u32 s{sSPIN}, {hex(spin_max)}")
        g("s_cbranch_scc1 L_polly")
        g.label("L_goty")
        g("s_mov_b64 exec, -1")
    g.stamp(9)
    reduce32x4(g, Y)
    rne(g, Y, Y)
    g(f"v_mul_f32 v{Y}, v{Y}, v{Z}")
    rne(g, Y, Y)
    g(f"v_add_f32 v{Y}, v{Y}, v{Z+1}")
    g(f"v_cvt_pk_bf16_f32 v{Y}, v{Y}, v{Y}")
    g(f"s_mov_b64 exec, s[{sMASK2}:{sMASK2+1}]")
    g(f"buffer_store_short v{Y}, v15, {srd(SOUT)}, s{sOO} offen")
    g(f"s_cmp_lg_u32 s2, 0")
    g("s_cbranch_scc1 L_noep")
    g(f"s_mov_b32 s{sT0}, {hex(W_EP)}")
    g("s_mov_b64 exec, 1")
    g(f"buffer_store_dword v{vTAG}, v7, {srd(SWS)}, s{sT0} offen sc1")
    g.label("L_noep")
    g("s_mov_b64 exec, -1")

    g.label("L_fin")
    if probe is not None:
        role, idx = probe
        g("s_waitcnt vmcnt(0)")
        g.stamp(11)
        g("s_waitcnt lgkmcnt(0)")
        g(f"s_mov_b32 s{sT0}, s{sSTAMP}")
        if role == 'wg':
            g(f"s_cmp_lg_u32 s2, {idx}")
            g("s_cbranch_scc1 L_end")
            g(f"s_cmp_lg_u32 s{sWAVE}, 0")
            g("s_cbranch_scc1 L_end")
        g(f"s_cmp_eq_u32 s{sWAVE}, 0")
        if role == 'h':
            g(f"s_cselect_b32 s{sT0}, s{sSTAMP+2*idx}, s{sT0}")
        elif role == 's':
            g(f"s_cselect_b32 s{sT0}, s{sT0}, s{sSTAMP+2*idx}")
        g(f"s_add_u32 s{sT0}, s{sT0}, 10000")
        g.label("L_probe")
        g(f"s_memrealtime s[{sSTAMP+2}:{sSTAMP+3}]")
        g("s_waitcnt lgkmcnt(0)")
        g(f"s_sub_u32 s{sT1}, s{sSTAMP+2}, s{sT0}")
        g(f"s_cmp_lt_i32 s{sT1}, 0")
        g("s_cbranch_scc1 L_probe")
    if diag:
        g("s_waitcnt vmcnt(0)")
        g.stamp(11)
        g("s_waitcnt lgkmcnt(0)")
        g(f"s_mul_i32 s{sT0}, s2, 5")
        g(f"s_add_u32 s{sT0}, s{sT0}, s{sWAVE}")
        g(f"s_lshl_b32 s{sT0}, s{sT0}, 6")
        g(f"s_add_u32 s{sT0}, s{sT0}, {hex(W_DIAG)}")
        for i in range(12):
            g(f"v_mov_b32 v{8+i}, s{sSTAMP+2*i}")
        g(f"v_mov_b32 v20, s{sSPIN}")
        g(f"v_mov_b32 v22, s{sIT}")
        g("s_getreg_b32 s3, hwreg(HW_REG_XCC_ID)")
        g("v_mov_b32 v21, s3")
        g("v_mov_b32 v23, 0")
        g("v_mov_b32 v1, 0")
        g("s_mov_b64 exec, 1")
        for i in range(4):
            g(f"buffer_store_dwordx4 {vq(8+4*i)}, v1, {srd(SWS)}, s{sT0} offen offset:{16*i}")
    g.label("L_end")
    g("s_endpgm")
    out += g.L
    out += ['.section .rodata,"a"', ".p2align 6", f".amdhsa_kernel {NAME}_kernel",
            "  .amdhsa_next_free_vgpr 256", "  .amdhsa_next_free_sgpr 102", "  .amdhsa_accum_offset 256",
            "  .amdhsa_group_segment_fixed_size 0", "  .amdhsa_kernarg_size 104", "  .amdhsa_user_sgpr_count 2",
            "  .amdhsa_user_sgpr_kernarg_segment_ptr 1", "  .amdhsa_system_sgpr_workgroup_id_x 1",
            "  .amdhsa_float_denorm_mode_32 3",
            ".end_amdhsa_kernel"]
    return "\n".join(out) + "\n"


if __name__ == "__main__":
    kw = eval("dict(%s)" % (sys.argv[2] if len(sys.argv) > 2 else ""))
    open(sys.argv[1], "w").write(gen(**kw))
```

```python
import sys, struct

NAME = "recurrent_scan__gqa_block_cached__dense_activation_squared_relu__decode"

HEADER = """; Kernarg layout for this problem (104 bytes, ptrs only, base s[0:1]):
;   offset  24: d_in[3] A_wq  shape=(512, 4096) dtype=bfloat16
;   offset  32: d_in[4] A_wo  shape=(4096, 512) dtype=bfloat16
;   offset  96: d_ws      workspace (tagged hand-offs between workgroups)
; One workgroup per (batch b, kv head h, key split s of 2048 keys). Waves 1..4 stream first all K, then all V of
; Wave 0 does the small work: layernorm, a slice of the q projection, softmax statistics across the 8 splits,
; a slice of the FFN and the final reduction. Every word handed between workgroups carries a launch tag
; (epoch word of d_ws + 1) in its low bits; readers poll until the tag is there.
"""

def f32(x):
    return "0x%08x" % struct.unpack("<I", struct.pack("<f", x))[0]

LOG2E = 1.4426950408889634
SCALE = 128 ** -0.5

L_Q = 0
L_TAG, L_CNT, L_KD, L_MAX, L_JN, L_F, L_TH, L_WR = 2048, 2056, 2060, 2064, 2080, 2096, 2128, 2132
L_PART, HS, WSP = 3072, 528, 2112
L_WQ, L_W1, L_W2, L_WO, L_SIZE = 12288, 28672, 36864, 45056, 61440
L_SC = L_WQ
A_Q, A_H, A_Z, A_Y, A_P, A_S = 0, 0x40000, 0x80000, 0xc0000, 0x100000, 0x180000
A_C = 0x1a0000
W_EP = 0x1c0000
W_DIAG = 0x280000
W_SIZE = 0x400000
OOB = 0x10000000

SK, SV, SWS, SWO, SW2, SX, SWQ, SW1, SB1, SB2, SOUT = 8, 12, 16, 20, 24, 28, 32, 36, 40, 44, 48
sWAVE, sB, sH, sS = 3, 4, 5, 6
sDR = 55
sSELLO, sSELHI, sSCALE, sLOG2E, sA, sBo, sIT = 56, 57, 58, 59, 60, 61, 62
sT0, sT1, sT2, sT3, sT4 = 63, 64, 65, 66, 67
sMASK = 68
sMASK2 = 70
sSPIN = 72
sHI = 73
sW = 74
sTAG = 75
sSTAMP = 76


class G:
    def __init__(self, diag=False):
        self.L = []
        self.diag = diag
        self.nstamp = {}

    def __call__(self, s):
        self.L.append("  " + s)

    def label(self, s):
        self.L.append(s + ":")

    def comment(self, s):
        self.L.append("  ; " + s)

    def stamp(self, i):
        if self.diag:
            self(f"s_memrealtime s[{sSTAMP+2*i}:{sSTAMP+2*i+1}]")

    def srd_consts(self, base, nbytes):
        self(f"s_mov_b32 s{base+2}, {hex(nbytes)}")
        self(f"s_mov_b32 s{base+3}, 0x20000")

    def srd_load(self, base, off):
        self(f"s_load_dwordx2 s[{base}:{base+1}], s[0:1], {off}")


def srd(b):
    return f"s[{b}:{b+3}]"


def vq(r, n=4):
    return f"v[{r}:{r+n-1}]"


def perms(g, raw, e, dst):
    sel = sSELHI if (e & 1) else sSELLO
    for j in range(4):
        g(f"v_perm_b32 v{dst+j}, v{raw[2*j+1] + (e >> 1)}, v{raw[2*j] + (e >> 1)}, s{sel}")


def rne(g, dst, src):
    g(f"v_cvt_pk_bf16_f32 v{dst}, v{src}, v{src}")
    g(f"v_lshlrev_b32 v{dst}, 16, v{dst}")


def tagcheck(g, regs, c1, c2, tag=None, mask=0xff):
    regs = list(dict.fromkeys(regs))
    for r in regs:
        g(f"v_xor_b32 v{r}, s{sTAG if tag is None else tag}, v{r}")
    r = list(regs)
    acc = [c1, c2] if len(r) >= 8 else [c1]
    started = []
    i = 0
    while r:
        d = acc[i % len(acc)]
        if d not in started:
            if len(r) >= 3:
                g(f"v_or3_b32 v{d}, v{r[0]}, v{r[1]}, v{r[2]}")
                r = r[3:]
            else:
                g(f"v_or_b32 v{d}, v{r[0]}, v{r[1]}")
                r = r[2:]
            started.append(d)
        elif len(r) >= 2:
            g(f"v_or3_b32 v{d}, v{d}, v{r[0]}, v{r[1]}")
            r = r[2:]
        else:
            if len(started) == 2:
                g(f"v_or3_b32 v{c1}, v{c1}, v{c2}, v{r[0]}")
                started = [c1]
            else:
                g(f"v_or_b32 v{d}, v{d}, v{r[0]}")
            r = []
        i += 1
    if len(started) == 2:
        g(f"v_or_b32 v{c1}, v{c1}, v{c2}")
    g(f"v_and_b32 v{c2}, {hex(mask)}, v{c1}")
    g(f"v_cmp_ne_u32 vcc, 0, v{c2}")


def reduce32x4(g, a):
    g(f"v_permlane32_swap_b32 v{a}, v{a+2}")
    g(f"v_permlane32_swap_b32 v{a+1}, v{a+3}")
    g(f"v_add_f32 v{a}, v{a}, v{a+2}")
    g(f"v_add_f32 v{a+1}, v{a+1}, v{a+3}")
    g("s_nop 1")
    g(f"v_permlane16_swap_b32 v{a}, v{a+1}")
    g(f"v_add_f32 v{a}, v{a}, v{a+1}")
    for r in (8, 4, 2):
        g("s_nop 1")
        g(f"v_add_f32_dpp v{a}, v{a}, v{a} row_ror:{r} row_mask:0xf bank_mask:0xf")


def gen(diag=False, kvflags="nt", wflags="nt", pace=11, pace3=None, spin_max=1 << 18, skip=(), probe=None, qwait=20,
        remap=False, fast=True, repub=3, bar0=4, pf=False, trig=4, ysig=4, brk=True, hstop=None, notail=False, lpace=None, pgrp=4, ks=(2, 1, 2, 1), vs=(2, 1, 2, 1), ps=None, es=0, eth=52, ctl=(18, 6, 48, 22), bs=0, sigearly=True, ypipe=2, touch=False, otouch=False, w1first=True, sth=56, cs=42, ysleep=0, zsleep=0, p1sleep=0, zfl='sc1', yfl='sc1', epf='sc1', xf='', mark2=False, stouch=True, btouch=0, det=True, sprio=0, cf='sc1', gf='sc1', csf='', cnone=False, rnd=True, w1ln=False,
        lay=(13, 15, 17, 18, 19, 12, 14, 16, 20, 21)):
    SPAN = 0x400000
    assert sorted(lay) == list(range(12, 22))
    tup = lambda x: (x,) * 4 if isinstance(x, int) else tuple(x)
    ps = tup(ks if ps is None else ps)
    ks, vs, es = tup(ks), tup(vs), tup(es)
    bs = tup(bs)
    lv = [ps, ks, vs, es, bs]
    nM = 4 + min(min(x) for x in lv)
    nK = nV = nM
    g = G(diag or probe is not None)
    out = [HEADER + f"; @launch grid=(256,1,1) block=(320,1,1) lds={L_SIZE}",
           '.amdgcn_target "amdgcn-amd-amdhsa--gfx950"', ".text", f".globl {NAME}_kernel", ".p2align 8",
           f".type {NAME}_kernel,@function", f"{NAME}_kernel:"]

    def poll(tag, loads, regs, t, sleep, first=None):
        g(f"s_mov_b32 s{sSPIN}, 0")
        if first is not None:
            for l in loads:
                g(l)
            first()
            g(f"s_branch L_pw{tag}")
        g.label(f"L_poll{tag}")
        for l in loads:
            g(l)
        g.label(f"L_pw{tag}")
        g("s_waitcnt vmcnt(0)")
        if tag == "1" and g.diag:
            g(f"s_cmp_lg_u32 s{sSPIN}, 0")
            g("s_cbranch_scc1 L_nost")
            g.stamp(10)
            g.label("L_nost")
        tagcheck(g, regs, t, t + 1)
        g(f"s_cbranch_vccz L_got{tag}")
        g("s_mov_b64 exec, vcc")
        if sleep:
            g(f"s_sleep {sleep}")
        g(f"s_add_u32 s{sSPIN}, s{sSPIN}, 1")
        g(f"s_cmp_lt_u32 s{sSPIN}, {hex(spin_max)}")
        g(f"s_cbranch_scc1 L_poll{tag}")
        g.label(f"L_got{tag}")
        g("s_mov_b64 exec, -1")

    def ldswait(tag, off, thr, sleep, vz, vt):
        g(f"s_mov_b32 s{sSPIN}, 0")
        g.label(f"L_w{tag}")
        g(f"ds_read_b32 v{vt}, v{vz} offset:{off}")
        g(f"s_add_u32 s{sSPIN}, s{sSPIN}, 1")
        g("s_waitcnt lgkmcnt(0)")
        g(f"v_cmp_le_u32 vcc, {thr}, v{vt}")
        g(f"s_cbranch_vccnz L_g{tag}")
        g(f"s_sleep {sleep}")
        g(f"s_cmp_lt_u32 s{sSPIN}, {hex(spin_max*16)}")
        g(f"s_cbranch_scc1 L_w{tag}")
        g.label(f"L_g{tag}")

    def tagged(dst, src, vmask, tg):
        if rnd:
            g(f"v_add_u32 v{dst}, 0x80, v{src}")
            g(f"v_bfi_b32 v{dst}, v{vmask}, s{tg}, v{dst}")
        else:
            g(f"v_bfi_b32 v{dst}, v{vmask}, s{tg}, v{src}")

    def store_mode(tag, instr, smode):
        if fast:
            g(f"s_cmp_eq_u32 s{smode}, 1")
            g(f"s_cbranch_scc0 L_sl{tag}")
            g(instr)
            g(f"s_branch L_sd{tag}")
            g.label(f"L_sl{tag}")
        g(instr + " sc1")
        g.label(f"L_sd{tag}")

    g("s_cmp_ge_u32 s2, 256")
    g("s_cbranch_scc1 L_end")
    g.srd_load(SX, 0)
    g.srd_load(SWQ, 24)
    g.srd_load(SWS, 96)
    g.srd_load(SK, 8)
    g.srd_consts(SWS, W_SIZE)
    g.stamp(0)
    if pf:
        g("s_getpc_b64 s[44:45]")
        g.label("L_pc0")
        g("s_lshr_b32 s46, s2, 3")
        g("s_lshl_b32 s46, s46, 9")
        g("v_and_b32 v2, 3, v0")
        g("v_lshl_add_u32 v2, v2, 7, s46")
        g("v_min_u32 v2, L_end - L_pc0, v2")
        g("global_load_dword v64, v2, s[44:45]")
    g("v_lshrrev_b32 v1, 6, v0")
    g("v_and_b32 v0, 63, v0")
    g(f"s_lshr_b32 s{sB}, s2, 6")
    g(f"v_readfirstlane_b32 s{sWAVE}, v1")
    if remap:
        g(f"s_and_b32 s{sS}, s2, 7")
        g(f"s_bfe_u32 s{sH}, s2, 0x30003")
        g(f"s_lshl_b32 s2, s{sB}, 3")
        g(f"s_add_u32 s2, s2, s{sS}")
        g(f"s_lshl_b32 s2, s2, 3")
        g(f"s_add_u32 s2, s2, s{sH}")
    else:
        g(f"s_and_b32 s{sH}, s2, 7")
        g(f"s_bfe_u32 s{sS}, s2, 0x30003")
    g(f"s_mov_b32 s{sHI}, 0xffff0000")
    g(f"s_cmp_eq_u32 s{sWAVE}, 0")
    g("s_cbranch_scc1 L_helper")

    vK, vV, vSC, vH4, vMC, vZ0, vZ1 = 1, 2, 3, 4, 5, 6, 7
    vQ, vT, vO = 8, 16, 32
    SLOT = [64, 128, 192]
    sWGB, sSLOW, sTH = 52, 53, 54
    sTI = (33, 34, 35)
    g.srd_consts(SK, SPAN)
    g(f"s_sub_u32 s{sW}, s{sWAVE}, 1")
    if touch:
        g(f"s_lshl_b32 s46, s{sW}, 3")
        g(f"s_add_u32 s46, s46, 48")
        g(f"s_load_dwordx2 s[44:45], s[0:1], s46")
        g.srd_load(SV, 16)
        g.srd_load(SWO, 32)
        g(f"s_lshl_b32 s46, s2, 12")
        g(f"s_lshl_b32 s47, s{sH}, 7")
        g(f"s_bitcmp1_b32 s{sW}, 0")
        g(f"s_cselect_b32 s46, s47, s46")
        g(f"v_mov_b32 v3, s46")
    g(f"s_lshl_b32 s{sWGB}, s{sB}, 3")
    g(f"s_add_u32 s{sWGB}, s{sWGB}, s{sH}")
    g(f"s_lshl_b32 s{sWGB}, s{sWGB}, 22")
    sROT = 39
    def scatter(dst, src, pos, first=None):
        i = 0
        while i < len(pos):
            n = 1
            while i + n < len(pos) and pos[i + n] == pos[i] + n:
                n += 1
            if first is None and i == 0:
                g(f"s_bfe_u32 s{dst}, s{src}, {hex((n << 16) + i)}")
                g(f"s_lshl_b32 s{dst}, s{dst}, {pos[i]}")
            else:
                g(f"s_bfe_u32 s{sT1}, s{src}, {hex((n << 16) + i)}")
                g(f"s_lshl_b32 s{sT1}, s{sT1}, {pos[i]}")
                g(f"s_or_b32 s{dst}, s{first if i == 0 else dst}, s{sT1}")
            i += n
    scatter(sROT, sS, lay[7:10])
    TPOS = lay[5:7] + lay[2:5]
    UOFF = [((u & 1) << lay[0]) + ((u >> 1) << lay[1]) for u in range(4)]
    scatter(sA, sW, lay[5:7], sROT)
    g(f"v_bfe_u32 v{vK}, v0, 1, 1")
    g(f"v_lshlrev_b32 v{vK}, 10, v{vK}")
    g(f"v_bfe_u32 v{vZ0}, v0, 2, 2")
    g(f"v_lshl_add_u32 v{vK}, v{vZ0}, 8, v{vK}")
    g(f"v_lshrrev_b32 v{vZ1}, 4, v0")
    g(f"v_lshl_add_u32 v{vK}, v{vZ1}, 5, v{vK}")
    g(f"v_and_b32 v{vZ0}, 1, v0")
    g(f"v_lshl_add_u32 v{vK}, v{vZ0}, 4, v{vK}")
    g("s_waitcnt lgkmcnt(0)")
    g(f"s_add_u32 s{SK}, s{SK}, s{sWGB}")
    g(f"s_addc_u32 s{SK+1}, s{SK+1}, 0")
    if touch:
        g(f"s_add_u32 s{SV}, s{SV}, s{sWGB}")
        g(f"s_addc_u32 s{SV+1}, s{SV+1}, 0")
        g(f"s_lshl_b32 s46, s{sH}, 19")
        g(f"s_lshr_b32 s47, s2, 3")
        g(f"s_lshl_b32 s47, s47, 14")
        g(f"s_add_u32 s46, s46, s47")
        g(f"s_add_u32 s46, s{SWO}, s46")
        g(f"s_addc_u32 s47, s{SWO+1}, 0")
        g(f"s_bitcmp1_b32 s{sW}, 0")
        g(f"s_cselect_b64 s[46:47], s[46:47], s[{SV}:{SV+1}]")
        g(f"v_mov_b32 v4, 0")
        g("global_load_dword v64, v3, s[44:45]")
        g("global_load_dword v64, v4, s[46:47] nt")
    g("s_barrier")

    def issue(X, isk, paced=None, sp=None):
        if sp is None:
            sp = ks if isk else vs
        for u in range(4):
            so = sA
            for j in range(4):
                vo, rs, off = (vK, SK, (j & 1) * 128 + (j >> 1) * 2048) if isk else (vV, SV, j * 1024)
                d = X + 16 * u + 4 * j
                if j < sp[u]:
                    g(f"buffer_load_dwordx2 {vq(d,2)}, v{vo}, {srd(rs)}, s{so} offen offset:{off} {kvflags}")
                    g(f"buffer_load_dwordx2 {vq(d+2,2)}, v{vo}, {srd(rs)}, s{so} offen offset:{off+8} {kvflags}")
                else:
                    g(f"buffer_load_dwordx4 {vq(d)}, v{vo}, {srd(rs)}, s{so} offen offset:{off} {kvflags}")
                if paced is not None and (j + 1) % pgrp == 0:
                    g(f"s_waitcnt vmcnt({paced})")
            if u < 3:
                g(f"s_add_u32 s{sA}, s{sA}, {hex((UOFF[u+1] - UOFF[u]) & 0xffffffff)}")

    issue(SLOT[0], True, pace, ps)
    if not touch:
        g.srd_load(SV, 16)
        g.srd_load(SWO, 32)
    g.srd_consts(SV, SPAN)
    g.srd_consts(SWO, 4096 * 512 * 2)
    g(f"v_lshlrev_b32 v{vV}, 4, v0")
    g(f"s_mov_b32 s{sSELLO}, 0x05040100")
    g(f"s_mov_b32 s{sSELHI}, 0x07060302")
    g(f"s_mov_b32 s{sLOG2E}, {f32(LOG2E)}")
    g(f"s_mov_b32 s{sSCALE}, {f32(SCALE)}")
    g(f"s_mov_b32 s{sIT}, 0")
    g(f"s_mov_b32 s{sDR}, 0")
    sVN = 30
    g(f"s_add_u32 s{sVN}, s{sW}, 32")
    for k in range(3):
        g(f"s_add_u32 s{sTI[k]}, s{sW}, {4*k}")
    g(f"s_mov_b32 s{sMASK}, 0x000f000f")
    g(f"s_mov_b32 s{sMASK+1}, 0x000f000f")
    g(f"v_and_b32 v{vH4}, 3, v0")
    g(f"v_lshlrev_b32 v{vT}, 8, v{vH4}")
    g(f"v_lshl_add_u32 v{vT}, v{vZ1}, 5, v{vT}")
    g(f"v_bfe_u32 v{vZ0}, v0, 2, 1")
    g(f"v_lshl_add_u32 v{vT}, v{vZ0}, 4, v{vT}")
    g(f"v_lshlrev_b32 v{vSC}, 6, v{vZ1}")
    g(f"v_lshl_add_u32 v{vSC}, v{vH4}, 4, v{vSC}")
    g(f"v_lshlrev_b32 v{vH4}, 2, v{vH4}")
    g(f"v_mov_b32 v{vZ0}, 0")
    g(f"v_mov_b32 v{vZ1}, 1")
    sD0 = 28
    g(f"s_lshl_b32 s{sD0}, s{sH}, 2")
    g(f"s_add_u32 s{sD0}, s{sD0}, s{sB}")
    g(f"s_lshl_b32 s{sD0}, s{sD0}, 6")
    g(f"s_add_u32 s{sD0}, s{sD0}, s{sW}")
    g(f"s_lshl_b32 s{sD0}, s{sD0}, 11")
    g(f"s_lshl_b32 s{sT0}, s{sS}, 7")
    g(f"s_add_u32 s{sD0}, s{sD0}, s{sT0}")
    if 'wo' in skip:
        g(f"s_mov_b32 s{sD0}, {hex(OOB)}")
    g(f"s_add_u32 s{sD0+1}, s{sD0}, {64*1024 - 2048}")
    sH1S, sH1G, sYS = 36, 37, 38
    g(f"s_lshl_b32 s{sT0}, s{sW}, 12")
    g(f"s_add_u32 m0, s{sT0}, {L_WO}")
    g(f"s_lshl_b32 s{sH1S}, s2, 2")
    g(f"s_add_u32 s{sH1S}, s{sH1S}, s{sW}")
    g(f"s_lshl_b32 s{sYS}, s{sH1S}, 8")
    g(f"s_add_u32 s{sYS}, s{sYS}, {hex(A_Y)}")
    g(f"s_lshl_b32 s{sH1S}, s{sH1S}, 9")
    g(f"s_add_u32 s{sH1S}, s{sH1S}, {hex(A_P)}")
    g(f"s_lshl_b32 s{sH1G}, s{sW}, 6")
    g(f"s_add_u32 s{sH1G}, s{sH1G}, s{sH}")
    g(f"s_lshl_b32 s{sH1G}, s{sH1G}, 2")
    g(f"s_add_u32 s{sH1G}, s{sH1G}, s{sB}")
    g(f"s_lshl_b32 s{sH1G}, s{sH1G}, 9")
    g(f"s_add_u32 s{sH1G}, s{sH1G}, {hex(A_P)}")
    if btouch:
        g(f"s_lshl_b32 s{sT0}, s{sW}, 3")
        scatter(sT2, sT0, TPOS, sROT)
        g("s_waitcnt lgkmcnt(0)")
        g(f"s_add_u32 s40, s{SK}, s{sT2}")
        g(f"s_addc_u32 s41, s{SK+1}, 0")
        g(f"s_add_u32 s{sT2}, s{sT2}, s{sWGB}")
        g(f"s_add_u32 s42, s{SV}, s{sT2}")
        g(f"s_addc_u32 s43, s{SV+1}, 0")
        n = 44
        for base in (40, 42):
            for blk in range(2):
                for sub in range(btouch):
                    g(f"s_load_dword s{n}, s[{base}:{base+1}], {hex((blk << lay[2]) + sub * (0x10000 // btouch))}")
                    n = 44 + (n - 43) % 8
    scatter(sA, sTI[1], TPOS, sROT)
    issue(SLOT[1], True, pace, ps)
    scatter(sA, sTI[2], TPOS, sROT)
    issue(SLOT[2], True, pace3, ps)
    g.stamp(1)
    g(f"s_mov_b32 s{sSPIN}, 0")
    g.label("L_wq")
    g(f"ds_read_b64 {vq(vT+2,2)}, v{vZ0} offset:{L_TAG}")
    g(f"s_add_u32 s{sSPIN}, s{sSPIN}, 1")
    g("s_waitcnt lgkmcnt(0)")
    g(f"v_cmp_ne_u32 vcc, 0, v{vT+3}")
    g("s_cbranch_vccnz L_wq_ok")
    g("s_sleep 2")
    g(f"s_cmp_lt_u32 s{sSPIN}, {hex(spin_max*16)}")
    g("s_cbranch_scc1 L_wq")
    g.label("L_wq_ok")
    if sprio:
        g(f"s_setprio {sprio}")
    if not touch:
        g(f"s_add_u32 s{SV}, s{SV}, s{sWGB}")
        g(f"s_addc_u32 s{SV+1}, s{SV+1}, 0")
    for j in range(2):
        g(f"ds_read_b128 {vq(vQ+4*j)}, v{vT} offset:{L_Q + 128*j}")
    g.stamp(2)
    g(f"v_readfirstlane_b32 s{sTAG}, v{vT+2}")
    g(f"v_readfirstlane_b32 s{sSLOW}, v{vT+3}")
    g("s_waitcnt lgkmcnt(0)")

    def take(k):
        g("s_mov_b64 exec, 1")
        g(f"ds_add_rtn_u32 v{vT}, v{vZ0}, v{vZ1} offset:{L_CNT}")
        g(f"ds_read_b32 v{vT+1}, v{vZ0} offset:{L_TH}")
        g("s_mov_b64 exec, -1")
        g("s_waitcnt lgkmcnt(0)")
        g(f"v_readfirstlane_b32 s{sTI[k]}, v{vT}")
        g(f"v_readfirstlane_b32 s{sTH}, v{vT+1}")
        if det:
            g(f"s_cmp_ge_u32 s{sTI[k]}, 32")
            g(f"s_cselect_b32 s{sTI[k]}, s{sVN}, s{sTI[k]}")
            g(f"s_cselect_b32 s{sT1}, 4, 0")
            g(f"s_add_u32 s{sVN}, s{sVN}, s{sT1}")
        scatter(sA, sTI[k], TPOS, sROT)

    def ktile(k):
        X = SLOT[k]
        for G_ in range(8):
            if G_ % 2 == 0:
                g(f"s_waitcnt vmcnt({min(63, 8*nM + (3 - G_//2)*nK)})")
            for j in range(2):
                c = "0" if j == 0 else vq(vO + 4 * G_)
                g(f"v_mfma_f32_16x16x32_bf16 {vq(vO+4*G_)}, {vq(X+8*G_+4*j)}, {vq(vQ+4*j)}, {c}")
        for i in range(16):
            g(f"v_add_f32_dpp v{vT+i}, v{vO+2*i+1}, v{vO+2*i} row_shl:4 row_mask:0xf bank_mask:0xf bound_ctrl:0")
        for i in range(8):
            g(f"v_cvt_pk_bf16_f32 v{vO+i}, v{vT+2*i}, v{vT+2*i+1}")
        for i in range(8):
            g(f"v_lshlrev_b32 v{vT+2*i}, 16, v{vO+i}")
            g(f"v_and_b32 v{vT+2*i+1}, s{sHI}, v{vO+i}")
        for i in range(16):
            g(f"v_mul_f32 v{vT+i}, s{sSCALE}, v{vT+i}")
        for i in range(8):
            g(f"v_cvt_pk_bf16_f32 v{vO+8+i}, v{vT+2*i}, v{vT+2*i+1}")
        g(f"s_lshl_b32 s{sT0}, s{sTI[k]}, 9")
        g(f"v_add_u32 v{vO+16}, s{sT0}, v{vSC}")
        g(f"v_max3_f32 v{vO+17}, v{vT}, v{vT+1}, v{vT+2}")
        g(f"v_max3_f32 v{vO+18}, v{vT+3}, v{vT+4}, v{vT+5}")
        g(f"v_max3_f32 v{vO+17}, v{vO+17}, v{vT+6}, v{vT+7}")
        g(f"v_max3_f32 v{vO+18}, v{vO+18}, v{vT+8}, v{vT+9}")
        g(f"v_max3_f32 v{vO+17}, v{vO+17}, v{vT+10}, v{vT+11}")
        g(f"v_max3_f32 v{vO+18}, v{vO+18}, v{vT+12}, v{vT+13}")
        g(f"v_max3_f32 v{vO+17}, v{vO+17}, v{vT+14}, v{vT+15}")
        g(f"v_max_f32 v{vO+17}, v{vO+17}, v{vO+18}")
        g(f"s_mov_b64 exec, s[{sMASK}:{sMASK+1}]")
        g(f"ds_write_b128 v{vO+16}, {vq(vO+8)} offset:{L_SC}")
        g(f"ds_write_b128 v{vO+16}, {vq(vO+12)} offset:{L_SC+256}")
        g(f"ds_max_f32 v{vH4}, v{vO+17} offset:{L_MAX}")
        g(f"ds_add_u32 v{vZ0}, v{vZ1} offset:{L_KD}")

    def vtile(k):
        X = SLOT[k]
        P = vQ
        cnt = [0]
        def wait(n):
            g(f"s_waitcnt vmcnt({min(63, n + 8*nV)})")
            g(f"s_cbranch_scc0 L_w{k}{cnt[0]}")
            g(f"s_waitcnt vmcnt({n + 4})")
            g.label(f"L_w{k}{cnt[0]}")
            cnt[0] += 1
        g(f"s_lshl_b32 s{sT0}, s{sTI[k]}, 9")
        g(f"s_sub_u32 s{sT0}, s{sT0}, {32*512 - L_SC}")
        g(f"v_add_u32 v{vT}, s{sT0}, v{vSC}")
        g(f"ds_read_b128 {vq(P)}, v{vT}")
        g(f"ds_read_b128 {vq(P+4)}, v{vT} offset:256")
        g(f"s_cmp_eq_u32 s{sDR}, 2")
        g("s_waitcnt lgkmcnt(0)")
        for i in range(8):
            g(f"v_lshlrev_b32 v{vT+2*i}, 16, v{P+i}")
            g(f"v_and_b32 v{vT+2*i+1}, s{sHI}, v{P+i}")
        for i in range(16):
            g(f"v_fma_f32 v{vT+i}, v{vT+i}, s{sLOG2E}, -v{vMC}")
        for i in range(16):
            g(f"v_exp_f32 v{vT+i}, v{vT+i}")
        for i in range(8):
            g(f"v_cvt_pk_bf16_f32 v{P+i}, v{vT+2*i}, v{vT+2*i+1}")
        for hb in range(2):
            raw = [X + 32 * hb + 4 * t for t in range(8)]
            wait(2 * nV * (1 - hb))
            perms(g, raw, 0, vT)
            perms(g, raw, 1, vT + 4)
            for e in range(8):
                if e == 7:
                    g("s_nop 0")
                g(f"v_mfma_f32_16x16x32_bf16 {vq(vO+4*e)}, {vq(vT+4*(e%4))}, {vq(P+4*hb)}, {vq(vO+4*e)}")
                if e + 2 < 8:
                    perms(g, raw, e + 2, vT + 4 * ((e + 2) % 4))

    g.L.append(".p2align 3")
    for k in range(3):
        g.comment('K tile: scores = bf16(bf16(q.k) * 128^-0.5) -> LDS, running maximum per head (ds_max), next tile')
        g.label(f"L_k{k}")
        g(f"s_cmp_ge_u32 s{sTI[k]}, 32")
        g(f"s_cbranch_scc1 L_tr{k}")
        ktile(k)
        take(k)
        g(f"s_cmp_ge_u32 s{sTI[k]}, 32")
        g(f"s_cbranch_scc1 L_kv{k}")
        g(f"s_cmp_ge_u32 s{sTI[k]}, s{sTH}")
        g(f"s_cbranch_scc1 L_kb{k}")
        issue(SLOT[k], True, lpace)
    g("s_branch L_k0")
    for k in range(3):
        g.label(f"L_kb{k}")
        if g.diag:
            g(f"s_add_u32 s{sIT}, s{sIT}, 1")
        issue(SLOT[k], True, lpace, bs)
        g(f"s_branch L_k{(k+1)%3}")
        g.label(f"L_kv{k}")
        g(f"s_cmp_ge_u32 s{sTI[k]}, s{sTH}")
        g(f"s_cbranch_scc1 L_kvb{k}")
        issue(SLOT[k], False, lpace)
        g(f"s_branch L_k{(k+1)%3}")
        g.label(f"L_kvb{k}")
        if g.diag:
            g(f"s_add_u32 s{sIT}, s{sIT}, 1")
        issue(SLOT[k], False, lpace, es)
        g(f"s_branch L_k{(k+1)%3}")
    for k in range(3):
        g.label(f"L_tr{k}")
        g(f"s_mov_b32 s{sT4}, {k}")
        if k < 2:
            g("s_branch L_trans")
    g.label("L_trans")
    g.stamp(7)
    for i in range(32):
        g(f"v_mov_b32 v{vO+i}, 0")
    ldswait("kd", L_KD, 512, 1, vZ0, vT)
    g(f"ds_read_b32 v{vMC}, v{vH4} offset:{L_MAX}")
    g.stamp(8)
    g("s_waitcnt lgkmcnt(0)")
    rne(g, vMC, vMC)
    g(f"v_mul_f32 v{vMC}, s{sLOG2E}, v{vMC}")
    g(f"s_cmp_eq_u32 s{sT4}, 1")
    g("s_cbranch_scc1 L_v1")
    g(f"s_cmp_eq_u32 s{sT4}, 2")
    g("s_cbranch_scc1 L_v2")
    g.L.append(".p2align 3")
    for k in range(3):
        g.comment('V tile: p = exp(s - max) in bf16, V transposed in registers (v_perm), O += V^T p')
        g.label(f"L_v{k}")
        vtile(k)
        g(f"s_cmp_lg_u32 s{sDR}, 0")
        g(f"s_cbranch_scc1 L_dr{k}")
        take(k)
        g(f"s_cmp_ge_u32 s{sTI[k]}, s{sTH}")
        g(f"s_cbranch_scc1 L_ve{k}")
        issue(SLOT[k], False, lpace)
    g("s_branch L_v0")
    for k in range(3):
        g.label(f"L_ve{k}")
        g(f"s_cmp_ge_u32 s{sTI[k]}, 64")
        g(f"s_cbranch_scc1 L_dr1{k}")
        if g.diag:
            g(f"s_add_u32 s{sIT}, s{sIT}, 1")
        issue(SLOT[k], False, lpace, es)
        g(f"s_branch L_v{(k+1)%3}")

    vPW = vK
    for k in range(3):
        nxt = f"L_v{(k+1)%3}"
        g.label(f"L_dr{k}")
        g(f"s_cmp_eq_u32 s{sDR}, 2")
        g(f"s_cbranch_scc1 L_tail")
        g(f"s_mov_b32 s{sDR}, 2")
        g(f"s_branch {nxt}")
        g.label(f"L_dr1{k}")
        g(f"s_mov_b32 s{sT4}, {(k+1)%3}")
        if k < 2:
            g("s_branch L_drain")
    g.label("L_drain")
    va = vT
    g(f"v_lshrrev_b32 v{va}, 3, v0")
    g(f"v_lshlrev_b32 v{va}, 13, v{va}")
    g(f"v_and_b32 v{va+1}, 7, v0")
    g(f"v_lshl_add_u32 v{va}, v{va+1}, 4, v{va}")
    g(f"v_and_b32 v{va+1}, 16, v0")
    g(f"v_lshlrev_b32 v{va+1}, 1, v{va+1}")
    g(f"s_and_b32 s{sT0}, s{sW}, 1")
    g(f"s_lshl_b32 s{sT0}, s{sT0}, 6")
    g(f"v_bitop3_b32 v{va}, v{va}, v{va+1}, s{sT0} bitop3:0x96")
    for i in range(4):
        g(f"buffer_load_dwordx4 v{va}, {srd(SWO)}, s{sD0 + (i>>1)} offen offset:{1024*i} {wflags} lds")
    g(f"v_lshrrev_b32 v{vPW}, 4, v0")
    g(f"v_lshlrev_b32 v{vPW}, 4, v{vPW}")
    g(f"v_mul_u32_u24 v{va+1}, {HS//4}, v{vH4}")
    g(f"s_mul_i32 s{sT0}, s{sW}, {WSP}")
    g(f"v_add3_u32 v{vPW}, v{vPW}, v{va+1}, s{sT0}")
    g(f"s_mov_b32 s{sDR}, 1")
    g(f"s_waitcnt vmcnt({4*nV + 4})")
    g(f"s_cmp_eq_u32 s{sT4}, 1")
    g("s_cbranch_scc1 L_v1")
    g(f"s_cmp_eq_u32 s{sT4}, 2")
    g("s_cbranch_scc1 L_v2")
    g("s_branch L_v0")

    X = 64
    WT = 128
    g.label("L_tail")
    g.stamp(3)
    if notail:
        g("s_branch L_fin")
    RA, RF, vJ, vFF, vP1, vG, TM = 8, 9, 10, 11, 12, 13, 14
    TRA = (16, 17, 18, 19)
    g(f"s_lshl_b32 s{sT0}, s{sW}, 2")
    g(f"v_mov_b32 v{vJ}, s{sT0}")
    g(f"v_and_b32 v{RA}, 31, v0")
    g(f"s_mul_i32 s{sT1}, s{sW}, {HS}")
    g(f"v_lshl_add_u32 v{RA}, v{RA}, 4, s{sT1}")
    g(f"v_lshlrev_b32 v{RF}, 1, v{vJ}")
    g(f"s_mov_b64 exec, s[{sMASK}:{sMASK+1}]")
    for e in range(8):
        g(f"ds_write_b128 v{vPW}, {vq(vO+4*e)} offset:{L_PART + 64*e}")
    if not mark2:
        g("s_waitcnt vmcnt(0)")
    g(f"ds_write_b32 v{vJ}, v{vZ1} offset:{L_JN}")
    g("s_mov_b64 exec, -1")
    PR = X
    JN, FF_ = X + 16, X + 20
    def joinreads():
        g(f"ds_read_b128 {vq(JN)}, v{vZ0} offset:{L_JN}")
        g(f"ds_read_b64 {vq(FF_,2)}, v{RF} offset:{L_F}")
        for w in range(4):
            g(f"ds_read_b128 {vq(PR+4*w)}, v{RA} offset:{L_PART + WSP*w}")
    joinreads()
    g(f"v_mov_b32 v{vFF}, 0xff")
    g(f"v_lshrrev_b32 v{vP1}, 3, v0")
    g(f"v_lshlrev_b32 v{vP1}, 14, v{vP1}")
    g(f"v_and_b32 v{TM}, 7, v0")
    g(f"v_lshl_add_u32 v{vP1}, v{TM}, 4, v{vP1}")
    g(f"v_lshrrev_b32 v{vG}, 4, v0")
    g(f"v_bfe_u32 v{TRA[0]}, v0, 2, 2")
    g(f"v_lshlrev_b32 v{TRA[0]}, 7, v{TRA[0]}")
    g(f"v_lshl_add_u32 v{TRA[0]}, v{vH4}, 1, v{TRA[0]}")
    g(f"v_lshl_add_u32 v{TRA[0]}, v{vG}, 12, v{TRA[0]}")
    g(f"v_bfe_u32 v{TM}, v0, 3, 2")
    g(f"v_lshl_add_u32 v{TRA[0]}, v{TM}, 5, v{TRA[0]}")
    for j in range(1, 4):
        g(f"v_xor_b32 v{TRA[j]}, {32*j}, v{TRA[0]}")
    g(f"s_mov_b32 s{sMASK}, -1")
    g(f"s_mov_b32 s{sMASK+1}, 0")
    g(f"s_mov_b32 s{sSPIN}, 0")
    g.label("L_join")
    g("s_waitcnt lgkmcnt(0)" if g.diag else "s_waitcnt lgkmcnt(4)")
    g(f"v_min3_u32 v{TM}, v{JN}, v{JN+1}, v{JN+2}")
    g(f"v_min3_u32 v{TM}, v{TM}, v{JN+3}, v{FF_+1}")
    g(f"v_cmp_eq_u32 vcc, 0, v{TM}")
    g("s_waitcnt lgkmcnt(0)")
    g("s_cbranch_vccz L_joined")
    joinreads()
    g(f"s_add_u32 s{sSPIN}, s{sSPIN}, 1")
    g(f"s_cmp_lt_u32 s{sSPIN}, {hex(spin_max*16)}")
    g("s_cbranch_scc1 L_join")
    g("s_waitcnt lgkmcnt(0)")
    g.label("L_joined")
    g.stamp(4)
    for i in range(4):
        g(f"v_add_f32 v{PR+i}, v{PR+i}, v{PR+4+i}")
        g(f"v_add_f32 v{PR+8+i}, v{PR+8+i}, v{PR+12+i}")
    for i in range(4):
        g(f"v_add_f32 v{PR+i}, v{PR+i}, v{PR+8+i}")
    for i in range(4):
        g(f"v_mul_f32 v{PR+i}, v{FF_}, v{PR+i}")
    for i in range(4):
        tagged(PR + i, PR + i, vFF, sTAG)
    g(f"s_mov_b64 exec, s[{sMASK}:{sMASK+1}]")
    store_mode("p", f"buffer_store_dwordx4 {vq(PR)}, v{vV}, {srd(SWS)}, s{sH1S} offen", sSLOW)
    g("s_mov_b64 exec, -1")
    D = X + 24
    C1 = X + 40
    def wofrag():
        if mark2:
            g("s_waitcnt vmcnt(5)")
            g("s_mov_b64 exec, 1")
            g(f"ds_add_u32 v{vZ0}, v{vZ1} offset:{L_WR}")
            g("s_mov_b64 exec, -1")
            g(f"s_mov_b32 s{sT2}, 0")
            g.label("L_wwo")
            g(f"ds_read_b32 v{TM}, v{vZ0} offset:{L_WR}")
            g(f"s_add_u32 s{sT2}, s{sT2}, 1")
            g("s_waitcnt lgkmcnt(0)")
            g(f"v_cmp_le_u32 vcc, 4, v{TM}")
            g("s_cbranch_vccnz L_gwo")
            g(f"s_cmp_lt_u32 s{sT2}, {hex(spin_max*16)}")
            g("s_cbranch_scc1 L_wwo")
            g.label("L_gwo")
        for step in range(4):
            for j in range(4):
                for half in range(2):
                    g(f"ds_read_b64_tr_b16 {vq(WT+16*step+4*j+2*half,2)}, v{TRA[j]} offset:{L_WO + 1024*((step>>1) + 2*(step&1)) + 512*half}")
    g.stamp(9)
    poll("1", [f"buffer_load_dwordx4 {vq(D+4*i)}, v{vP1}, {srd(SWS)}, s{sH1G} offen offset:{128*i} {gf}" for i in range(4)],
         [D + i for i in range(16)], C1, p1sleep, wofrag)
    g.stamp(5)
    if sigearly:
        g(f"ds_add_u32 v{vZ0}, v{vZ1} offset:{L_KD}")
    for i in range(8):
        g(f"v_permlane32_swap_b32 v{D+i}, v{D+8+i}")
    for i in range(8):
        g(f"v_add_f32 v{D+i}, v{D+i}, v{D+8+i}")
    for i in range(4):
        g(f"v_permlane16_swap_b32 v{D+i}, v{D+4+i}")
    for i in range(4):
        g(f"v_add_f32 v{D+i}, v{D+i}, v{D+4+i}")
    for i in range(4):
        g(f"v_add_f32_dpp v{D+i}, v{D+i}, v{D+i} row_ror:8 row_mask:0xf bank_mask:0xf")
    B0 = X + 44
    g(f"v_cvt_pk_bf16_f32 v{B0}, v{D}, v{D+1}")
    g(f"v_cvt_pk_bf16_f32 v{B0+1}, v{D+2}, v{D+3}")
    g("s_waitcnt lgkmcnt(0)")
    def mv(c):
        for i in range(2):
            g(f"v_mov_b32_dpp v{B0+2*c+i}, v{B0+i} row_shl:{c} row_mask:0xf bank_mask:0xf bound_ctrl:0")
    mv(1)
    mv(2)
    for step in range(4):
        for j in range(4):
            c = "0" if step == 0 else vq(vO + 4 * j)
            g(f"v_mfma_f32_16x16x32_bf16 {vq(vO+4*j)}, {vq(B0+4*step)}, {vq(WT+16*step+4*j)}, {c}")
            if step * 4 + j < 5:
                mv(3 + step * 4 + j)
    if not sigearly:
        g(f"ds_add_u32 v{vZ0}, v{vZ1} offset:{L_KD}")
    else:
        g("s_nop 0")
    g("s_mov_b64 exec, 0xffff")
    g("s_nop 2")
    YO = 20
    for j in range(4):
        tagged(YO + j, vO + 4 * j, vFF, sTAG)
    g(f"buffer_store_dwordx4 {vq(YO)}, v{vV}, {srd(SWS)}, s{sYS} offen {yfl}")
    g("s_mov_b64 exec, -1")
    g.stamp(6)
    g("s_branch L_fin")

    g.label("L_helper")
    g(f"v_mov_b32 v7, 0")
    g(f"v_lshlrev_b32 v8, 2, v0")
    g(f"ds_write_b32 v8, v7 offset:{L_TAG}")
    g(f"v_mov_b32 v9, 12")
    g(f"ds_write_b32 v7, v9 offset:{L_CNT}")
    g(f"v_mov_b32 v9, {eth}")
    g(f"ds_write_b32 v7, v9 offset:{L_TH}")
    g(f"v_and_b32 v8, 12, v8")
    g(f"v_mov_b32 v9, 0xff800000")
    g(f"ds_write_b32 v8, v9 offset:{L_MAX}")
    if bar0 == 0:
        g("s_waitcnt lgkmcnt(0)")
        g("s_barrier")
    g("s_setprio 3")
    g.srd_consts(SX, 4096)
    g.srd_consts(SWQ, 512 * 4096 * 2)
    hT = 20
    hACC = 32
    R = 48
    XR = 64
    XF = 80
    WF = 128
    vX, vTAG, vTR, vFFh, vH4h = 2, 6, 9, 11, 8
    sU, sC1 = 52, 54
    g(f"s_and_b32 s{sU}, s{sS}, 1")
    g(f"v_and_b32 v3, 3, v0")
    g(f"v_lshlrev_b32 v{vX}, 10, v3")
    g(f"v_bfe_u32 v4, v0, 2, 2")
    g(f"s_lshl_b32 s{sT0}, s{sU}, 1")
    g(f"v_xor_b32 v5, s{sT0}, v4")
    g(f"v_lshl_add_u32 v{vX}, v5, 6, v{vX}")
    g(f"v_lshrrev_b32 v5, 4, v0")
    g(f"v_lshl_add_u32 v{vX}, v5, 4, v{vX}")
    SXO = (56, 57, 58, 59)
    for j in range(4):
        g(f"s_xor_b32 s{SXO[j]}, s{sB}, {j}")
        g(f"s_lshl_b32 s{SXO[j]}, s{SXO[j]}, 8")
    g(f"v_lshrrev_b32 v10, 3, v0")
    g(f"v_and_b32 v11, 7, v0")
    g(f"v_lshlrev_b32 v11, 4, v11")
    VQ, V1, V2 = 112, 116, 120
    g(f"v_lshl_add_u32 v{VQ}, v10, 13, v11")
    for i in range(1, 4):
        g(f"v_add_u32 v{VQ+i}, {hex(i*(8*8192 - 1024))}, v{VQ}")
    SQO = (sA, sBo, sIT, sT0)
    g(f"s_lshl_b32 s{sT1}, s{sH}, 3")
    g(f"s_add_u32 s{sT1}, s{sT1}, s{sS}")
    g(f"s_lshl_b32 s{sT1}, s{sT1}, 7")
    g(f"s_lshl_b32 s{sT2}, s{sB}, 20")
    g(f"s_add_u32 s{sT1}, s{sT1}, s{sT2}")
    if 'wq' in skip:
        g(f"s_mov_b32 s{sT1}, {hex(OOB)}")
    g(f"s_lshl_b32 s{sT2}, s{sU}, 19")
    g(f"s_add_u32 s{SQO[0]}, s{sT1}, s{sT2}")
    g(f"s_add_u32 s{SQO[1]}, s{SQO[0]}, {hex(32*8192)}")
    g(f"s_xor_b32 s{sT2}, s{sT2}, {hex(64*8192)}")
    g(f"s_add_u32 s{SQO[2]}, s{sT1}, s{sT2}")
    g(f"s_add_u32 s{SQO[3]}, s{SQO[2]}, {hex(32*8192)}")
    g(f"s_mov_b32 s{sSPIN}, {hex(W_EP)}")
    g(f"s_mov_b32 m0, {L_WQ}")
    g("s_waitcnt lgkmcnt(0)")
    for j in range(4):
        g(f"buffer_load_dwordx4 {vq(XR+4*j)}, v{vX}, {srd(SX)}, s{SXO[j]} offen {xf}")
    g(f"buffer_load_dword v{vTAG}, v7, {srd(SWS)}, s{sSPIN} offen {epf}")
    for n, so in enumerate(SQO):
        for i in range(4):
            g(f"buffer_load_dwordx4 v{VQ+i}, {srd(SWQ)}, s{so} offen offset:{1024*i} {wflags} lds")
        if n + 1 == bar0:
            g("s_barrier")
        if n < 3:
            g(f"s_add_u32 m0, m0, 4096")
            g("s_nop 0")
    for (b_, off, nb) in ((SB1, 56, 1792 * 2), (SB2, 72, 1024), (SW1, 48, 512 * 1792 * 2), (SW2, 64, 1792 * 512 * 2), (SOUT, 80, 4096)):
        g.srd_load(b_, off)
        g.srd_consts(b_, nb)
    g(f"s_lshr_b32 s{sC1}, s{sS}, 1")
    g(f"s_lshl_b32 s{sC1}, s{sC1}, 3")
    g(f"s_add_u32 s{sC1}, s{sC1}, s{sH}")
    vQS = 10
    g(f"v_lshlrev_b32 v{vQS}, 8, v3")
    g(f"v_lshl_add_u32 v{vQS}, v4, 6, v{vQS}")
    g(f"v_lshl_add_u32 v{vQS}, v5, 4, v{vQS}")
    sOWN, sOWNH, sOWNZ = sA, sBo, sIT
    g(f"s_lshl_b32 s{sOWN}, s2, 10")
    g(f"s_add_u32 s{sOWNH}, s{sOWN}, {hex(A_H)}")
    g(f"s_add_u32 s{sOWNZ}, s{sOWN}, {hex(A_Z)}")
    g(f"v_lshlrev_b32 v{vTR}, 10, v5")
    g(f"v_lshl_add_u32 v{vTR}, v4, 7, v{vTR}")
    g(f"v_lshl_add_u32 v{vTR}, v3, 3, v{vTR}")
    g(f"v_mov_b32 v{vFFh}, 0xff")
    SM1, SM2, SM3 = 12, 14, 68
    for (sm, c) in ((SM1, 1), (SM2, 2), (SM3, 3)):
        g(f"s_mov_b32 s{sm}, {hex(0x000f000f << (4*c))}")
        g(f"s_mov_b32 s{sm+1}, {hex(0x000f000f << (4*c))}")
    def red4(v, t):
        for r in (4, 8):
            g("s_nop 1")
            g(f"v_add_f32_dpp v{v}, v{v}, v{v} row_ror:{r} row_mask:0xf bank_mask:0xf")
        for sw in ("v_permlane16_swap_b32", "v_permlane32_swap_b32"):
            g(f"v_mov_b32 v{t}, v{v}")
            g("s_nop 1")
            g(f"{sw} v{v}, v{t}")
            g(f"v_add_f32 v{v}, v{v}, v{t}")
    NY = 16
    g(f"s_waitcnt vmcnt({NY + 1})")
    for i in range(16):
        g(f"v_lshlrev_b32 v{XF+2*i}, 16, v{XR+i}")
        g(f"v_and_b32 v{XF+2*i+1}, s{sHI}, v{XR+i}")
    g(f"v_pk_add_f32 {vq(hT,2)}, {vq(XF,2)}, {vq(XF+2,2)}")
    g(f"v_pk_add_f32 {vq(hT+2,2)}, {vq(XF+4,2)}, {vq(XF+6,2)}")
    for i in range(4, 16):
        d = hT + 2 * (i & 1)
        g(f"v_pk_add_f32 {vq(d,2)}, {vq(d,2)}, {vq(XF+2*i,2)}")
    g(f"v_pk_add_f32 {vq(hT,2)}, {vq(hT,2)}, {vq(hT+2,2)}")
    g(f"v_add_f32 v{hT}, v{hT}, v{hT+1}")
    red4(hT, hT + 1)
    g(f"v_mul_f32 v{hT}, {f32(-1.0/512)}, v{hT}")
    g(f"v_mov_b32 v{hT+1}, v{hT}")
    for i in range(16):
        t = hT + 6 + 2 * (i & 1)
        d = hT + 2 + 2 * (i & 1)
        g(f"v_pk_add_f32 {vq(t,2)}, {vq(XF+2*i,2)}, {vq(hT,2)}")
        if i < 2:
            g(f"v_pk_mul_f32 {vq(d,2)}, {vq(t,2)}, {vq(t,2)}")
        else:
            g(f"v_pk_fma_f32 {vq(d,2)}, {vq(t,2)}, {vq(t,2)}, {vq(d,2)}")
    g(f"v_pk_add_f32 {vq(hT+2,2)}, {vq(hT+2,2)}, {vq(hT+4,2)}")
    g(f"v_add_f32 v{hT+2}, v{hT+2}, v{hT+3}")
    rne(g, hT, hT)
    red4(hT + 2, hT + 3)
    g(f"v_mul_f32 v{hT+2}, {f32(1.0/512)}, v{hT+2}")
    rne(g, hT + 2, hT + 2)
    g(f"v_add_f32 v{hT+2}, {f32(1e-5)}, v{hT+2}")
    rne(g, hT + 2, hT + 2)
    g(f"v_sqrt_f32 v{hT+2}, v{hT+2}")
    for i in range(8):
        g(f"v_add_f32 v{XF+i}, v{XF+i}, v{hT}")
    rne(g, hT + 2, hT + 2)
    g(f"v_rcp_f32 v{hT+4}, v{hT+2}")
    def round8(F, T):
        for i in range(4):
            g(f"v_cvt_pk_bf16_f32 v{T+i}, v{F+2*i}, v{F+2*i+1}")
        for i in range(4):
            g(f"v_lshlrev_b32 v{F+2*i}, 16, v{T+i}")
            g(f"v_and_b32 v{F+2*i+1}, s{sHI}, v{T+i}")
    round8(XF, R)
    for i in range(8):
        g(f"v_mul_f32 v{XF+8+i}, v{XF+i}, v{hT+4}")
    for i in range(8):
        g(f"v_fma_f32 v{XF+i}, -v{XF+8+i}, v{hT+2}, v{XF+i}")
    for i in range(8):
        g(f"v_fma_f32 v{XF+i}, v{XF+i}, v{hT+4}, v{XF+8+i}")
    for i in range(4):
        g(f"v_cvt_pk_bf16_f32 v{R+i}, v{XF+2*i}, v{XF+2*i+1}")
    g.stamp(1)
    g(f"s_waitcnt vmcnt({NY})")
    g(f"v_add_u32 v{vTAG}, 1, v{vTAG}")
    for t in range(1, 4):
        for i in range(4):
            g(f"v_mov_b32_dpp v{R+4*t+i}, v{R+i} row_ror:{4*t} row_mask:0xf bank_mask:0xf")
    g(f"v_readfirstlane_b32 s{sTAG}, v{vTAG}")
    g(f"s_and_b32 s{sTAG}, s{sTAG}, 0xff")
    sTAGQ, sRP = 70, 71
    g(f"s_getreg_b32 s{sTAGQ}, hwreg(HW_REG_XCC_ID)")
    g(f"s_and_b32 s{sTAGQ}, s{sTAGQ}, 7")
    g(f"s_lshl_b32 s{sTAGQ}, s{sTAGQ}, 5")
    g(f"s_and_b32 s{sRP}, s{sTAG}, 31")
    g(f"s_or_b32 s{sTAGQ}, s{sTAGQ}, s{sRP}")

    def gemm1(base, nstep, vm, off, tg):
        for s_ in range(nstep):
            g(f"s_waitcnt vmcnt({vm - 4*(s_+1)})")
            for c in range(4):
                for half in range(2):
                    g(f"ds_read_b64_tr_b16 {vq(WF+16*s_+4*c+2*half,2)}, v{vTR} offset:{base + 4096*s_ + 512*half + 32*c}")
            g("s_waitcnt lgkmcnt(0)")
            for c in range(4):
                cc = "0" if s_ == 0 else vq(hACC + 4 * c)
                g(f"v_mfma_f32_16x16x32_bf16 {vq(hACC+4*c)}, {vq(WF+16*s_+4*c)}, {vq(R+4*((c-s_)&3))}, {cc}")
        g("s_nop 5")
        for (sm, c) in ((SM1, 1), (SM2, 2), (SM3, 3)):
            for r in range(4):
                g(f"v_cndmask_b32 v{hACC+r}, v{hACC+r}, v{hACC+4*c+r}, s[{sm}:{sm+1}]")
        for r in range(4):
            tagged(hT + off + r, hACC + r, vFFh, tg)

    sSLOWH, sOO = 55, 53
    def ffn_setup():
        g(f"v_and_b32 v14, 1, v4")
        g(f"v_lshlrev_b32 v14, 6, v14")
        g(f"v_lshl_add_u32 v14, v5, 4, v14")
        g(f"s_lshl_b32 s8, s{sC1}, 7")
        g(f"v_and_b32 v15, 1, v0")
        g(f"v_lshlrev_b32 v15, 1, v15")
        g(f"v_lshl_add_u32 v15, v5, 5, v15")
        g(f"s_lshl_b32 s9, s{sS}, 7")
        g(f"s_lshl_b32 s{sT3}, s{sH}, 2")
        g(f"s_add_u32 s9, s9, s{sT3}")
        g(f"s_lshl_b32 s{sOO}, s{sB}, 10")
        g(f"s_add_u32 s{sOO}, s{sOO}, s9")
        g(f"v_lshrrev_b32 v12, 1, v4")
        g(f"v_lshlrev_b32 v12, 17, v12")
        g(f"v_lshl_add_u32 v12, v3, 8, v12")
        g(f"v_lshl_add_u32 v12, v14, 1, v12")
        g(f"s_and_b32 s{SXO[0]}, s2, 0x37")
        g(f"s_lshl_b32 s{SXO[0]}, s{SXO[0]}, 10")
        g(f"s_add_u32 s{SXO[0]}, s{SXO[0]}, {hex(A_H)}")
        g(f"s_add_u32 s{SXO[1]}, s{SXO[0]}, {hex(8 << 10)}")
        g(f"s_add_u32 s{SXO[2]}, s{SXO[0]}, {hex(64 << 10)}")
        g(f"s_add_u32 s{SXO[3]}, s{SXO[0]}, {hex(72 << 10)}")
        g(f"v_lshrrev_b32 v30, 3, v0")
        g(f"v_and_b32 v1, 7, v0")
        g(f"v_lshlrev_b32 v1, 4, v1")
        g(f"v_mul_u32_u24 v{V1}, 3584, v30")
        g(f"v_add_u32 v{V1}, v{V1}, v1")
        g(f"v_lshl_add_u32 v{V2}, v30, 10, v1")
        for (V, rs) in ((V1, 3584), (V2, 1024)):
            for i in range(1, 4):
                g(f"v_add_u32 v{V+i}, {hex(i*(8*rs - 1024))}, v{V}")
        g(f"v_lshlrev_b32 v1, 10, v30")
        g(f"v_lshl_add_u32 v1, v3, 4, v1")
        g(f"s_lshl_b32 s{sT4}, s{sB}, 1")
        g(f"s_add_u32 s{sT4}, s{sT4}, s{sU}")
        g(f"s_mul_i32 s{sT1}, s{sT4}, {64*3584}")
        g(f"s_add_u32 s{sT1}, s{sT1}, s8")
        g(f"s_lshl_b32 s{sT3}, s{sC1}, 16")
        g(f"s_lshl_b32 s{sT4}, s{sT4}, 7")
        g(f"s_add_u32 s{sT3}, s{sT3}, s{sT4}")
        g(f"s_add_u32 s{sT2}, s{sT1}, {32*3584}")
        g(f"s_add_u32 s{sT4}, s{sT3}, {32*1024}")
        g(f"s_mov_b32 m0, {L_W1}")
        if w1ln:
            g("s_waitcnt lgkmcnt(0)")
        g(f"buffer_load_ushort v28, v15, {srd(SX)}, s{sOO} offen")
        g(f"buffer_load_ushort v29, v15, {srd(SB2)}, s9 offen")
        if otouch:
            g(f"s_mov_b64 exec, 1")
            g(f"buffer_store_short v7, v15, {srd(SOUT)}, s{sOO} offen")
            g(f"s_mov_b64 exec, -1")
        g(f"s_cmp_ge_u32 s{sC1}, 28")
        if w1ln:
            g(f"s_cselect_b32 s{sT1}, {hex(OOB)}, s{sT1}")
            g(f"s_cselect_b32 s{sT2}, {hex(OOB)}, s{sT2}")
            g("s_waitcnt lgkmcnt(0)")
        else:
            g("s_cbranch_scc1 L_noffn0" if w1first else "s_cbranch_scc1 L_noffn1")
        g(f"buffer_load_dwordx4 {vq(16)}, v14, {srd(SB1)}, s8 offen")
        for so in (sT1, sT2):
            for i in range(4):
                g(f"buffer_load_dwordx4 v{V1+i}, {srd(SW1)}, s{so} offen offset:{1024*i} {wflags} lds")
            g(f"s_add_u32 m0, m0, 4096")
            g("s_nop 0")
    if w1ln:
        ffn_setup()
    gemm1(L_WQ, 4, 16 + (11 if w1ln else 0), 0, sTAGQ)
    g(f"buffer_store_dwordx4 {vq(hT)}, v{vQS}, {srd(SWS)}, s{sOWN} offen {'' if fast else 'sc1'}")
    g.stamp(2)
    g(f"v_mov_b32 v125, s{sTAG}")
    g(f"ds_write_b32 v7, v125 offset:{L_TAG}")
    SQG = (20, 21, 22, 23)
    def qpart():
        g(f"v_lshrrev_b32 v124, 3, v0")
        g(f"v_lshlrev_b32 v124, 13, v124")
        g(f"v_and_b32 v13, 7, v0")
        g(f"v_lshl_add_u32 v124, v13, 5, v124")
        g(f"s_lshl_b32 s{SQG[0]}, s{sH}, 10")
        g(f"s_lshl_b32 s{sT0}, s{sB}, 8")
        g(f"s_add_u32 s{SQG[0]}, s{SQG[0]}, s{sT0}")
        for j in range(1, 4):
            g(f"s_add_u32 s{SQG[j]}, s{SQG[0]}, {hex(j << 16)}")
        g(f"v_lshlrev_b32 v13, 4, v0")
        if qwait and not w1first:
            g(f"s_sleep {qwait}")
        QG = 64
        def republish():
            g(f"buffer_store_dwordx4 {vq(hT)}, v{vQS}, {srd(SWS)}, s{sOWN} offen sc1")
        g(f"s_mov_b32 s{sSPIN}, 0")
        g.label("L_pollq")
        for j in range(4):
            for i in range(2):
                g(f"buffer_load_dwordx4 {vq(QG+8*j+4*i)}, v124, {srd(SWS)}, s{SQG[j]} offen offset:{16*i} {gf}")
        g("s_waitcnt vmcnt(0)")
        tagcheck(g, [QG + i for i in range(32)], 30, 31, sTAGQ, 0x1f)
        g("s_cbranch_vccz L_gotq")
        g(f"s_add_u32 s{sSPIN}, s{sSPIN}, 1")
        g(f"s_cmp_lg_u32 s{sSPIN}, {repub}")
        g("s_cbranch_scc1 L_norp")
        g("s_mov_b64 exec, -1")
        republish()
        g.label("L_norp")
        g("s_mov_b64 exec, vcc")
        g("s_sleep 4")
        g(f"s_cmp_lt_u32 s{sSPIN}, {hex(spin_max)}")
        g("s_cbranch_scc1 L_pollq")
        g.label("L_gotq")
        g("s_mov_b64 exec, -1")
        g(f"v_and_b32 v30, 0xe0, v30")
        g(f"v_cmp_ne_u32 vcc, 0, v30")
        g(f"v_mov_b32 v31, 1")
        g("s_cbranch_vccz L_same")
        g(f"v_mov_b32 v31, 2")
        republish()
        for i in range(32):
            g(f"v_and_b32 v{QG+i}, 0xffffff00, v{QG+i}")
        g.label("L_same")
        g.stamp(4)
        def sum4():
            for i in range(4):
                g(f"v_pk_add_f32 {vq(QG+2*i,2)}, {vq(QG+2*i,2)}, {vq(QG+8+2*i,2)}")
                g(f"v_pk_add_f32 {vq(QG+16+2*i,2)}, {vq(QG+16+2*i,2)}, {vq(QG+24+2*i,2)}")
            for i in range(4):
                g(f"v_pk_add_f32 {vq(QG+2*i,2)}, {vq(QG+2*i,2)}, {vq(QG+16+2*i,2)}")
        sum4()
        for i in range(4):
            g(f"v_cvt_pk_bf16_f32 v{hACC+i}, v{QG+2*i}, v{QG+2*i+1}")
        g(f"ds_write_b128 v13, {vq(hACC)} offset:{L_Q}")
        g(f"ds_write_b32 v7, v31 offset:{L_TAG+4}")
        if diag and probe is None:
            g(f"s_mov_b32 s{sSTAMP+6}, s{sSPIN}")
        g.stamp(5)
        g("s_setprio 2" if sprio else "s_setprio 0")
        g(f"v_readfirstlane_b32 s55, v31")
    QG = 64
    def sum4():
        for i in range(4):
            g(f"v_pk_add_f32 {vq(QG+2*i,2)}, {vq(QG+2*i,2)}, {vq(QG+8+2*i,2)}")
            g(f"v_pk_add_f32 {vq(QG+16+2*i,2)}, {vq(QG+16+2*i,2)}, {vq(QG+24+2*i,2)}")
        for i in range(4):
            g(f"v_pk_add_f32 {vq(QG+2*i,2)}, {vq(QG+2*i,2)}, {vq(QG+16+2*i,2)}")
    if not w1first:
        qpart()
    if not w1ln:
        ffn_setup()
    else:
        g(f"s_cmp_ge_u32 s{sC1}, 28")
        g("s_cbranch_scc1 L_noffn0")
    gemm1(L_W1, 2, 9 if w1ln else 8, 4, sTAG)
    g.label("L_noffn0")
    if w1first:
        qpart()
        g(f"s_cmp_ge_u32 s{sC1}, 28")
        g("s_cbranch_scc1 L_noffn1")
    store_mode("h", f"buffer_store_dwordx4 {vq(hT+4)}, v{vQS}, {srd(SWS)}, s{sOWNH} offen", sSLOWH)
    g.label("L_noffn1")
    if stouch:
        g("s_load_dwordx2 s[20:21], s[0:1], 16")
        g("s_load_dwordx2 s[22:23], s[0:1], 32")
        g(f"s_lshl_b32 s{sT0}, s{sB}, 3")
        g(f"s_add_u32 s{sT0}, s{sT0}, s{sH}")
        g(f"s_lshl_b32 s{sT0}, s{sT0}, 3")
        g(f"s_add_u32 s{sT0}, s{sT0}, s{sS}")
        g(f"s_lshl_b32 s{sT0}, s{sT0}, 19")
        g(f"s_lshl_b32 s{sT1}, s{sH}, 19")
        g("s_waitcnt lgkmcnt(0)")
        g(f"s_add_u32 s20, s20, s{sT0}")
        g(f"s_addc_u32 s21, s21, 0")
        g(f"s_add_u32 s22, s22, s{sT1}")
        g(f"s_addc_u32 s23, s23, 0")
        g("s_load_dword s10, s[20:21], 0")
        g("s_load_dword s11, s[22:23], 0")
        g(f"s_load_dword s{sT1}, s[{SW2}:{SW2+1}], 0")
        if stouch == 2:
            g(f"s_load_dword s{sT2}, s[{SOUT}:{SOUT+1}], 0")
        g("s_waitcnt lgkmcnt(0)")
    def control(tag, c0, dc, c1_, rk):
        g.comment('speed only: a workgroup that is among the last of its die at a checkpoint requests whole lines only')
        g(f"s_cmp_eq_u32 s{sSLOWH}, 1")
        g(f"s_cbranch_scc0 L_noctl{tag}")
        g(f"s_lshl_b32 s{sT1}, s{sH}, 7")
        g(f"s_add_u32 s{sT1}, s{sT1}, {hex(A_C)}")
        g(f"s_lshr_b32 s{sT2}, s2, 3")
        g(f"s_lshl_b32 s{sT2}, s{sT2}, 2")
        g(f"s_add_u32 s{sT2}, s{sT2}, s{sT1}")
        g(f"v_and_b32 v124, 31, v0")
        g(f"v_lshlrev_b32 v124, 2, v124")
        g(f"s_mov_b32 s20, {c0}")
        g(f"s_and_b32 s11, s{sTAG}, 0xff")
        g.label(f"L_ctl{tag}")
        ldswait(f"ctl{tag}", L_CNT, "s20", 4, 7, 30)
        g(f"s_lshl_b32 s21, s20, 8")
        g(f"s_or_b32 s21, s21, s11")
        g(f"v_mov_b32 v125, s21")
        g(f"buffer_load_dword v126, v124, {srd(SWS)}, s{sT1} offen {cf}")
        g(f"buffer_store_dword v125, v7, {srd(SWS)}, s{sT2} offen {csf}")
        g("s_waitcnt vmcnt(1)")
        g(f"v_and_b32 v127, 0xffff00ff, v126")
        g(f"v_cmp_eq_u32 vcc, s11, v127")
        g(f"v_cmp_le_u32 s[{sMASK2}:{sMASK2+1}], v125, v126")
        g(f"s_and_b32 s21, vcc_lo, s{sMASK2}")
        g(f"s_bcnt1_i32_b32 s21, s21")
        g(f"s_cmp_ge_u32 s21, {rk}")
        g(f"s_cselect_b32 s21, {eth if cnone else 0}, {eth}")
        g(f"v_mov_b32 v127, s21")
        g(f"ds_write_b32 v7, v127 offset:{L_TH}")
        g(f"s_add_u32 s20, s20, {dc}")
        g(f"s_cmp_le_u32 s20, {c1_}")
        g(f"s_cbranch_scc1 L_ctl{tag}")
        g.label(f"L_noctl{tag}")
    if ctl is not None:
        control("a", ctl[0], ctl[1], cs, ctl[3])
    ldswait("kdh", L_KD, 512, 8, 7, 30)
    MX, MC, LS = 32, 33, 34
    g(f"ds_read_b32 v{MX}, v{vH4h} offset:{L_MAX}")
    SCR = 128
    for i in range(16):
        g(f"ds_read_b128 {vq(SCR+4*i)}, v13 offset:{L_SC + 1024*i}")
    g(f"s_mov_b32 s10, {f32(LOG2E)}")
    g("s_waitcnt lgkmcnt(0)")
    rne(g, MX, MX)
    g(f"v_mul_f32 v{MC}, s10, v{MX}")
    for i in range(4):
        g(f"v_mov_b32 v{LS+i}, 0")
    EX = 64
    if sprio:
        g("s_setprio 0")
    for blk in range(4):
        for i in range(16):
            g(f"v_lshlrev_b32 v{EX+2*i}, 16, v{SCR+16*blk+i}")
            g(f"v_and_b32 v{EX+2*i+1}, s{sHI}, v{SCR+16*blk+i}")
        for i in range(32):
            g(f"v_fma_f32 v{EX+i}, v{EX+i}, s10, -v{MC}")
        for i in range(32):
            g(f"v_exp_f32 v{EX+i}, v{EX+i}")
        for i in range(32):
            g(f"v_add_f32 v{LS+(i&3)}, v{LS+(i&3)}, v{EX+i}")
    if sprio:
        g("s_setprio 2")
    g(f"v_add_f32 v{LS}, v{LS}, v{LS+1}")
    g(f"v_add_f32 v{LS+2}, v{LS+2}, v{LS+3}")
    g(f"v_add_f32 v{LS}, v{LS}, v{LS+2}")
    red4(LS, LS + 1)
    for i in range(4):
        tagged(40 + i, MX if i % 2 == 0 else LS, vFFh, sTAG)
    g(f"s_lshl_b32 s{sT0}, s2, 7")
    g(f"s_add_u32 s{sT0}, s{sT0}, {hex(A_S)}")
    g("s_mov_b64 exec, 0xff")
    store_mode("s", f"buffer_store_dwordx4 {vq(40)}, v13, {srd(SWS)}, s{sT0} offen", sSLOWH)
    g("s_mov_b64 exec, -1")
    g(f"s_and_b32 s{sT0}, s2, 0xc7")
    g(f"s_lshl_b32 s{sT0}, s{sT0}, 7")
    g(f"s_add_u32 s{sT0}, s{sT0}, {hex(A_S)}")
    if ctl is not None and cs + ctl[1] <= ctl[2]:
        control("b", cs + ctl[1], ctl[1], ctl[2], ctl[3])
    ldswait("st", L_CNT, sth, 4, 7, 30)
    ST = 44
    poll("s", [f"buffer_load_dwordx2 {vq(ST,2)}, v1, {srd(SWS)}, s{sT0} offen {gf}"], [ST, ST + 1, ST], 30, 8)
    C1h, C2h, C3h = 46, 47, 36
    g(f"v_max_f32_dpp v{C1h}, v{ST}, v{ST} row_ror:8 row_mask:0xf bank_mask:0xf")
    for sw in ("v_permlane16_swap_b32", "v_permlane32_swap_b32"):
        g(f"v_mov_b32 v{C3h}, v{C1h}")
        g("s_nop 1")
        g(f"{sw} v{C1h}, v{C3h}")
        g(f"v_max_f32 v{C1h}, v{C1h}, v{C3h}")
    g(f"v_sub_f32 v{C2h}, v{ST}, v{C1h}")
    g(f"v_sub_f32 v{MX}, v{MX}, v{C1h}")
    g(f"v_mul_f32 v{C2h}, s10, v{C2h}")
    g(f"v_mul_f32 v{MX}, s10, v{MX}")
    g(f"v_exp_f32 v{C2h}, v{C2h}")
    g(f"v_exp_f32 v{MX}, v{MX}")
    g(f"v_mul_f32 v{C2h}, v{C2h}, v{ST+1}")
    g("s_nop 1")
    g(f"v_add_f32_dpp v{C2h}, v{C2h}, v{C2h} row_ror:8 row_mask:0xf bank_mask:0xf")
    for sw in ("v_permlane16_swap_b32", "v_permlane32_swap_b32"):
        g(f"v_mov_b32 v{C3h}, v{C2h}")
        g("s_nop 1")
        g(f"{sw} v{C2h}, v{C3h}")
        g(f"v_add_f32 v{C2h}, v{C2h}, v{C3h}")
    g(f"v_rcp_f32 v{C2h}, v{C2h}")
    g(f"v_mov_b32 v{MX+1}, 1")
    g(f"v_lshlrev_b32 v30, 1, v{vH4h}")
    g(f"v_mul_f32 v{MX}, v{MX}, v{C2h}")
    g(f"ds_write_b64 v30, {vq(MX,2)} offset:{L_F}")
    g.stamp(1)
    g(f"s_cmp_ge_u32 s{sC1}, 28")
    g("s_cbranch_scc1 L_noffn")
    ldswait("trig", L_CNT, 64 + trig, 4, 7, 30)
    g.stamp(10)
    for n, so in enumerate((sT3, sT4)):
        for i in range(4):
            g(f"buffer_load_dwordx4 v{V2+i}, {srd(SW2)}, s{so} offen offset:{1024*i} {wflags} lds")
        if n < 1:
            g(f"s_add_u32 m0, m0, 4096")
            g("s_nop 0")
    poll("h", [f"buffer_load_dwordx4 {vq(QG+8*j+4*i)}, v12, {srd(SWS)}, s{SXO[j]} offen offset:{16*i} {gf}"
               for j in range(4) for i in range(2)], [QG + i for i in range(32)], 30, 2)
    for s_ in range(2):
        for j in range(4):
            for half in range(2):
                g(f"ds_read_b64_tr_b16 {vq(WF+16*s_+4*j+2*half,2)}, v{vTR} offset:{L_W2 + 4096*s_ + 512*half + 32*j}")
    sum4()
    g("s_nop 1")
    for i in range(8):
        g(f"v_add_f32_dpp v{QG+i}, v{QG+i}, v{QG+i} row_ror:8 row_mask:0xf bank_mask:0xf")
    round8(QG, hT)
    for i in range(4):
        g(f"v_lshlrev_b32 v{hT+4}, 16, v{16+i}")
        g(f"v_and_b32 v{hT+5}, s{sHI}, v{16+i}")
        g(f"v_add_f32 v{QG+2*i}, v{QG+2*i}, v{hT+4}")
        g(f"v_add_f32 v{QG+2*i+1}, v{QG+2*i+1}, v{hT+5}")
    round8(QG, hT)
    for i in range(8):
        g(f"v_max_f32 v{QG+i}, 0, v{QG+i}")
    for i in range(8):
        g(f"v_mul_f32 v{QG+i}, v{QG+i}, v{QG+i}")
    for i in range(4):
        g(f"v_cvt_pk_bf16_f32 v{R+i}, v{QG+2*i}, v{QG+2*i+1}")
    g("s_nop 0")
    for i in range(4):
        g(f"v_mov_b32_dpp v{R+4+i}, v{R+i} row_ror:4 row_mask:0xf bank_mask:0xf")
    g.stamp(6)
    g("s_waitcnt lgkmcnt(0)")
    g("s_nop 0")
    for s_ in range(2):
        for j in range(4):
            cc = "0" if s_ == 0 else vq(hACC + 4 * j)
            g(f"v_mfma_f32_16x16x32_bf16 {vq(hACC+4*j)}, {vq(R+4*s_)}, {vq(WF+16*s_+4*j)}, {cc}")
    g("s_nop 7")
    for b_ in range(4):
        for j in range(4):
            tagged(QG + 4 * b_ + j, hACC + 4 * j + b_, vFFh, sTAG)
    g("s_mov_b64 exec, 0xffff")
    for b_ in range(4):
        g(f"buffer_store_dwordx4 {vq(QG+4*b_)}, v13, {srd(SWS)}, s{sOWNZ} offen offset:{256*b_} {zfl}")
    g("s_mov_b64 exec, -1")
    g.label("L_noffn")
    g.stamp(7)
    g(f"v_bfe_u32 v14, v0, 1, 3")
    g(f"v_lshlrev_b32 v14, 10, v14")
    g(f"v_and_b32 v12, 1, v0")
    g(f"v_lshl_add_u32 v14, v12, 4, v14")
    g(f"v_lshl_add_u32 v12, v5, 14, v14")
    g(f"v_lshl_add_u32 v14, v5, 16, v14")
    g(f"s_lshl_b32 s{sT2}, s{sB}, 8")
    g(f"s_lshl_b32 s{sT1}, s{sH}, 5")
    g(f"s_add_u32 s{sT2}, s{sT2}, s{sT1}")
    g(f"s_lshr_b32 s{sT0}, s{sS}, 1")
    g(f"s_lshl_b32 s{sT0}, s{sT0}, 16")
    g(f"s_lshl_b32 s{sT1}, s{sU}, 13")
    g(f"s_add_u32 s{sT0}, s{sT0}, s{sT1}")
    g(f"s_add_u32 s{sT0}, s{sT0}, s{sT2}")
    g(f"s_add_u32 s{sT0}, s{sT0}, {hex(A_Z)}")
    g(f"s_lshl_b32 s{sT1}, s{sS}, 13")
    g(f"s_add_u32 s{sT1}, s{sT1}, s{sT2}")
    g(f"s_add_u32 s{sT1}, s{sT1}, {hex(A_Y)}")
    Z, Y = 32, 36
    for i in range(4):
        g(f"v_mov_b32 v{Z+i}, 0")
    ldswait("y", L_KD, 512 + 64 * ysig, 1, 7, 30)
    g(f"s_mov_b32 s{sMASK2}, -1")
    g(f"s_mov_b32 s{sMASK2+1}, 0x00ffffff")
    g(f"s_mov_b64 exec, s[{sMASK2}:{sMASK2+1}]")
    poll("z", [f"buffer_load_dwordx4 {vq(Z)}, v12, {srd(SWS)}, s{sT0} offen sc1"], [Z + i for i in range(4)], 30, zsleep)
    g.stamp(8)
    def gate():
        reduce32x4(g, Z)
        rne(g, Z, Z)
        g(f"v_lshlrev_b32 v29, 16, v29")
        g(f"v_add_f32 v{Z}, v{Z}, v29")
        rne(g, Z, Z)
        g(f"v_mul_f32 v30, {f32(-LOG2E)}, v{Z}")
        g(f"v_exp_f32 v30, v30")
        g("s_nop 0")
        g(f"v_add_f32 v30, 1.0, v30")
        g(f"v_rcp_f32 v30, v30")
        g("s_nop 0")
        g(f"v_mul_f32 v{Z}, v{Z}, v30")
        rne(g, Z, Z)
        g(f"v_lshlrev_b32 v{Z+1}, 16, v28")
        g(f"s_mov_b32 s{sMASK2}, 0x00030003")
        g(f"s_mov_b32 s{sMASK2+1}, 0x00030003")
    if ypipe < 2:
        poll("y", [f"buffer_load_dwordx4 {vq(Y)}, v14, {srd(SWS)}, s{sT1} offen sc1"], [Y + i for i in range(4)], 30, ysleep, gate)
    else:
        YB = [64 + 4 * i for i in range(ypipe)]
        ld = lambda i: g(f"buffer_load_dwordx4 {vq(YB[i])}, v14, {srd(SWS)}, s{sT1} offen sc1")
        ld(0)
        gate()
        for i in range(1, ypipe):
            ld(i)
        g(f"s_mov_b32 s{sSPIN}, 0")
        g.label("L_polly")
        for i in range(ypipe):
            g(f"s_waitcnt vmcnt({ypipe-1})")
            tagcheck(g, [YB[i] + j for j in range(4)], 30, 31)
            for j in range(4):
                g(f"v_mov_b32 v{Y+j}, v{YB[i]+j}")
            g("s_cbranch_vccz L_goty")
            g("s_mov_b64 exec, vcc")
            ld(i)
        g(f"s_add_u32 s{sSPIN}, s{sSPIN}, 1")
        g(f"s_cmp_lt_u32 s{sSPIN}, {hex(spin_max)}")
        g("s_cbranch_scc1 L_polly")
        g.label("L_goty")
        g("s_mov_b64 exec, -1")
    g.stamp(9)
    reduce32x4(g, Y)
    rne(g, Y, Y)
    g(f"v_mul_f32 v{Y}, v{Y}, v{Z}")
    rne(g, Y, Y)
    g(f"v_add_f32 v{Y}, v{Y}, v{Z+1}")
    g(f"v_cvt_pk_bf16_f32 v{Y}, v{Y}, v{Y}")
    g(f"s_mov_b64 exec, s[{sMASK2}:{sMASK2+1}]")
    g(f"buffer_store_short v{Y}, v15, {srd(SOUT)}, s{sOO} offen")
    g(f"s_cmp_lg_u32 s2, 0")
    g("s_cbranch_scc1 L_noep")
    g(f"s_mov_b32 s{sT0}, {hex(W_EP)}")
    g("s_mov_b64 exec, 1")
    g(f"buffer_store_dword v{vTAG}, v7, {srd(SWS)}, s{sT0} offen sc1")
    g.label("L_noep")
    g("s_mov_b64 exec, -1")

    g.label("L_fin")
    if probe is not None:
        role, idx = probe
        g("s_waitcnt vmcnt(0)")
        g.stamp(11)
        g("s_waitcnt lgkmcnt(0)")
        g(f"s_mov_b32 s{sT0}, s{sSTAMP}")
        if role == 'wg':
            g(f"s_cmp_lg_u32 s2, {idx}")
            g("s_cbranch_scc1 L_end")
            g(f"s_cmp_lg_u32 s{sWAVE}, 0")
            g("s_cbranch_scc1 L_end")
        g(f"s_cmp_eq_u32 s{sWAVE}, 0")
        if role == 'h':
            g(f"s_cselect_b32 s{sT0}, s{sSTAMP+2*idx}, s{sT0}")
        elif role == 's':
            g(f"s_cselect_b32 s{sT0}, s{sT0}, s{sSTAMP+2*idx}")
        g(f"s_add_u32 s{sT0}, s{sT0}, 10000")
        g.label("L_probe")
        g(f"s_memrealtime s[{sSTAMP+2}:{sSTAMP+3}]")
        g("s_waitcnt lgkmcnt(0)")
        g(f"s_sub_u32 s{sT1}, s{sSTAMP+2}, s{sT0}")
        g(f"s_cmp_lt_i32 s{sT1}, 0")
        g("s_cbranch_scc1 L_probe")
    if diag:
        g("s_waitcnt vmcnt(0)")
        g.stamp(11)
        g("s_waitcnt lgkmcnt(0)")
        g(f"s_mul_i32 s{sT0}, s2, 5")
        g(f"s_add_u32 s{sT0}, s{sT0}, s{sWAVE}")
        g(f"s_lshl_b32 s{sT0}, s{sT0}, 6")
        g(f"s_add_u32 s{sT0}, s{sT0}, {hex(W_DIAG)}")
        for i in range(12):
            g(f"v_mov_b32 v{8+i}, s{sSTAMP+2*i}")
        g(f"v_mov_b32 v20, s{sSPIN}")
        g(f"v_mov_b32 v22, s{sIT}")
        g("s_getreg_b32 s3, hwreg(HW_REG_XCC_ID)")
        g("v_mov_b32 v21, s3")
        g("v_mov_b32 v23, 0")
        g("v_mov_b32 v1, 0")
        g("s_mov_b64 exec, 1")
        for i in range(4):
            g(f"buffer_store_dwordx4 {vq(8+4*i)}, v1, {srd(SWS)}, s{sT0} offen offset:{16*i}")
    g.label("L_end")
    g("s_endpgm")
    out += g.L
    out += ['.section .rodata,"a"', ".p2align 6", f".amdhsa_kernel {NAME}_kernel",
            "  .amdhsa_next_free_vgpr 256", "  .amdhsa_next_free_sgpr 102", "  .amdhsa_accum_offset 256",
            "  .amdhsa_group_segment_fixed_size 0", "  .amdhsa_kernarg_size 104", "  .amdhsa_user_sgpr_count 2",
            "  .amdhsa_user_sgpr_kernarg_segment_ptr 1", "  .amdhsa_system_sgpr_workgroup_id_x 1",
            "  .amdhsa_float_denorm_mode_32 3",
            ".end_amdhsa_kernel"]
    return "\n".join(out) + "\n"


if __name__ == "__main__":
    kw = eval("dict(%s)" % (sys.argv[2] if len(sys.argv) > 2 else ""))
    open(sys.argv[1], "w").write(gen(**kw))
```

```python
import sys, struct

NAME = "recurrent_scan__gqa_block_cached__dense_activation_squared_relu__decode"

HEADER = """; Kernarg layout for this problem (104 bytes, ptrs only, base s[0:1]):
;   offset  24: d_in[3] A_wq  shape=(512, 4096) dtype=bfloat16
;   offset  32: d_in[4] A_wo  shape=(4096, 512) dtype=bfloat16
;   offset  96: d_ws      workspace (tagged hand-offs between workgroups)
; One workgroup per (batch b, kv head h, key split s of 2048 keys). Waves 1..4 stream first all K, then all V of
; Wave 0 does the small work: layernorm, a slice of the q projection, softmax statistics across the 8 splits,
; a slice of the FFN and the final reduction. Every word handed between workgroups carries a launch tag
; (epoch word of d_ws + 1) in its low bits; readers poll until the tag is there.
"""

def f32(x):
    return "0x%08x" % struct.unpack("<I", struct.pack("<f", x))[0]

LOG2E = 1.4426950408889634
SCALE = 128 ** -0.5

L_Q = 0
L_TAG, L_CNT, L_KD, L_MAX, L_JN, L_F, L_TH, L_WR = 2048, 2056, 2060, 2064, 2080, 2096, 2128, 2132
L_PART, HS, WSP = 3072, 528, 2112
L_WQ, L_W1, L_W2, L_WO, L_SIZE = 12288, 28672, 36864, 45056, 61440
L_SC = L_WQ
A_Q, A_H, A_Z, A_Y, A_P, A_S = 0, 0x40000, 0x80000, 0xc0000, 0x100000, 0x180000
A_C = 0x1a0000
W_EP = 0x1c0000
W_DIAG = 0x280000
W_SIZE = 0x400000
OOB = 0x10000000

SK, SV, SWS, SWO, SW2, SX, SWQ, SW1, SB1, SB2, SOUT = 8, 12, 16, 20, 24, 28, 32, 36, 40, 44, 48
sWAVE, sB, sH, sS = 3, 4, 5, 6
sDR = 55
sSELLO, sSELHI, sSCALE, sLOG2E, sA, sBo, sIT = 56, 57, 58, 59, 60, 61, 62
sT0, sT1, sT2, sT3, sT4 = 63, 64, 65, 66, 67
sMASK = 68
sMASK2 = 70
sSPIN = 72
sHI = 73
sW = 74
sTAG = 75
sSTAMP = 76


class G:
    def __init__(self, diag=False):
        self.L = []
        self.diag = diag
        self.nstamp = {}

    def __call__(self, s):
        self.L.append("  " + s)

    def label(self, s):
        self.L.append(s + ":")

    def comment(self, s):
        self.L.append("  ; " + s)

    def stamp(self, i):
        if self.diag:
            self(f"s_memrealtime s[{sSTAMP+2*i}:{sSTAMP+2*i+1}]")

    def srd_consts(self, base, nbytes):
        self(f"s_mov_b32 s{base+2}, {hex(nbytes)}")
        self(f"s_mov_b32 s{base+3}, 0x20000")

    def srd_load(self, base, off):
        self(f"s_load_dwordx2 s[{base}:{base+1}], s[0:1], {off}")


def srd(b):
    return f"s[{b}:{b+3}]"


def vq(r, n=4):
    return f"v[{r}:{r+n-1}]"


def perms(g, raw, e, dst):
    sel = sSELHI if (e & 1) else sSELLO
    for j in range(4):
        g(f"v_perm_b32 v{dst+j}, v{raw[2*j+1] + (e >> 1)}, v{raw[2*j] + (e >> 1)}, s{sel}")


def rne(g, dst, src):
    g(f"v_cvt_pk_bf16_f32 v{dst}, v{src}, v{src}")
    g(f"v_lshlrev_b32 v{dst}, 16, v{dst}")


def tagcheck(g, regs, c1, c2, tag=None, mask=0xff):
    regs = list(dict.fromkeys(regs))
    for r in regs:
        g(f"v_xor_b32 v{r}, s{sTAG if tag is None else tag}, v{r}")
    r = list(regs)
    acc = [c1, c2] if len(r) >= 8 else [c1]
    started = []
    i = 0
    while r:
        d = acc[i % len(acc)]
        if d not in started:
            if len(r) >= 3:
                g(f"v_or3_b32 v{d}, v{r[0]}, v{r[1]}, v{r[2]}")
                r = r[3:]
            else:
                g(f"v_or_b32 v{d}, v{r[0]}, v{r[1]}")
                r = r[2:]
            started.append(d)
        elif len(r) >= 2:
            g(f"v_or3_b32 v{d}, v{d}, v{r[0]}, v{r[1]}")
            r = r[2:]
        else:
            if len(started) == 2:
                g(f"v_or3_b32 v{c1}, v{c1}, v{c2}, v{r[0]}")
                started = [c1]
            else:
                g(f"v_or_b32 v{d}, v{d}, v{r[0]}")
            r = []
        i += 1
    if len(started) == 2:
        g(f"v_or_b32 v{c1}, v{c1}, v{c2}")
    g(f"v_and_b32 v{c2}, {hex(mask)}, v{c1}")
    g(f"v_cmp_ne_u32 vcc, 0, v{c2}")


def reduce32x4(g, a):
    g(f"v_permlane32_swap_b32 v{a}, v{a+2}")
    g(f"v_permlane32_swap_b32 v{a+1}, v{a+3}")
    g(f"v_add_f32 v{a}, v{a}, v{a+2}")
    g(f"v_add_f32 v{a+1}, v{a+1}, v{a+3}")
    g("s_nop 1")
    g(f"v_permlane16_swap_b32 v{a}, v{a+1}")
    g(f"v_add_f32 v{a}, v{a}, v{a+1}")
    for r in (8, 4, 2):
        g("s_nop 1")
        g(f"v_add_f32_dpp v{a}, v{a}, v{a} row_ror:{r} row_mask:0xf bank_mask:0xf")


def gen(diag=False, kvflags="nt", wflags="nt", pace=11, pace3=None, spin_max=1 << 18, skip=(), probe=None, qwait=20,
        remap=False, fast=True, repub=3, bar0=4, pf=False, trig=4, ysig=4, brk=True, hstop=None, notail=False, lpace=None, pgrp=4, ks=(2, 1, 2, 1), vs=(2, 1, 2, 1), ps=None, es=0, eth=52, ctl=(18, 6, 48, 22), bs=0, sigearly=True, ypipe=2, touch=False, otouch=False, w1first=True, sth=56, cs=42, ysleep=0, zsleep=0, p1sleep=0, zfl='sc1', yfl='sc1', epf='sc1', xf='', mark2=False, stouch=True, btouch=0, det=True, sprio=0, cf='sc1', gf='sc1', csf='', cnone=False, rnd=True, w1ln=False, fswap=True, ofl='', epearly=True, epsf='sc1',
        lay=(13, 15, 17, 18, 19, 12, 14, 16, 20, 21)):
    SPAN = 0x400000
    sCB, sM = (sH, sS) if fswap else (sS, sH)
    assert sorted(lay) == list(range(12, 22))
    tup = lambda x: (x,) * 4 if isinstance(x, int) else tuple(x)
    ps = tup(ks if ps is None else ps)
    ks, vs, es = tup(ks), tup(vs), tup(es)
    bs = tup(bs)
    lv = [ps, ks, vs, es, bs]
    nM = 4 + min(min(x) for x in lv)
    nK = nV = nM
    g = G(diag or probe is not None)
    out = [HEADER + f"; @launch grid=(256,1,1) block=(320,1,1) lds={L_SIZE}",
           '.amdgcn_target "amdgcn-amd-amdhsa--gfx950"', ".text", f".globl {NAME}_kernel", ".p2align 8",
           f".type {NAME}_kernel,@function", f"{NAME}_kernel:"]

    def poll(tag, loads, regs, t, sleep, first=None):
        g(f"s_mov_b32 s{sSPIN}, 0")
        if first is not None:
            for l in loads:
                g(l)
            first()
            g(f"s_branch L_pw{tag}")
        g.label(f"L_poll{tag}")
        for l in loads:
            g(l)
        g.label(f"L_pw{tag}")
        g("s_waitcnt vmcnt(0)")
        if tag == "1" and g.diag:
            g(f"s_cmp_lg_u32 s{sSPIN}, 0")
            g("s_cbranch_scc1 L_nost")
            g.stamp(10)
            g.label("L_nost")
        tagcheck(g, regs, t, t + 1)
        g(f"s_cbranch_vccz L_got{tag}")
        g("s_mov_b64 exec, vcc")
        if sleep:
            g(f"s_sleep {sleep}")
        g(f"s_add_u32 s{sSPIN}, s{sSPIN}, 1")
        g(f"s_cmp_lt_u32 s{sSPIN}, {hex(spin_max)}")
        g(f"s_cbranch_scc1 L_poll{tag}")
        g.label(f"L_got{tag}")
        g("s_mov_b64 exec, -1")

    def ldswait(tag, off, thr, sleep, vz, vt):
        g(f"s_mov_b32 s{sSPIN}, 0")
        g.label(f"L_w{tag}")
        g(f"ds_read_b32 v{vt}, v{vz} offset:{off}")
        g(f"s_add_u32 s{sSPIN}, s{sSPIN}, 1")
        g("s_waitcnt lgkmcnt(0)")
        g(f"v_cmp_le_u32 vcc, {thr}, v{vt}")
        g(f"s_cbranch_vccnz L_g{tag}")
        g(f"s_sleep {sleep}")
        g(f"s_cmp_lt_u32 s{sSPIN}, {hex(spin_max*16)}")
        g(f"s_cbranch_scc1 L_w{tag}")
        g.label(f"L_g{tag}")

    def tagged(dst, src, vmask, tg):
        if rnd:
            g(f"v_add_u32 v{dst}, 0x80, v{src}")
            g(f"v_bfi_b32 v{dst}, v{vmask}, s{tg}, v{dst}")
        else:
            g(f"v_bfi_b32 v{dst}, v{vmask}, s{tg}, v{src}")

    def store_mode(tag, instr, smode):
        if fast:
            g(f"s_cmp_eq_u32 s{smode}, 1")
            g(f"s_cbranch_scc0 L_sl{tag}")
            g(instr)
            g(f"s_branch L_sd{tag}")
            g.label(f"L_sl{tag}")
        g(instr + " sc1")
        g.label(f"L_sd{tag}")

    g("s_cmp_ge_u32 s2, 256")
    g("s_cbranch_scc1 L_end")
    g.srd_load(SX, 0)
    g.srd_load(SWQ, 24)
    g.srd_load(SWS, 96)
    g.srd_load(SK, 8)
    g.srd_consts(SWS, W_SIZE)
    g.stamp(0)
    if pf:
        g("s_getpc_b64 s[44:45]")
        g.label("L_pc0")
        g("s_lshr_b32 s46, s2, 3")
        g("s_lshl_b32 s46, s46, 9")
        g("v_and_b32 v2, 3, v0")
        g("v_lshl_add_u32 v2, v2, 7, s46")
        g("v_min_u32 v2, L_end - L_pc0, v2")
        g("global_load_dword v64, v2, s[44:45]")
    g("v_lshrrev_b32 v1, 6, v0")
    g("v_and_b32 v0, 63, v0")
    g(f"s_lshr_b32 s{sB}, s2, 6")
    g(f"v_readfirstlane_b32 s{sWAVE}, v1")
    if remap:
        g(f"s_and_b32 s{sS}, s2, 7")
        g(f"s_bfe_u32 s{sH}, s2, 0x30003")
        g(f"s_lshl_b32 s2, s{sB}, 3")
        g(f"s_add_u32 s2, s2, s{sS}")
        g(f"s_lshl_b32 s2, s2, 3")
        g(f"s_add_u32 s2, s2, s{sH}")
    else:
        g(f"s_and_b32 s{sH}, s2, 7")
        g(f"s_bfe_u32 s{sS}, s2, 0x30003")
    g(f"s_mov_b32 s{sHI}, 0xffff0000")
    g(f"s_cmp_eq_u32 s{sWAVE}, 0")
    g("s_cbranch_scc1 L_helper")

    vK, vV, vSC, vH4, vMC, vZ0, vZ1 = 1, 2, 3, 4, 5, 6, 7
    vQ, vT, vO = 8, 16, 32
    SLOT = [64, 128, 192]
    sWGB, sSLOW, sTH = 52, 53, 54
    sTI = (33, 34, 35)
    g.srd_consts(SK, SPAN)
    g(f"s_sub_u32 s{sW}, s{sWAVE}, 1")
    if touch:
        g(f"s_lshl_b32 s46, s{sW}, 3")
        g(f"s_add_u32 s46, s46, 48")
        g(f"s_load_dwordx2 s[44:45], s[0:1], s46")
        g.srd_load(SV, 16)
        g.srd_load(SWO, 32)
        g(f"s_lshl_b32 s46, s2, 12")
        g(f"s_lshl_b32 s47, s{sH}, 7")
        g(f"s_bitcmp1_b32 s{sW}, 0")
        g(f"s_cselect_b32 s46, s47, s46")
        g(f"v_mov_b32 v3, s46")
    g(f"s_lshl_b32 s{sWGB}, s{sB}, 3")
    g(f"s_add_u32 s{sWGB}, s{sWGB}, s{sH}")
    g(f"s_lshl_b32 s{sWGB}, s{sWGB}, 22")
    sROT = 39
    def scatter(dst, src, pos, first=None):
        i = 0
        while i < len(pos):
            n = 1
            while i + n < len(pos) and pos[i + n] == pos[i] + n:
                n += 1
            if first is None and i == 0:
                g(f"s_bfe_u32 s{dst}, s{src}, {hex((n << 16) + i)}")
                g(f"s_lshl_b32 s{dst}, s{dst}, {pos[i]}")
            else:
                g(f"s_bfe_u32 s{sT1}, s{src}, {hex((n << 16) + i)}")
                g(f"s_lshl_b32 s{sT1}, s{sT1}, {pos[i]}")
                g(f"s_or_b32 s{dst}, s{first if i == 0 else dst}, s{sT1}")
            i += n
    scatter(sROT, sS, lay[7:10])
    TPOS = lay[5:7] + lay[2:5]
    UOFF = [((u & 1) << lay[0]) + ((u >> 1) << lay[1]) for u in range(4)]
    scatter(sA, sW, lay[5:7], sROT)
    g(f"v_bfe_u32 v{vK}, v0, 1, 1")
    g(f"v_lshlrev_b32 v{vK}, 10, v{vK}")
    g(f"v_bfe_u32 v{vZ0}, v0, 2, 2")
    g(f"v_lshl_add_u32 v{vK}, v{vZ0}, 8, v{vK}")
    g(f"v_lshrrev_b32 v{vZ1}, 4, v0")
    g(f"v_lshl_add_u32 v{vK}, v{vZ1}, 5, v{vK}")
    g(f"v_and_b32 v{vZ0}, 1, v0")
    g(f"v_lshl_add_u32 v{vK}, v{vZ0}, 4, v{vK}")
    g("s_waitcnt lgkmcnt(0)")
    g(f"s_add_u32 s{SK}, s{SK}, s{sWGB}")
    g(f"s_addc_u32 s{SK+1}, s{SK+1}, 0")
    if touch:
        g(f"s_add_u32 s{SV}, s{SV}, s{sWGB}")
        g(f"s_addc_u32 s{SV+1}, s{SV+1}, 0")
        g(f"s_lshl_b32 s46, s{sH}, 19")
        g(f"s_lshr_b32 s47, s2, 3")
        g(f"s_lshl_b32 s47, s47, 14")
        g(f"s_add_u32 s46, s46, s47")
        g(f"s_add_u32 s46, s{SWO}, s46")
        g(f"s_addc_u32 s47, s{SWO+1}, 0")
        g(f"s_bitcmp1_b32 s{sW}, 0")
        g(f"s_cselect_b64 s[46:47], s[46:47], s[{SV}:{SV+1}]")
        g(f"v_mov_b32 v4, 0")
        g("global_load_dword v64, v3, s[44:45]")
        g("global_load_dword v64, v4, s[46:47] nt")
    g("s_barrier")

    def issue(X, isk, paced=None, sp=None):
        if sp is None:
            sp = ks if isk else vs
        for u in range(4):
            so = sA
            for j in range(4):
                vo, rs, off = (vK, SK, (j & 1) * 128 + (j >> 1) * 2048) if isk else (vV, SV, j * 1024)
                d = X + 16 * u + 4 * j
                if j < sp[u]:
                    g(f"buffer_load_dwordx2 {vq(d,2)}, v{vo}, {srd(rs)}, s{so} offen offset:{off} {kvflags}")
                    g(f"buffer_load_dwordx2 {vq(d+2,2)}, v{vo}, {srd(rs)}, s{so} offen offset:{off+8} {kvflags}")
                else:
                    g(f"buffer_load_dwordx4 {vq(d)}, v{vo}, {srd(rs)}, s{so} offen offset:{off} {kvflags}")
                if paced is not None and (j + 1) % pgrp == 0:
                    g(f"s_waitcnt vmcnt({paced})")
            if u < 3:
                g(f"s_add_u32 s{sA}, s{sA}, {hex((UOFF[u+1] - UOFF[u]) & 0xffffffff)}")

    issue(SLOT[0], True, pace, ps)
    if not touch:
        g.srd_load(SV, 16)
        g.srd_load(SWO, 32)
    g.srd_consts(SV, SPAN)
    g.srd_consts(SWO, 4096 * 512 * 2)
    g(f"v_lshlrev_b32 v{vV}, 4, v0")
    g(f"s_mov_b32 s{sSELLO}, 0x05040100")
    g(f"s_mov_b32 s{sSELHI}, 0x07060302")
    g(f"s_mov_b32 s{sLOG2E}, {f32(LOG2E)}")
    g(f"s_mov_b32 s{sSCALE}, {f32(SCALE)}")
    g(f"s_mov_b32 s{sIT}, 0")
    g(f"s_mov_b32 s{sDR}, 0")
    sVN = 30
    g(f"s_add_u32 s{sVN}, s{sW}, 32")
    for k in range(3):
        g(f"s_add_u32 s{sTI[k]}, s{sW}, {4*k}")
    g(f"s_mov_b32 s{sMASK}, 0x000f000f")
    g(f"s_mov_b32 s{sMASK+1}, 0x000f000f")
    g(f"v_and_b32 v{vH4}, 3, v0")
    g(f"v_lshlrev_b32 v{vT}, 8, v{vH4}")
    g(f"v_lshl_add_u32 v{vT}, v{vZ1}, 5, v{vT}")
    g(f"v_bfe_u32 v{vZ0}, v0, 2, 1")
    g(f"v_lshl_add_u32 v{vT}, v{vZ0}, 4, v{vT}")
    g(f"v_lshlrev_b32 v{vSC}, 6, v{vZ1}")
    g(f"v_lshl_add_u32 v{vSC}, v{vH4}, 4, v{vSC}")
    g(f"v_lshlrev_b32 v{vH4}, 2, v{vH4}")
    g(f"v_mov_b32 v{vZ0}, 0")
    g(f"v_mov_b32 v{vZ1}, 1")
    sD0 = 28
    g(f"s_lshl_b32 s{sD0}, s{sH}, 2")
    g(f"s_add_u32 s{sD0}, s{sD0}, s{sB}")
    g(f"s_lshl_b32 s{sD0}, s{sD0}, 6")
    g(f"s_add_u32 s{sD0}, s{sD0}, s{sW}")
    g(f"s_lshl_b32 s{sD0}, s{sD0}, 11")
    g(f"s_lshl_b32 s{sT0}, s{sS}, 7")
    g(f"s_add_u32 s{sD0}, s{sD0}, s{sT0}")
    if 'wo' in skip:
        g(f"s_mov_b32 s{sD0}, {hex(OOB)}")
    g(f"s_add_u32 s{sD0+1}, s{sD0}, {64*1024 - 2048}")
    sH1S, sH1G, sYS = 36, 37, 38
    g(f"s_lshl_b32 s{sT0}, s{sW}, 12")
    g(f"s_add_u32 m0, s{sT0}, {L_WO}")
    g(f"s_lshl_b32 s{sH1S}, s2, 2")
    g(f"s_add_u32 s{sH1S}, s{sH1S}, s{sW}")
    g(f"s_lshl_b32 s{sYS}, s{sH1S}, 8")
    g(f"s_add_u32 s{sYS}, s{sYS}, {hex(A_Y)}")
    g(f"s_lshl_b32 s{sH1S}, s{sH1S}, 9")
    g(f"s_add_u32 s{sH1S}, s{sH1S}, {hex(A_P)}")
    g(f"s_lshl_b32 s{sH1G}, s{sW}, 6")
    g(f"s_add_u32 s{sH1G}, s{sH1G}, s{sH}")
    g(f"s_lshl_b32 s{sH1G}, s{sH1G}, 2")
    g(f"s_add_u32 s{sH1G}, s{sH1G}, s{sB}")
    g(f"s_lshl_b32 s{sH1G}, s{sH1G}, 9")
    g(f"s_add_u32 s{sH1G}, s{sH1G}, {hex(A_P)}")
    if btouch:
        g(f"s_lshl_b32 s{sT0}, s{sW}, 3")
        scatter(sT2, sT0, TPOS, sROT)
        g("s_waitcnt lgkmcnt(0)")
        g(f"s_add_u32 s40, s{SK}, s{sT2}")
        g(f"s_addc_u32 s41, s{SK+1}, 0")
        g(f"s_add_u32 s{sT2}, s{sT2}, s{sWGB}")
        g(f"s_add_u32 s42, s{SV}, s{sT2}")
        g(f"s_addc_u32 s43, s{SV+1}, 0")
        n = 44
        for base in (40, 42):
            for blk in range(2):
                for sub in range(btouch):
                    g(f"s_load_dword s{n}, s[{base}:{base+1}], {hex((blk << lay[2]) + sub * (0x10000 // btouch))}")
                    n = 44 + (n - 43) % 8
    scatter(sA, sTI[1], TPOS, sROT)
    issue(SLOT[1], True, pace, ps)
    scatter(sA, sTI[2], TPOS, sROT)
    issue(SLOT[2], True, pace3, ps)
    g.stamp(1)
    g(f"s_mov_b32 s{sSPIN}, 0")
    g.label("L_wq")
    g(f"ds_read_b64 {vq(vT+2,2)}, v{vZ0} offset:{L_TAG}")
    g(f"s_add_u32 s{sSPIN}, s{sSPIN}, 1")
    g("s_waitcnt lgkmcnt(0)")
    g(f"v_cmp_ne_u32 vcc, 0, v{vT+3}")
    g("s_cbranch_vccnz L_wq_ok")
    g("s_sleep 2")
    g(f"s_cmp_lt_u32 s{sSPIN}, {hex(spin_max*16)}")
    g("s_cbranch_scc1 L_wq")
    g.label("L_wq_ok")
    if sprio:
        g(f"s_setprio {sprio}")
    if not touch:
        g(f"s_add_u32 s{SV}, s{SV}, s{sWGB}")
        g(f"s_addc_u32 s{SV+1}, s{SV+1}, 0")
    for j in range(2):
        g(f"ds_read_b128 {vq(vQ+4*j)}, v{vT} offset:{L_Q + 128*j}")
    g.stamp(2)
    g(f"v_readfirstlane_b32 s{sTAG}, v{vT+2}")
    g(f"v_readfirstlane_b32 s{sSLOW}, v{vT+3}")
    g("s_waitcnt lgkmcnt(0)")

    def take(k):
        g("s_mov_b64 exec, 1")
        g(f"ds_add_rtn_u32 v{vT}, v{vZ0}, v{vZ1} offset:{L_CNT}")
        g(f"ds_read_b32 v{vT+1}, v{vZ0} offset:{L_TH}")
        g("s_mov_b64 exec, -1")
        g("s_waitcnt lgkmcnt(0)")
        g(f"v_readfirstlane_b32 s{sTI[k]}, v{vT}")
        g(f"v_readfirstlane_b32 s{sTH}, v{vT+1}")
        if det:
            g(f"s_cmp_ge_u32 s{sTI[k]}, 32")
            g(f"s_cselect_b32 s{sTI[k]}, s{sVN}, s{sTI[k]}")
            g(f"s_cselect_b32 s{sT1}, 4, 0")
            g(f"s_add_u32 s{sVN}, s{sVN}, s{sT1}")
        scatter(sA, sTI[k], TPOS, sROT)

    def ktile(k):
        X = SLOT[k]
        for G_ in range(8):
            if G_ % 2 == 0:
                g(f"s_waitcnt vmcnt({min(63, 8*nM + (3 - G_//2)*nK)})")
            for j in range(2):
                c = "0" if j == 0 else vq(vO + 4 * G_)
                g(f"v_mfma_f32_16x16x32_bf16 {vq(vO+4*G_)}, {vq(X+8*G_+4*j)}, {vq(vQ+4*j)}, {c}")
        for i in range(16):
            g(f"v_add_f32_dpp v{vT+i}, v{vO+2*i+1}, v{vO+2*i} row_shl:4 row_mask:0xf bank_mask:0xf bound_ctrl:0")
        for i in range(8):
            g(f"v_cvt_pk_bf16_f32 v{vO+i}, v{vT+2*i}, v{vT+2*i+1}")
        for i in range(8):
            g(f"v_lshlrev_b32 v{vT+2*i}, 16, v{vO+i}")
            g(f"v_and_b32 v{vT+2*i+1}, s{sHI}, v{vO+i}")
        for i in range(16):
            g(f"v_mul_f32 v{vT+i}, s{sSCALE}, v{vT+i}")
        for i in range(8):
            g(f"v_cvt_pk_bf16_f32 v{vO+8+i}, v{vT+2*i}, v{vT+2*i+1}")
        g(f"s_lshl_b32 s{sT0}, s{sTI[k]}, 9")
        g(f"v_add_u32 v{vO+16}, s{sT0}, v{vSC}")
        g(f"v_max3_f32 v{vO+17}, v{vT}, v{vT+1}, v{vT+2}")
        g(f"v_max3_f32 v{vO+18}, v{vT+3}, v{vT+4}, v{vT+5}")
        g(f"v_max3_f32 v{vO+17}, v{vO+17}, v{vT+6}, v{vT+7}")
        g(f"v_max3_f32 v{vO+18}, v{vO+18}, v{vT+8}, v{vT+9}")
        g(f"v_max3_f32 v{vO+17}, v{vO+17}, v{vT+10}, v{vT+11}")
        g(f"v_max3_f32 v{vO+18}, v{vO+18}, v{vT+12}, v{vT+13}")
        g(f"v_max3_f32 v{vO+17}, v{vO+17}, v{vT+14}, v{vT+15}")
        g(f"v_max_f32 v{vO+17}, v{vO+17}, v{vO+18}")
        g(f"s_mov_b64 exec, s[{sMASK}:{sMASK+1}]")
        g(f"ds_write_b128 v{vO+16}, {vq(vO+8)} offset:{L_SC}")
        g(f"ds_write_b128 v{vO+16}, {vq(vO+12)} offset:{L_SC+256}")
        g(f"ds_max_f32 v{vH4}, v{vO+17} offset:{L_MAX}")
        g(f"ds_add_u32 v{vZ0}, v{vZ1} offset:{L_KD}")

    def vtile(k):
        X = SLOT[k]
        P = vQ
        cnt = [0]
        def wait(n):
            g(f"s_waitcnt vmcnt({min(63, n + 8*nV)})")
            g(f"s_cbranch_scc0 L_w{k}{cnt[0]}")
            g(f"s_waitcnt vmcnt({n + 4})")
            g.label(f"L_w{k}{cnt[0]}")
            cnt[0] += 1
        g(f"s_lshl_b32 s{sT0}, s{sTI[k]}, 9")
        g(f"s_sub_u32 s{sT0}, s{sT0}, {32*512 - L_SC}")
        g(f"v_add_u32 v{vT}, s{sT0}, v{vSC}")
        g(f"ds_read_b128 {vq(P)}, v{vT}")
        g(f"ds_read_b128 {vq(P+4)}, v{vT} offset:256")
        g(f"s_cmp_eq_u32 s{sDR}, 2")
        g("s_waitcnt lgkmcnt(0)")
        for i in range(8):
            g(f"v_lshlrev_b32 v{vT+2*i}, 16, v{P+i}")
            g(f"v_and_b32 v{vT+2*i+1}, s{sHI}, v{P+i}")
        for i in range(16):
            g(f"v_fma_f32 v{vT+i}, v{vT+i}, s{sLOG2E}, -v{vMC}")
        for i in range(16):
            g(f"v_exp_f32 v{vT+i}, v{vT+i}")
        for i in range(8):
            g(f"v_cvt_pk_bf16_f32 v{P+i}, v{vT+2*i}, v{vT+2*i+1}")
        for hb in range(2):
            raw = [X + 32 * hb + 4 * t for t in range(8)]
            wait(2 * nV * (1 - hb))
            perms(g, raw, 0, vT)
            perms(g, raw, 1, vT + 4)
            for e in range(8):
                if e == 7:
                    g("s_nop 0")
                g(f"v_mfma_f32_16x16x32_bf16 {vq(vO+4*e)}, {vq(vT+4*(e%4))}, {vq(P+4*hb)}, {vq(vO+4*e)}")
                if e + 2 < 8:
                    perms(g, raw, e + 2, vT + 4 * ((e + 2) % 4))

    g.L.append(".p2align 3")
    for k in range(3):
        g.comment('K tile: scores = bf16(bf16(q.k) * 128^-0.5) -> LDS, running maximum per head (ds_max), next tile')
        g.label(f"L_k{k}")
        g(f"s_cmp_ge_u32 s{sTI[k]}, 32")
        g(f"s_cbranch_scc1 L_tr{k}")
        ktile(k)
        take(k)
        g(f"s_cmp_ge_u32 s{sTI[k]}, 32")
        g(f"s_cbranch_scc1 L_kv{k}")
        g(f"s_cmp_ge_u32 s{sTI[k]}, s{sTH}")
        g(f"s_cbranch_scc1 L_kb{k}")
        issue(SLOT[k], True, lpace)
    g("s_branch L_k0")
    for k in range(3):
        g.label(f"L_kb{k}")
        if g.diag:
            g(f"s_add_u32 s{sIT}, s{sIT}, 1")
        issue(SLOT[k], True, lpace, bs)
        g(f"s_branch L_k{(k+1)%3}")
        g.label(f"L_kv{k}")
        g(f"s_cmp_ge_u32 s{sTI[k]}, s{sTH}")
        g(f"s_cbranch_scc1 L_kvb{k}")
        issue(SLOT[k], False, lpace)
        g(f"s_branch L_k{(k+1)%3}")
        g.label(f"L_kvb{k}")
        if g.diag:
            g(f"s_add_u32 s{sIT}, s{sIT}, 1")
        issue(SLOT[k], False, lpace, es)
        g(f"s_branch L_k{(k+1)%3}")
    for k in range(3):
        g.label(f"L_tr{k}")
        g(f"s_mov_b32 s{sT4}, {k}")
        if k < 2:
            g("s_branch L_trans")
    g.label("L_trans")
    g.stamp(7)
    for i in range(32):
        g(f"v_mov_b32 v{vO+i}, 0")
    ldswait("kd", L_KD, 512, 1, vZ0, vT)
    g(f"ds_read_b32 v{vMC}, v{vH4} offset:{L_MAX}")
    g.stamp(8)
    g("s_waitcnt lgkmcnt(0)")
    rne(g, vMC, vMC)
    g(f"v_mul_f32 v{vMC}, s{sLOG2E}, v{vMC}")
    g(f"s_cmp_eq_u32 s{sT4}, 1")
    g("s_cbranch_scc1 L_v1")
    g(f"s_cmp_eq_u32 s{sT4}, 2")
    g("s_cbranch_scc1 L_v2")
    g.L.append(".p2align 3")
    for k in range(3):
        g.comment('V tile: p = exp(s - max) in bf16, V transposed in registers (v_perm), O += V^T p')
        g.label(f"L_v{k}")
        vtile(k)
        g(f"s_cmp_lg_u32 s{sDR}, 0")
        g(f"s_cbranch_scc1 L_dr{k}")
        take(k)
        g(f"s_cmp_ge_u32 s{sTI[k]}, s{sTH}")
        g(f"s_cbranch_scc1 L_ve{k}")
        issue(SLOT[k], False, lpace)
    g("s_branch L_v0")
    for k in range(3):
        g.label(f"L_ve{k}")
        g(f"s_cmp_ge_u32 s{sTI[k]}, 64")
        g(f"s_cbranch_scc1 L_dr1{k}")
        if g.diag:
            g(f"s_add_u32 s{sIT}, s{sIT}, 1")
        issue(SLOT[k], False, lpace, es)
        g(f"s_branch L_v{(k+1)%3}")

    vPW = vK
    for k in range(3):
        nxt = f"L_v{(k+1)%3}"
        g.label(f"L_dr{k}")
        g(f"s_cmp_eq_u32 s{sDR}, 2")
        g(f"s_cbranch_scc1 L_tail")
        g(f"s_mov_b32 s{sDR}, 2")
        g(f"s_branch {nxt}")
        g.label(f"L_dr1{k}")
        g(f"s_mov_b32 s{sT4}, {(k+1)%3}")
        if k < 2:
            g("s_branch L_drain")
    g.label("L_drain")
    va = vT
    g(f"v_lshrrev_b32 v{va}, 3, v0")
    g(f"v_lshlrev_b32 v{va}, 13, v{va}")
    g(f"v_and_b32 v{va+1}, 7, v0")
    g(f"v_lshl_add_u32 v{va}, v{va+1}, 4, v{va}")
    g(f"v_and_b32 v{va+1}, 16, v0")
    g(f"v_lshlrev_b32 v{va+1}, 1, v{va+1}")
    g(f"s_and_b32 s{sT0}, s{sW}, 1")
    g(f"s_lshl_b32 s{sT0}, s{sT0}, 6")
    g(f"v_bitop3_b32 v{va}, v{va}, v{va+1}, s{sT0} bitop3:0x96")
    for i in range(4):
        g(f"buffer_load_dwordx4 v{va}, {srd(SWO)}, s{sD0 + (i>>1)} offen offset:{1024*i} {wflags} lds")
    g(f"v_lshrrev_b32 v{vPW}, 4, v0")
    g(f"v_lshlrev_b32 v{vPW}, 4, v{vPW}")
    g(f"v_mul_u32_u24 v{va+1}, {HS//4}, v{vH4}")
    g(f"s_mul_i32 s{sT0}, s{sW}, {WSP}")
    g(f"v_add3_u32 v{vPW}, v{vPW}, v{va+1}, s{sT0}")
    g(f"s_mov_b32 s{sDR}, 1")
    g(f"s_waitcnt vmcnt({4*nV + 4})")
    g(f"s_cmp_eq_u32 s{sT4}, 1")
    g("s_cbranch_scc1 L_v1")
    g(f"s_cmp_eq_u32 s{sT4}, 2")
    g("s_cbranch_scc1 L_v2")
    g("s_branch L_v0")

    X = 64
    WT = 128
    g.label("L_tail")
    g.stamp(3)
    if notail:
        g("s_branch L_fin")
    RA, RF, vJ, vFF, vP1, vG, TM = 8, 9, 10, 11, 12, 13, 14
    TRA = (16, 17, 18, 19)
    g(f"s_lshl_b32 s{sT0}, s{sW}, 2")
    g(f"v_mov_b32 v{vJ}, s{sT0}")
    g(f"v_and_b32 v{RA}, 31, v0")
    g(f"s_mul_i32 s{sT1}, s{sW}, {HS}")
    g(f"v_lshl_add_u32 v{RA}, v{RA}, 4, s{sT1}")
    g(f"v_lshlrev_b32 v{RF}, 1, v{vJ}")
    g(f"s_mov_b64 exec, s[{sMASK}:{sMASK+1}]")
    for e in range(8):
        g(f"ds_write_b128 v{vPW}, {vq(vO+4*e)} offset:{L_PART + 64*e}")
    if not mark2:
        g("s_waitcnt vmcnt(0)")
    g(f"ds_write_b32 v{vJ}, v{vZ1} offset:{L_JN}")
    g("s_mov_b64 exec, -1")
    PR = X
    JN, FF_ = X + 16, X + 20
    def joinreads():
        g(f"ds_read_b128 {vq(JN)}, v{vZ0} offset:{L_JN}")
        g(f"ds_read_b64 {vq(FF_,2)}, v{RF} offset:{L_F}")
        for w in range(4):
            g(f"ds_read_b128 {vq(PR+4*w)}, v{RA} offset:{L_PART + WSP*w}")
    joinreads()
    g(f"v_mov_b32 v{vFF}, 0xff")
    g(f"v_lshrrev_b32 v{vP1}, 3, v0")
    g(f"v_lshlrev_b32 v{vP1}, 14, v{vP1}")
    g(f"v_and_b32 v{TM}, 7, v0")
    g(f"v_lshl_add_u32 v{vP1}, v{TM}, 4, v{vP1}")
    g(f"v_lshrrev_b32 v{vG}, 4, v0")
    g(f"v_bfe_u32 v{TRA[0]}, v0, 2, 2")
    g(f"v_lshlrev_b32 v{TRA[0]}, 7, v{TRA[0]}")
    g(f"v_lshl_add_u32 v{TRA[0]}, v{vH4}, 1, v{TRA[0]}")
    g(f"v_lshl_add_u32 v{TRA[0]}, v{vG}, 12, v{TRA[0]}")
    g(f"v_bfe_u32 v{TM}, v0, 3, 2")
    g(f"v_lshl_add_u32 v{TRA[0]}, v{TM}, 5, v{TRA[0]}")
    for j in range(1, 4):
        g(f"v_xor_b32 v{TRA[j]}, {32*j}, v{TRA[0]}")
    g(f"s_mov_b32 s{sMASK}, -1")
    g(f"s_mov_b32 s{sMASK+1}, 0")
    g(f"s_mov_b32 s{sSPIN}, 0")
    g.label("L_join")
    g("s_waitcnt lgkmcnt(0)" if g.diag else "s_waitcnt lgkmcnt(4)")
    g(f"v_min3_u32 v{TM}, v{JN}, v{JN+1}, v{JN+2}")
    g(f"v_min3_u32 v{TM}, v{TM}, v{JN+3}, v{FF_+1}")
    g(f"v_cmp_eq_u32 vcc, 0, v{TM}")
    g("s_waitcnt lgkmcnt(0)")
    g("s_cbranch_vccz L_joined")
    joinreads()
    g(f"s_add_u32 s{sSPIN}, s{sSPIN}, 1")
    g(f"s_cmp_lt_u32 s{sSPIN}, {hex(spin_max*16)}")
    g("s_cbranch_scc1 L_join")
    g("s_waitcnt lgkmcnt(0)")
    g.label("L_joined")
    g.stamp(4)
    for i in range(4):
        g(f"v_add_f32 v{PR+i}, v{PR+i}, v{PR+4+i}")
        g(f"v_add_f32 v{PR+8+i}, v{PR+8+i}, v{PR+12+i}")
    for i in range(4):
        g(f"v_add_f32 v{PR+i}, v{PR+i}, v{PR+8+i}")
    for i in range(4):
        g(f"v_mul_f32 v{PR+i}, v{FF_}, v{PR+i}")
    for i in range(4):
        tagged(PR + i, PR + i, vFF, sTAG)
    g(f"s_mov_b64 exec, s[{sMASK}:{sMASK+1}]")
    store_mode("p", f"buffer_store_dwordx4 {vq(PR)}, v{vV}, {srd(SWS)}, s{sH1S} offen", sSLOW)
    g("s_mov_b64 exec, -1")
    D = X + 24
    C1 = X + 40
    def wofrag():
        if mark2:
            g("s_waitcnt vmcnt(5)")
            g("s_mov_b64 exec, 1")
            g(f"ds_add_u32 v{vZ0}, v{vZ1} offset:{L_WR}")
            g("s_mov_b64 exec, -1")
            g(f"s_mov_b32 s{sT2}, 0")
            g.label("L_wwo")
            g(f"ds_read_b32 v{TM}, v{vZ0} offset:{L_WR}")
            g(f"s_add_u32 s{sT2}, s{sT2}, 1")
            g("s_waitcnt lgkmcnt(0)")
            g(f"v_cmp_le_u32 vcc, 4, v{TM}")
            g("s_cbranch_vccnz L_gwo")
            g(f"s_cmp_lt_u32 s{sT2}, {hex(spin_max*16)}")
            g("s_cbranch_scc1 L_wwo")
            g.label("L_gwo")
        for step in range(4):
            for j in range(4):
                for half in range(2):
                    g(f"ds_read_b64_tr_b16 {vq(WT+16*step+4*j+2*half,2)}, v{TRA[j]} offset:{L_WO + 1024*((step>>1) + 2*(step&1)) + 512*half}")
    g.stamp(9)
    poll("1", [f"buffer_load_dwordx4 {vq(D+4*i)}, v{vP1}, {srd(SWS)}, s{sH1G} offen offset:{128*i} {gf}" for i in range(4)],
         [D + i for i in range(16)], C1, p1sleep, wofrag)
    g.stamp(5)
    if sigearly:
        g(f"ds_add_u32 v{vZ0}, v{vZ1} offset:{L_KD}")
    for i in range(8):
        g(f"v_permlane32_swap_b32 v{D+i}, v{D+8+i}")
    for i in range(8):
        g(f"v_add_f32 v{D+i}, v{D+i}, v{D+8+i}")
    for i in range(4):
        g(f"v_permlane16_swap_b32 v{D+i}, v{D+4+i}")
    for i in range(4):
        g(f"v_add_f32 v{D+i}, v{D+i}, v{D+4+i}")
    for i in range(4):
        g(f"v_add_f32_dpp v{D+i}, v{D+i}, v{D+i} row_ror:8 row_mask:0xf bank_mask:0xf")
    B0 = X + 44
    g(f"v_cvt_pk_bf16_f32 v{B0}, v{D}, v{D+1}")
    g(f"v_cvt_pk_bf16_f32 v{B0+1}, v{D+2}, v{D+3}")
    g("s_waitcnt lgkmcnt(0)")
    def mv(c):
        for i in range(2):
            g(f"v_mov_b32_dpp v{B0+2*c+i}, v{B0+i} row_shl:{c} row_mask:0xf bank_mask:0xf bound_ctrl:0")
    mv(1)
    mv(2)
    for step in range(4):
        for j in range(4):
            c = "0" if step == 0 else vq(vO + 4 * j)
            g(f"v_mfma_f32_16x16x32_bf16 {vq(vO+4*j)}, {vq(B0+4*step)}, {vq(WT+16*step+4*j)}, {c}")
            if step * 4 + j < 5:
                mv(3 + step * 4 + j)
    if not sigearly:
        g(f"ds_add_u32 v{vZ0}, v{vZ1} offset:{L_KD}")
    else:
        g("s_nop 0")
    g("s_mov_b64 exec, 0xffff")
    g("s_nop 2")
    YO = 20
    for j in range(4):
        tagged(YO + j, vO + 4 * j, vFF, sTAG)
    g(f"buffer_store_dwordx4 {vq(YO)}, v{vV}, {srd(SWS)}, s{sYS} offen {yfl}")
    g("s_mov_b64 exec, -1")
    g.stamp(6)
    g("s_branch L_fin")

    g.label("L_helper")
    g(f"v_mov_b32 v7, 0")
    g(f"v_lshlrev_b32 v8, 2, v0")
    g(f"ds_write_b32 v8, v7 offset:{L_TAG}")
    g(f"v_mov_b32 v9, 12")
    g(f"ds_write_b32 v7, v9 offset:{L_CNT}")
    g(f"v_mov_b32 v9, {eth}")
    g(f"ds_write_b32 v7, v9 offset:{L_TH}")
    g(f"v_and_b32 v8, 12, v8")
    g(f"v_mov_b32 v9, 0xff800000")
    g(f"ds_write_b32 v8, v9 offset:{L_MAX}")
    if bar0 == 0:
        g("s_waitcnt lgkmcnt(0)")
        g("s_barrier")
    g("s_setprio 3")
    g.srd_consts(SX, 4096)
    g.srd_consts(SWQ, 512 * 4096 * 2)
    hT = 20
    hACC = 32
    R = 48
    XR = 64
    XF = 80
    WF = 128
    vX, vTAG, vTR, vFFh, vH4h = 2, 6, 9, 11, 8
    sU, sC1 = 52, 54
    g(f"s_and_b32 s{sU}, s{sS}, 1")
    g(f"v_and_b32 v3, 3, v0")
    g(f"v_lshlrev_b32 v{vX}, 10, v3")
    g(f"v_bfe_u32 v4, v0, 2, 2")
    g(f"s_lshl_b32 s{sT0}, s{sU}, 1")
    g(f"v_xor_b32 v5, s{sT0}, v4")
    g(f"v_lshl_add_u32 v{vX}, v5, 6, v{vX}")
    g(f"v_lshrrev_b32 v5, 4, v0")
    g(f"v_lshl_add_u32 v{vX}, v5, 4, v{vX}")
    SXO = (56, 57, 58, 59)
    for j in range(4):
        g(f"s_xor_b32 s{SXO[j]}, s{sB}, {j}")
        g(f"s_lshl_b32 s{SXO[j]}, s{SXO[j]}, 8")
    g(f"v_lshrrev_b32 v10, 3, v0")
    g(f"v_and_b32 v11, 7, v0")
    g(f"v_lshlrev_b32 v11, 4, v11")
    VQ, V1, V2 = 112, 116, 120
    g(f"v_lshl_add_u32 v{VQ}, v10, 13, v11")
    for i in range(1, 4):
        g(f"v_add_u32 v{VQ+i}, {hex(i*(8*8192 - 1024))}, v{VQ}")
    SQO = (sA, sBo, sIT, sT0)
    g(f"s_lshl_b32 s{sT1}, s{sH}, 3")
    g(f"s_add_u32 s{sT1}, s{sT1}, s{sS}")
    g(f"s_lshl_b32 s{sT1}, s{sT1}, 7")
    g(f"s_lshl_b32 s{sT2}, s{sB}, 20")
    g(f"s_add_u32 s{sT1}, s{sT1}, s{sT2}")
    if 'wq' in skip:
        g(f"s_mov_b32 s{sT1}, {hex(OOB)}")
    g(f"s_lshl_b32 s{sT2}, s{sU}, 19")
    g(f"s_add_u32 s{SQO[0]}, s{sT1}, s{sT2}")
    g(f"s_add_u32 s{SQO[1]}, s{SQO[0]}, {hex(32*8192)}")
    g(f"s_xor_b32 s{sT2}, s{sT2}, {hex(64*8192)}")
    g(f"s_add_u32 s{SQO[2]}, s{sT1}, s{sT2}")
    g(f"s_add_u32 s{SQO[3]}, s{SQO[2]}, {hex(32*8192)}")
    g(f"s_mov_b32 s{sSPIN}, {hex(W_EP)}")
    g(f"s_mov_b32 m0, {L_WQ}")
    g("s_waitcnt lgkmcnt(0)")
    for j in range(4):
        g(f"buffer_load_dwordx4 {vq(XR+4*j)}, v{vX}, {srd(SX)}, s{SXO[j]} offen {xf}")
    g(f"buffer_load_dword v{vTAG}, v7, {srd(SWS)}, s{sSPIN} offen {epf}")
    for n, so in enumerate(SQO):
        for i in range(4):
            g(f"buffer_load_dwordx4 v{VQ+i}, {srd(SWQ)}, s{so} offen offset:{1024*i} {wflags} lds")
        if n + 1 == bar0:
            g("s_barrier")
        if n < 3:
            g(f"s_add_u32 m0, m0, 4096")
            g("s_nop 0")
    for (b_, off, nb) in ((SB1, 56, 1792 * 2), (SB2, 72, 1024), (SW1, 48, 512 * 1792 * 2), (SW2, 64, 1792 * 512 * 2), (SOUT, 80, 4096)):
        g.srd_load(b_, off)
        g.srd_consts(b_, nb)
    g(f"s_lshr_b32 s{sC1}, s{sS}, 1")
    g(f"s_lshl_b32 s{sC1}, s{sC1}, 3")
    g(f"s_add_u32 s{sC1}, s{sC1}, s{sH}")
    vQS = 10
    g(f"v_lshlrev_b32 v{vQS}, 8, v3")
    g(f"v_lshl_add_u32 v{vQS}, v4, 6, v{vQS}")
    g(f"v_lshl_add_u32 v{vQS}, v5, 4, v{vQS}")
    sOWN, sOWNH, sOWNZ = sA, sBo, sIT
    g(f"s_lshl_b32 s{sOWN}, s2, 10")
    g(f"s_add_u32 s{sOWNH}, s{sOWN}, {hex(A_H)}")
    g(f"s_add_u32 s{sOWNZ}, s{sOWN}, {hex(A_Z)}")
    g(f"v_lshlrev_b32 v{vTR}, 10, v5")
    g(f"v_lshl_add_u32 v{vTR}, v4, 7, v{vTR}")
    g(f"v_lshl_add_u32 v{vTR}, v3, 3, v{vTR}")
    g(f"v_mov_b32 v{vFFh}, 0xff")
    SM1, SM2, SM3 = 12, 14, 68
    for (sm, c) in ((SM1, 1), (SM2, 2), (SM3, 3)):
        g(f"s_mov_b32 s{sm}, {hex(0x000f000f << (4*c))}")
        g(f"s_mov_b32 s{sm+1}, {hex(0x000f000f << (4*c))}")
    def red4(v, t):
        for r in (4, 8):
            g("s_nop 1")
            g(f"v_add_f32_dpp v{v}, v{v}, v{v} row_ror:{r} row_mask:0xf bank_mask:0xf")
        for sw in ("v_permlane16_swap_b32", "v_permlane32_swap_b32"):
            g(f"v_mov_b32 v{t}, v{v}")
            g("s_nop 1")
            g(f"{sw} v{v}, v{t}")
            g(f"v_add_f32 v{v}, v{v}, v{t}")
    NY = 16
    g(f"s_waitcnt vmcnt({NY + 1})")
    for i in range(16):
        g(f"v_lshlrev_b32 v{XF+2*i}, 16, v{XR+i}")
        g(f"v_and_b32 v{XF+2*i+1}, s{sHI}, v{XR+i}")
    g(f"v_pk_add_f32 {vq(hT,2)}, {vq(XF,2)}, {vq(XF+2,2)}")
    g(f"v_pk_add_f32 {vq(hT+2,2)}, {vq(XF+4,2)}, {vq(XF+6,2)}")
    for i in range(4, 16):
        d = hT + 2 * (i & 1)
        g(f"v_pk_add_f32 {vq(d,2)}, {vq(d,2)}, {vq(XF+2*i,2)}")
    g(f"v_pk_add_f32 {vq(hT,2)}, {vq(hT,2)}, {vq(hT+2,2)}")
    g(f"v_add_f32 v{hT}, v{hT}, v{hT+1}")
    red4(hT, hT + 1)
    g(f"v_mul_f32 v{hT}, {f32(-1.0/512)}, v{hT}")
    g(f"v_mov_b32 v{hT+1}, v{hT}")
    for i in range(16):
        t = hT + 6 + 2 * (i & 1)
        d = hT + 2 + 2 * (i & 1)
        g(f"v_pk_add_f32 {vq(t,2)}, {vq(XF+2*i,2)}, {vq(hT,2)}")
        if i < 2:
            g(f"v_pk_mul_f32 {vq(d,2)}, {vq(t,2)}, {vq(t,2)}")
        else:
            g(f"v_pk_fma_f32 {vq(d,2)}, {vq(t,2)}, {vq(t,2)}, {vq(d,2)}")
    g(f"v_pk_add_f32 {vq(hT+2,2)}, {vq(hT+2,2)}, {vq(hT+4,2)}")
    g(f"v_add_f32 v{hT+2}, v{hT+2}, v{hT+3}")
    rne(g, hT, hT)
    red4(hT + 2, hT + 3)
    g(f"v_mul_f32 v{hT+2}, {f32(1.0/512)}, v{hT+2}")
    rne(g, hT + 2, hT + 2)
    g(f"v_add_f32 v{hT+2}, {f32(1e-5)}, v{hT+2}")
    rne(g, hT + 2, hT + 2)
    g(f"v_sqrt_f32 v{hT+2}, v{hT+2}")
    for i in range(8):
        g(f"v_add_f32 v{XF+i}, v{XF+i}, v{hT}")
    rne(g, hT + 2, hT + 2)
    g(f"v_rcp_f32 v{hT+4}, v{hT+2}")
    def round8(F, T):
        for i in range(4):
            g(f"v_cvt_pk_bf16_f32 v{T+i}, v{F+2*i}, v{F+2*i+1}")
        for i in range(4):
            g(f"v_lshlrev_b32 v{F+2*i}, 16, v{T+i}")
            g(f"v_and_b32 v{F+2*i+1}, s{sHI}, v{T+i}")
    round8(XF, R)
    for i in range(8):
        g(f"v_mul_f32 v{XF+8+i}, v{XF+i}, v{hT+4}")
    for i in range(8):
        g(f"v_fma_f32 v{XF+i}, -v{XF+8+i}, v{hT+2}, v{XF+i}")
    for i in range(8):
        g(f"v_fma_f32 v{XF+i}, v{XF+i}, v{hT+4}, v{XF+8+i}")
    for i in range(4):
        g(f"v_cvt_pk_bf16_f32 v{R+i}, v{XF+2*i}, v{XF+2*i+1}")
    g.stamp(1)
    g(f"s_waitcnt vmcnt({NY})")
    g(f"v_add_u32 v{vTAG}, 1, v{vTAG}")
    for t in range(1, 4):
        for i in range(4):
            g(f"v_mov_b32_dpp v{R+4*t+i}, v{R+i} row_ror:{4*t} row_mask:0xf bank_mask:0xf")
    g(f"v_readfirstlane_b32 s{sTAG}, v{vTAG}")
    g(f"s_and_b32 s{sTAG}, s{sTAG}, 0xff")
    sTAGQ, sRP = 70, 71
    g(f"s_getreg_b32 s{sTAGQ}, hwreg(HW_REG_XCC_ID)")
    g(f"s_and_b32 s{sTAGQ}, s{sTAGQ}, 7")
    g(f"s_lshl_b32 s{sTAGQ}, s{sTAGQ}, 5")
    g(f"s_and_b32 s{sRP}, s{sTAG}, 31")
    g(f"s_or_b32 s{sTAGQ}, s{sTAGQ}, s{sRP}")

    def gemm1(base, nstep, vm, off, tg):
        for s_ in range(nstep):
            g(f"s_waitcnt vmcnt({vm - 4*(s_+1)})")
            for c in range(4):
                for half in range(2):
                    g(f"ds_read_b64_tr_b16 {vq(WF+16*s_+4*c+2*half,2)}, v{vTR} offset:{base + 4096*s_ + 512*half + 32*c}")
            g("s_waitcnt lgkmcnt(0)")
            for c in range(4):
                cc = "0" if s_ == 0 else vq(hACC + 4 * c)
                g(f"v_mfma_f32_16x16x32_bf16 {vq(hACC+4*c)}, {vq(WF+16*s_+4*c)}, {vq(R+4*((c-s_)&3))}, {cc}")
        g("s_nop 5")
        for (sm, c) in ((SM1, 1), (SM2, 2), (SM3, 3)):
            for r in range(4):
                g(f"v_cndmask_b32 v{hACC+r}, v{hACC+r}, v{hACC+4*c+r}, s[{sm}:{sm+1}]")
        for r in range(4):
            tagged(hT + off + r, hACC + r, vFFh, tg)

    sSLOWH, sOO = 55, 53
    def ffn_setup():
        g(f"v_and_b32 v14, 1, v4")
        g(f"v_lshlrev_b32 v14, 6, v14")
        g(f"v_lshl_add_u32 v14, v5, 4, v14")
        g(f"s_lshl_b32 s8, s{sC1}, 7")
        g(f"v_and_b32 v15, 1, v0")
        g(f"v_lshlrev_b32 v15, 1, v15")
        g(f"v_lshl_add_u32 v15, v5, 5, v15")
        g(f"s_lshl_b32 s9, s{sCB}, 7")
        g(f"s_lshl_b32 s{sT3}, s{sM}, 2")
        g(f"s_add_u32 s9, s9, s{sT3}")
        g(f"s_lshl_b32 s{sOO}, s{sB}, 10")
        g(f"s_add_u32 s{sOO}, s{sOO}, s9")
        g(f"v_lshrrev_b32 v12, 1, v4")
        g(f"v_lshlrev_b32 v12, 17, v12")
        g(f"v_lshl_add_u32 v12, v3, 8, v12")
        g(f"v_lshl_add_u32 v12, v14, 1, v12")
        g(f"s_and_b32 s{SXO[0]}, s2, 0x37")
        g(f"s_lshl_b32 s{SXO[0]}, s{SXO[0]}, 10")
        g(f"s_add_u32 s{SXO[0]}, s{SXO[0]}, {hex(A_H)}")
        g(f"s_add_u32 s{SXO[1]}, s{SXO[0]}, {hex(8 << 10)}")
        g(f"s_add_u32 s{SXO[2]}, s{SXO[0]}, {hex(64 << 10)}")
        g(f"s_add_u32 s{SXO[3]}, s{SXO[0]}, {hex(72 << 10)}")
        g(f"v_lshrrev_b32 v30, 3, v0")
        g(f"v_and_b32 v1, 7, v0")
        g(f"v_lshlrev_b32 v1, 4, v1")
        g(f"v_mul_u32_u24 v{V1}, 3584, v30")
        g(f"v_add_u32 v{V1}, v{V1}, v1")
        g(f"v_lshl_add_u32 v{V2}, v30, 10, v1")
        for (V, rs) in ((V1, 3584), (V2, 1024)):
            for i in range(1, 4):
                g(f"v_add_u32 v{V+i}, {hex(i*(8*rs - 1024))}, v{V}")
        g(f"v_lshlrev_b32 v1, 10, v30")
        g(f"v_lshl_add_u32 v1, v3, 4, v1")
        g(f"s_lshl_b32 s{sT4}, s{sB}, 1")
        g(f"s_add_u32 s{sT4}, s{sT4}, s{sU}")
        g(f"s_mul_i32 s{sT1}, s{sT4}, {64*3584}")
        g(f"s_add_u32 s{sT1}, s{sT1}, s8")
        g(f"s_lshl_b32 s{sT3}, s{sC1}, 16")
        g(f"s_lshl_b32 s{sT4}, s{sT4}, 7")
        g(f"s_add_u32 s{sT3}, s{sT3}, s{sT4}")
        g(f"s_add_u32 s{sT2}, s{sT1}, {32*3584}")
        g(f"s_add_u32 s{sT4}, s{sT3}, {32*1024}")
        g(f"s_mov_b32 m0, {L_W1}")
        if w1ln:
            g("s_waitcnt lgkmcnt(0)")
        g(f"buffer_load_ushort v28, v15, {srd(SX)}, s{sOO} offen")
        g(f"buffer_load_ushort v29, v15, {srd(SB2)}, s9 offen")
        if otouch:
            g(f"s_mov_b64 exec, 1")
            g(f"buffer_store_short v7, v15, {srd(SOUT)}, s{sOO} offen")
            g(f"s_mov_b64 exec, -1")
        g(f"s_cmp_ge_u32 s{sC1}, 28")
        if w1ln:
            g(f"s_cselect_b32 s{sT1}, {hex(OOB)}, s{sT1}")
            g(f"s_cselect_b32 s{sT2}, {hex(OOB)}, s{sT2}")
            g("s_waitcnt lgkmcnt(0)")
        else:
            g("s_cbranch_scc1 L_noffn0" if w1first else "s_cbranch_scc1 L_noffn1")
        g(f"buffer_load_dwordx4 {vq(16)}, v14, {srd(SB1)}, s8 offen")
        for so in (sT1, sT2):
            for i in range(4):
                g(f"buffer_load_dwordx4 v{V1+i}, {srd(SW1)}, s{so} offen offset:{1024*i} {wflags} lds")
            g(f"s_add_u32 m0, m0, 4096")
            g("s_nop 0")
    if w1ln:
        ffn_setup()
    gemm1(L_WQ, 4, 16 + (11 if w1ln else 0), 0, sTAGQ)
    g(f"buffer_store_dwordx4 {vq(hT)}, v{vQS}, {srd(SWS)}, s{sOWN} offen {'' if fast else 'sc1'}")
    g.stamp(2)
    g(f"v_mov_b32 v125, s{sTAG}")
    g(f"ds_write_b32 v7, v125 offset:{L_TAG}")
    SQG = (20, 21, 22, 23)
    def qpart():
        g(f"v_lshrrev_b32 v124, 3, v0")
        g(f"v_lshlrev_b32 v124, 13, v124")
        g(f"v_and_b32 v13, 7, v0")
        g(f"v_lshl_add_u32 v124, v13, 5, v124")
        g(f"s_lshl_b32 s{SQG[0]}, s{sH}, 10")
        g(f"s_lshl_b32 s{sT0}, s{sB}, 8")
        g(f"s_add_u32 s{SQG[0]}, s{SQG[0]}, s{sT0}")
        for j in range(1, 4):
            g(f"s_add_u32 s{SQG[j]}, s{SQG[0]}, {hex(j << 16)}")
        g(f"v_lshlrev_b32 v13, 4, v0")
        if qwait and not w1first:
            g(f"s_sleep {qwait}")
        QG = 64
        def republish():
            g(f"buffer_store_dwordx4 {vq(hT)}, v{vQS}, {srd(SWS)}, s{sOWN} offen sc1")
        g(f"s_mov_b32 s{sSPIN}, 0")
        g.label("L_pollq")
        for j in range(4):
            for i in range(2):
                g(f"buffer_load_dwordx4 {vq(QG+8*j+4*i)}, v124, {srd(SWS)}, s{SQG[j]} offen offset:{16*i} {gf}")
        g("s_waitcnt vmcnt(0)")
        tagcheck(g, [QG + i for i in range(32)], 30, 31, sTAGQ, 0x1f)
        g("s_cbranch_vccz L_gotq")
        g(f"s_add_u32 s{sSPIN}, s{sSPIN}, 1")
        g(f"s_cmp_lg_u32 s{sSPIN}, {repub}")
        g("s_cbranch_scc1 L_norp")
        g("s_mov_b64 exec, -1")
        republish()
        g.label("L_norp")
        g("s_mov_b64 exec, vcc")
        g("s_sleep 4")
        g(f"s_cmp_lt_u32 s{sSPIN}, {hex(spin_max)}")
        g("s_cbranch_scc1 L_pollq")
        g.label("L_gotq")
        g("s_mov_b64 exec, -1")
        g(f"v_and_b32 v30, 0xe0, v30")
        g(f"v_cmp_ne_u32 vcc, 0, v30")
        g(f"v_mov_b32 v31, 1")
        g("s_cbranch_vccz L_same")
        g(f"v_mov_b32 v31, 2")
        republish()
        for i in range(32):
            g(f"v_and_b32 v{QG+i}, 0xffffff00, v{QG+i}")
        g.label("L_same")
        g.stamp(4)
        def sum4():
            for i in range(4):
                g(f"v_pk_add_f32 {vq(QG+2*i,2)}, {vq(QG+2*i,2)}, {vq(QG+8+2*i,2)}")
                g(f"v_pk_add_f32 {vq(QG+16+2*i,2)}, {vq(QG+16+2*i,2)}, {vq(QG+24+2*i,2)}")
            for i in range(4):
                g(f"v_pk_add_f32 {vq(QG+2*i,2)}, {vq(QG+2*i,2)}, {vq(QG+16+2*i,2)}")
        sum4()
        for i in range(4):
            g(f"v_cvt_pk_bf16_f32 v{hACC+i}, v{QG+2*i}, v{QG+2*i+1}")
        g(f"ds_write_b128 v13, {vq(hACC)} offset:{L_Q}")
        g(f"ds_write_b32 v7, v31 offset:{L_TAG+4}")
        if diag and probe is None:
            g(f"s_mov_b32 s{sSTAMP+6}, s{sSPIN}")
        g.stamp(5)
        g("s_setprio 2" if sprio else "s_setprio 0")
        g(f"v_readfirstlane_b32 s55, v31")
    QG = 64
    def sum4():
        for i in range(4):
            g(f"v_pk_add_f32 {vq(QG+2*i,2)}, {vq(QG+2*i,2)}, {vq(QG+8+2*i,2)}")
            g(f"v_pk_add_f32 {vq(QG+16+2*i,2)}, {vq(QG+16+2*i,2)}, {vq(QG+24+2*i,2)}")
        for i in range(4):
            g(f"v_pk_add_f32 {vq(QG+2*i,2)}, {vq(QG+2*i,2)}, {vq(QG+16+2*i,2)}")
    if not w1first:
        qpart()
    if not w1ln:
        ffn_setup()
    else:
        g(f"s_cmp_ge_u32 s{sC1}, 28")
        g("s_cbranch_scc1 L_noffn0")
    gemm1(L_W1, 2, 9 if w1ln else 8, 4, sTAG)
    g.label("L_noffn0")
    if w1first:
        qpart()
        g(f"s_cmp_ge_u32 s{sC1}, 28")
        g("s_cbranch_scc1 L_noffn1")
    store_mode("h", f"buffer_store_dwordx4 {vq(hT+4)}, v{vQS}, {srd(SWS)}, s{sOWNH} offen", sSLOWH)
    g.label("L_noffn1")
    if stouch:
        g("s_load_dwordx2 s[20:21], s[0:1], 16")
        g("s_load_dwordx2 s[22:23], s[0:1], 32")
        g(f"s_lshl_b32 s{sT0}, s{sB}, 3")
        g(f"s_add_u32 s{sT0}, s{sT0}, s{sH}")
        g(f"s_lshl_b32 s{sT0}, s{sT0}, 3")
        g(f"s_add_u32 s{sT0}, s{sT0}, s{sS}")
        g(f"s_lshl_b32 s{sT0}, s{sT0}, 19")
        g(f"s_lshl_b32 s{sT1}, s{sH}, 19")
        g("s_waitcnt lgkmcnt(0)")
        g(f"s_add_u32 s20, s20, s{sT0}")
        g(f"s_addc_u32 s21, s21, 0")
        g(f"s_add_u32 s22, s22, s{sT1}")
        g(f"s_addc_u32 s23, s23, 0")
        g("s_load_dword s10, s[20:21], 0")
        g("s_load_dword s11, s[22:23], 0")
        g(f"s_load_dword s{sT1}, s[{SW2}:{SW2+1}], 0")
        if stouch == 2:
            g(f"s_load_dword s{sT2}, s[{SOUT}:{SOUT+1}], 0")
        g("s_waitcnt lgkmcnt(0)")
    def control(tag, c0, dc, c1_, rk):
        g.comment('speed only: a workgroup that is among the last of its die at a checkpoint requests whole lines only')
        g(f"s_cmp_eq_u32 s{sSLOWH}, 1")
        g(f"s_cbranch_scc0 L_noctl{tag}")
        g(f"s_lshl_b32 s{sT1}, s{sH}, 7")
        g(f"s_add_u32 s{sT1}, s{sT1}, {hex(A_C)}")
        g(f"s_lshr_b32 s{sT2}, s2, 3")
        g(f"s_lshl_b32 s{sT2}, s{sT2}, 2")
        g(f"s_add_u32 s{sT2}, s{sT2}, s{sT1}")
        g(f"v_and_b32 v124, 31, v0")
        g(f"v_lshlrev_b32 v124, 2, v124")
        g(f"s_mov_b32 s20, {c0}")
        g(f"s_and_b32 s11, s{sTAG}, 0xff")
        g.label(f"L_ctl{tag}")
        ldswait(f"ctl{tag}", L_CNT, "s20", 4, 7, 30)
        g(f"s_lshl_b32 s21, s20, 8")
        g(f"s_or_b32 s21, s21, s11")
        g(f"v_mov_b32 v125, s21")
        g(f"buffer_load_dword v126, v124, {srd(SWS)}, s{sT1} offen {cf}")
        g(f"buffer_store_dword v125, v7, {srd(SWS)}, s{sT2} offen {csf}")
        g("s_waitcnt vmcnt(1)")
        g(f"v_and_b32 v127, 0xffff00ff, v126")
        g(f"v_cmp_eq_u32 vcc, s11, v127")
        g(f"v_cmp_le_u32 s[{sMASK2}:{sMASK2+1}], v125, v126")
        g(f"s_and_b32 s21, vcc_lo, s{sMASK2}")
        g(f"s_bcnt1_i32_b32 s21, s21")
        g(f"s_cmp_ge_u32 s21, {rk}")
        g(f"s_cselect_b32 s21, {eth if cnone else 0}, {eth}")
        g(f"v_mov_b32 v127, s21")
        g(f"ds_write_b32 v7, v127 offset:{L_TH}")
        g(f"s_add_u32 s20, s20, {dc}")
        g(f"s_cmp_le_u32 s20, {c1_}")
        g(f"s_cbranch_scc1 L_ctl{tag}")
        g.label(f"L_noctl{tag}")
    if ctl is not None:
        control("a", ctl[0], ctl[1], cs, ctl[3])
    ldswait("kdh", L_KD, 512, 8, 7, 30)
    MX, MC, LS = 32, 33, 34
    g(f"ds_read_b32 v{MX}, v{vH4h} offset:{L_MAX}")
    SCR = 128
    for i in range(16):
        g(f"ds_read_b128 {vq(SCR+4*i)}, v13 offset:{L_SC + 1024*i}")
    g(f"s_mov_b32 s10, {f32(LOG2E)}")
    g("s_waitcnt lgkmcnt(0)")
    rne(g, MX, MX)
    g(f"v_mul_f32 v{MC}, s10, v{MX}")
    for i in range(4):
        g(f"v_mov_b32 v{LS+i}, 0")
    EX = 64
    if sprio:
        g("s_setprio 0")
    for blk in range(4):
        for i in range(16):
            g(f"v_lshlrev_b32 v{EX+2*i}, 16, v{SCR+16*blk+i}")
            g(f"v_and_b32 v{EX+2*i+1}, s{sHI}, v{SCR+16*blk+i}")
        for i in range(32):
            g(f"v_fma_f32 v{EX+i}, v{EX+i}, s10, -v{MC}")
        for i in range(32):
            g(f"v_exp_f32 v{EX+i}, v{EX+i}")
        for i in range(32):
            g(f"v_add_f32 v{LS+(i&3)}, v{LS+(i&3)}, v{EX+i}")
    if sprio:
        g("s_setprio 2")
    g(f"v_add_f32 v{LS}, v{LS}, v{LS+1}")
    g(f"v_add_f32 v{LS+2}, v{LS+2}, v{LS+3}")
    g(f"v_add_f32 v{LS}, v{LS}, v{LS+2}")
    red4(LS, LS + 1)
    for i in range(4):
        tagged(40 + i, MX if i % 2 == 0 else LS, vFFh, sTAG)
    g(f"s_lshl_b32 s{sT0}, s2, 7")
    g(f"s_add_u32 s{sT0}, s{sT0}, {hex(A_S)}")
    g("s_mov_b64 exec, 0xff")
    store_mode("s", f"buffer_store_dwordx4 {vq(40)}, v13, {srd(SWS)}, s{sT0} offen", sSLOWH)
    g("s_mov_b64 exec, -1")
    g(f"s_and_b32 s{sT0}, s2, 0xc7")
    g(f"s_lshl_b32 s{sT0}, s{sT0}, 7")
    g(f"s_add_u32 s{sT0}, s{sT0}, {hex(A_S)}")
    if ctl is not None and cs + ctl[1] <= ctl[2]:
        control("b", cs + ctl[1], ctl[1], ctl[2], ctl[3])
    ldswait("st", L_CNT, sth, 4, 7, 30)
    ST = 44
    poll("s", [f"buffer_load_dwordx2 {vq(ST,2)}, v1, {srd(SWS)}, s{sT0} offen {gf}"], [ST, ST + 1, ST], 30, 8)
    C1h, C2h, C3h = 46, 47, 36
    g(f"v_max_f32_dpp v{C1h}, v{ST}, v{ST} row_ror:8 row_mask:0xf bank_mask:0xf")
    for sw in ("v_permlane16_swap_b32", "v_permlane32_swap_b32"):
        g(f"v_mov_b32 v{C3h}, v{C1h}")
        g("s_nop 1")
        g(f"{sw} v{C1h}, v{C3h}")
        g(f"v_max_f32 v{C1h}, v{C1h}, v{C3h}")
    g(f"v_sub_f32 v{C2h}, v{ST}, v{C1h}")
    g(f"v_sub_f32 v{MX}, v{MX}, v{C1h}")
    g(f"v_mul_f32 v{C2h}, s10, v{C2h}")
    g(f"v_mul_f32 v{MX}, s10, v{MX}")
    g(f"v_exp_f32 v{C2h}, v{C2h}")
    g(f"v_exp_f32 v{MX}, v{MX}")
    g(f"v_mul_f32 v{C2h}, v{C2h}, v{ST+1}")
    g("s_nop 1")
    g(f"v_add_f32_dpp v{C2h}, v{C2h}, v{C2h} row_ror:8 row_mask:0xf bank_mask:0xf")
    for sw in ("v_permlane16_swap_b32", "v_permlane32_swap_b32"):
        g(f"v_mov_b32 v{C3h}, v{C2h}")
        g("s_nop 1")
        g(f"{sw} v{C2h}, v{C3h}")
        g(f"v_add_f32 v{C2h}, v{C2h}, v{C3h}")
    g(f"v_rcp_f32 v{C2h}, v{C2h}")
    g(f"v_mov_b32 v{MX+1}, 1")
    g(f"v_lshlrev_b32 v30, 1, v{vH4h}")
    g(f"v_mul_f32 v{MX}, v{MX}, v{C2h}")
    g(f"ds_write_b64 v30, {vq(MX,2)} offset:{L_F}")
    g.stamp(1)
    g(f"s_cmp_ge_u32 s{sC1}, 28")
    g("s_cbranch_scc1 L_noffn")
    ldswait("trig", L_CNT, 64 + trig, 4, 7, 30)
    g.stamp(10)
    for n, so in enumerate((sT3, sT4)):
        for i in range(4):
            g(f"buffer_load_dwordx4 v{V2+i}, {srd(SW2)}, s{so} offen offset:{1024*i} {wflags} lds")
        if n < 1:
            g(f"s_add_u32 m0, m0, 4096")
            g("s_nop 0")
    poll("h", [f"buffer_load_dwordx4 {vq(QG+8*j+4*i)}, v12, {srd(SWS)}, s{SXO[j]} offen offset:{16*i} {gf}"
               for j in range(4) for i in range(2)], [QG + i for i in range(32)], 30, 2)
    for s_ in range(2):
        for j in range(4):
            for half in range(2):
                g(f"ds_read_b64_tr_b16 {vq(WF+16*s_+4*j+2*half,2)}, v{vTR} offset:{L_W2 + 4096*s_ + 512*half + 32*j}")
    sum4()
    g("s_nop 1")
    for i in range(8):
        g(f"v_add_f32_dpp v{QG+i}, v{QG+i}, v{QG+i} row_ror:8 row_mask:0xf bank_mask:0xf")
    round8(QG, hT)
    for i in range(4):
        g(f"v_lshlrev_b32 v{hT+4}, 16, v{16+i}")
        g(f"v_and_b32 v{hT+5}, s{sHI}, v{16+i}")
        g(f"v_add_f32 v{QG+2*i}, v{QG+2*i}, v{hT+4}")
        g(f"v_add_f32 v{QG+2*i+1}, v{QG+2*i+1}, v{hT+5}")
    round8(QG, hT)
    for i in range(8):
        g(f"v_max_f32 v{QG+i}, 0, v{QG+i}")
    for i in range(8):
        g(f"v_mul_f32 v{QG+i}, v{QG+i}, v{QG+i}")
    for i in range(4):
        g(f"v_cvt_pk_bf16_f32 v{R+i}, v{QG+2*i}, v{QG+2*i+1}")
    g("s_nop 0")
    for i in range(4):
        g(f"v_mov_b32_dpp v{R+4+i}, v{R+i} row_ror:4 row_mask:0xf bank_mask:0xf")
    g.stamp(6)
    g("s_waitcnt lgkmcnt(0)")
    g("s_nop 0")
    for s_ in range(2):
        for j in range(4):
            cc = "0" if s_ == 0 else vq(hACC + 4 * j)
            g(f"v_mfma_f32_16x16x32_bf16 {vq(hACC+4*j)}, {vq(R+4*s_)}, {vq(WF+16*s_+4*j)}, {cc}")
    g("s_nop 7")
    for b_ in range(4):
        for j in range(4):
            tagged(QG + 4 * b_ + j, hACC + 4 * j + b_, vFFh, sTAG)
    g("s_mov_b64 exec, 0xffff")
    for b_ in range(4):
        g(f"buffer_store_dwordx4 {vq(QG+4*b_)}, v13, {srd(SWS)}, s{sOWNZ} offen offset:{256*b_} {zfl}")
    g("s_mov_b64 exec, -1")
    g.label("L_noffn")
    g.stamp(7)
    g(f"v_bfe_u32 v14, v0, 1, 3")
    g(f"v_lshlrev_b32 v14, 10, v14")
    g(f"v_and_b32 v12, 1, v0")
    g(f"v_lshl_add_u32 v14, v12, 4, v14")
    g(f"v_lshl_add_u32 v12, v5, 14, v14")
    g(f"v_lshl_add_u32 v14, v5, 16, v14")
    g(f"s_lshl_b32 s{sT2}, s{sB}, 8")
    g(f"s_lshl_b32 s{sT1}, s{sM}, 5")
    g(f"s_add_u32 s{sT2}, s{sT2}, s{sT1}")
    g(f"s_lshr_b32 s{sT0}, s{sCB}, 1")
    g(f"s_lshl_b32 s{sT0}, s{sT0}, 16")
    g(f"s_and_b32 s{sT1}, s{sCB}, 1")
    g(f"s_lshl_b32 s{sT1}, s{sT1}, 13")
    g(f"s_add_u32 s{sT0}, s{sT0}, s{sT1}")
    g(f"s_add_u32 s{sT0}, s{sT0}, s{sT2}")
    g(f"s_add_u32 s{sT0}, s{sT0}, {hex(A_Z)}")
    g(f"s_lshl_b32 s{sT1}, s{sCB}, 13")
    g(f"s_add_u32 s{sT1}, s{sT1}, s{sT2}")
    g(f"s_add_u32 s{sT1}, s{sT1}, {hex(A_Y)}")
    Z, Y = 32, 36
    for i in range(4):
        g(f"v_mov_b32 v{Z+i}, 0")
    ldswait("y", L_KD, 512 + 64 * ysig, 1, 7, 30)
    g(f"s_mov_b32 s{sMASK2}, -1")
    g(f"s_mov_b32 s{sMASK2+1}, 0x00ffffff")
    g(f"s_mov_b64 exec, s[{sMASK2}:{sMASK2+1}]")
    poll("z", [f"buffer_load_dwordx4 {vq(Z)}, v12, {srd(SWS)}, s{sT0} offen sc1"], [Z + i for i in range(4)], 30, zsleep)
    g.stamp(8)
    if epearly:
        g.comment("z came from workgroups of all 8 heads, each of which had every q partial of its head: all have read the epoch")
        g(f"s_cmp_lg_u32 s2, 0")
        g("s_cbranch_scc1 L_noep")
        g(f"s_mov_b32 s{sT0}, {hex(W_EP)}")
        g(f"v_lshlrev_b32 v30, 2, v0")
        g(f"buffer_store_dword v{vTAG}, v30, {srd(SWS)}, s{sT0} offen {epsf}")
        g.label("L_noep")
    def gate():
        reduce32x4(g, Z)
        rne(g, Z, Z)
        g(f"v_lshlrev_b32 v29, 16, v29")
        g(f"v_add_f32 v{Z}, v{Z}, v29")
        rne(g, Z, Z)
        g(f"v_mul_f32 v30, {f32(-LOG2E)}, v{Z}")
        g(f"v_exp_f32 v30, v30")
        g("s_nop 0")
        g(f"v_add_f32 v30, 1.0, v30")
        g(f"v_rcp_f32 v30, v30")
        g("s_nop 0")
        g(f"v_mul_f32 v{Z}, v{Z}, v30")
        rne(g, Z, Z)
        g(f"v_lshlrev_b32 v{Z+1}, 16, v28")
        g(f"s_mov_b32 s{sMASK2}, 0x00030003")
        g(f"s_mov_b32 s{sMASK2+1}, 0x00030003")
    if ypipe < 2:
        poll("y", [f"buffer_load_dwordx4 {vq(Y)}, v14, {srd(SWS)}, s{sT1} offen sc1"], [Y + i for i in range(4)], 30, ysleep, gate)
    else:
        YB = [64 + 4 * i for i in range(ypipe)]
        ld = lambda i: g(f"buffer_load_dwordx4 {vq(YB[i])}, v14, {srd(SWS)}, s{sT1} offen sc1")
        ld(0)
        gate()
        for i in range(1, ypipe):
            ld(i)
        g(f"s_mov_b32 s{sSPIN}, 0")
        g.label("L_polly")
        for i in range(ypipe):
            g(f"s_waitcnt vmcnt({ypipe-1})")
            tagcheck(g, [YB[i] + j for j in range(4)], 30, 31)
            for j in range(4):
                g(f"v_mov_b32 v{Y+j}, v{YB[i]+j}")
            g("s_cbranch_vccz L_goty")
            g("s_mov_b64 exec, vcc")
            ld(i)
        g(f"s_add_u32 s{sSPIN}, s{sSPIN}, 1")
        g(f"s_cmp_lt_u32 s{sSPIN}, {hex(spin_max)}")
        g("s_cbranch_scc1 L_polly")
        g.label("L_goty")
        g("s_mov_b64 exec, -1")
    g.stamp(9)
    reduce32x4(g, Y)
    rne(g, Y, Y)
    g(f"v_mul_f32 v{Y}, v{Y}, v{Z}")
    rne(g, Y, Y)
    g(f"v_add_f32 v{Y}, v{Y}, v{Z+1}")
    g(f"v_cvt_pk_bf16_f32 v{Y}, v{Y}, v{Y}")
    g(f"s_mov_b64 exec, s[{sMASK2}:{sMASK2+1}]")
    g(f"buffer_store_short v{Y}, v15, {srd(SOUT)}, s{sOO} offen {ofl}")
    if not epearly:
        g(f"s_cmp_lg_u32 s2, 0")
        g("s_cbranch_scc1 L_noep")
        g(f"s_mov_b32 s{sT0}, {hex(W_EP)}")
        g("s_mov_b64 exec, 1")
        g(f"buffer_store_dword v{vTAG}, v7, {srd(SWS)}, s{sT0} offen sc1")
        g.label("L_noep")
        g("s_mov_b64 exec, -1")
    elif g.diag:
        g("s_mov_b64 exec, -1")

    g.label("L_fin")
    if probe is not None:
        role, idx = probe
        g("s_waitcnt vmcnt(0)")
        g.stamp(11)
        g("s_waitcnt lgkmcnt(0)")
        g(f"s_mov_b32 s{sT0}, s{sSTAMP}")
        if role == 'wg':
            g(f"s_cmp_lg_u32 s2, {idx}")
            g("s_cbranch_scc1 L_end")
            g(f"s_cmp_lg_u32 s{sWAVE}, 0")
            g("s_cbranch_scc1 L_end")
        g(f"s_cmp_eq_u32 s{sWAVE}, 0")
        if role == 'h':
            g(f"s_cselect_b32 s{sT0}, s{sSTAMP+2*idx}, s{sT0}")
        elif role == 's':
            g(f"s_cselect_b32 s{sT0}, s{sT0}, s{sSTAMP+2*idx}")
        g(f"s_add_u32 s{sT0}, s{sT0}, 10000")
        g.label("L_probe")
        g(f"s_memrealtime s[{sSTAMP+2}:{sSTAMP+3}]")
        g("s_waitcnt lgkmcnt(0)")
        g(f"s_sub_u32 s{sT1}, s{sSTAMP+2}, s{sT0}")
        g(f"s_cmp_lt_i32 s{sT1}, 0")
        g("s_cbranch_scc1 L_probe")
    if diag:
        g("s_waitcnt vmcnt(0)")
        g.stamp(11)
        g("s_waitcnt lgkmcnt(0)")
        g(f"s_mul_i32 s{sT0}, s2, 5")
        g(f"s_add_u32 s{sT0}, s{sT0}, s{sWAVE}")
        g(f"s_lshl_b32 s{sT0}, s{sT0}, 6")
        g(f"s_add_u32 s{sT0}, s{sT0}, {hex(W_DIAG)}")
        for i in range(12):
            g(f"v_mov_b32 v{8+i}, s{sSTAMP+2*i}")
        g(f"v_mov_b32 v20, s{sSPIN}")
        g(f"v_mov_b32 v22, s{sIT}")
        g("s_getreg_b32 s3, hwreg(HW_REG_XCC_ID)")
        g("v_mov_b32 v21, s3")
        g("v_mov_b32 v23, 0")
        g("v_mov_b32 v1, 0")
        g("s_mov_b64 exec, 1")
        for i in range(4):
            g(f"buffer_store_dwordx4 {vq(8+4*i)}, v1, {srd(SWS)}, s{sT0} offen offset:{16*i}")
    g.label("L_end")
    g("s_endpgm")
    out += g.L
    out += ['.section .rodata,"a"', ".p2align 6", f".amdhsa_kernel {NAME}_kernel",
            "  .amdhsa_next_free_vgpr 256", "  .amdhsa_next_free_sgpr 102", "  .amdhsa_accum_offset 256",
            "  .amdhsa_group_segment_fixed_size 0", "  .amdhsa_kernarg_size 104", "  .amdhsa_user_sgpr_count 2",
            "  .amdhsa_user_sgpr_kernarg_segment_ptr 1", "  .amdhsa_system_sgpr_workgroup_id_x 1",
            "  .amdhsa_float_denorm_mode_32 3",
            ".end_amdhsa_kernel"]
    return "\n".join(out) + "\n"


if __name__ == "__main__":
    kw = eval("dict(%s)" % (sys.argv[2] if len(sys.argv) > 2 else ""))
    open(sys.argv[1], "w").write(gen(**kw))
```
